```python
import torch

def _softmax(x, axis=-1):
    return torch.softmax(x, dim=axis)
def _gelu(x):
    return torch.nn.functional.gelu(x, approximate="tanh")
def _silu(x):
    return torch.nn.functional.silu(x)
def _sigmoid(x):
    return torch.sigmoid(x)
def _layernorm(x, axis=-1, eps=1e-5):
    m = x.mean(dim=axis, keepdim=True)
    v = x.var(dim=axis, keepdim=True, unbiased=False)
    return (x - m) / torch.sqrt(v + eps)
def _scatter_add(tgt, idx, src, axis=0):
    return tgt.clone().index_add_(axis, idx, src)
def _segment_sum(src, seg, n):
    out = torch.zeros((n,) + src.shape[1:], dtype=src.dtype)
    return out.index_add_(0, seg, src)
def _pad(x, pw):
    flat = tuple(v for pair in reversed(pw) for v in pair)
    return torch.nn.functional.pad(x, flat)

kernel_name = 'recurrent_scan__grouped_kv_mqa__swiglu_ffn__prompt'

def setup_inputs():

    _w = (lambda a: (lambda t: t.to(torch.bfloat16) if t.is_floating_point() else t)(torch.as_tensor(a)))
    def _A_setup():
        B, S, D, H = 1, 2048, 640, 32
        Dh = D // H
        return {
            "x": _w((lambda *s: torch.randn(*s, dtype=torch.bfloat16) * 0.05)(B, S, D)),
            "wq": _w((lambda *s: torch.randn(*s, dtype=torch.bfloat16) * 0.05)(D, H * Dh)),
            "wk": _w((lambda *s: torch.randn(*s, dtype=torch.bfloat16) * 0.05)(D, Dh)),
            "wv": _w((lambda *s: torch.randn(*s, dtype=torch.bfloat16) * 0.05)(D, Dh)),
            "wo": _w((lambda *s: torch.randn(*s, dtype=torch.bfloat16) * 0.05)(H * Dh, D)),
        }
    _A_in = _A_setup()

    def _B_setup():
        B, S, D, F = 1, 2048, 640, 1728
        return {
            "x": _w((lambda *s: torch.randn(*s, dtype=torch.bfloat16) * 0.05)(B, S, D)),
            "w_gate": _w((lambda *s: torch.randn(*s, dtype=torch.bfloat16) * 0.05)(D, F)),
            "w_up": _w((lambda *s: torch.randn(*s, dtype=torch.bfloat16) * 0.05)(D, F)),
            "w_down": _w((lambda *s: torch.randn(*s, dtype=torch.bfloat16) * 0.05)(F, D)),
        }
    _B_in = _B_setup()

    return {
        "A_x": _A_in["x"],
        "A_wq": _A_in["wq"],
        "A_wk": _A_in["wk"],
        "A_wv": _A_in["wv"],
        "A_wo": _A_in["wo"],
        "B_x": _B_in["x"],
        "B_w_gate": _B_in["w_gate"],
        "B_w_up": _B_in["w_up"],
        "B_w_down": _B_in["w_down"],
    }

def reference(A_x, A_wq, A_wk, A_wv, A_wo, B_x, B_w_gate, B_w_up, B_w_down):
    def _A_ref(x, wq, wk, wv, wo):
        B, S, D = x.shape
        H = 32
        Dh = D // H
        q = (lambda x, *d: x.permute(*d))((x @ wq).reshape(B, S, H, Dh), 0, 2, 1, 3)
        k = x @ wk
        v = x @ wv
        scores = torch.einsum("bhqd,bkd->bhqk", q, k) * (Dh ** -0.5)
        p = _softmax(scores, axis=-1)
        o = torch.einsum("bhqk,bkd->bhqd", p, v)
        return (lambda x, *d: x.permute(*d))(o, 0, 2, 1, 3).reshape(B, S, H * Dh) @ wo

    def _B_ref(x, w_gate, w_up, w_down):
        g = _silu(x @ w_gate)
        u = x @ w_up
        return (g * u) @ w_down

    x = A_x
    xn = _layernorm(x, axis=-1)
    s = _A_ref(xn, A_wq, A_wk, A_wv, A_wo)
    g = _silu(_B_ref(xn, B_w_gate, B_w_up, B_w_down))
    return x + s * g
```

```python
import re

class Asm:
    def __init__(self):
        self.lines = []
        self.nlab = 0
    def __call__(self, s):
        for ln in s.split("\n"):
            ln = ln.strip()
            if ln:
                self.lines.append(ln)
    def label(self, name):
        self.lines.append(name + ":")
    def newlabel(self, pfx="L"):
        self.nlab += 1
        return f"{pfx}_{self.nlab}"
    def comment(self, s):
        self.lines.append("; " + s)
    def nop(self, n):
        while n > 0:
            k = min(n, 16)
            self.lines.append(f"s_nop {k-1}")
            n -= k
    def text(self):
        out = []
        for l in self.lines:
            if l.endswith(":") or l.startswith(".") or l.startswith(";"):
                out.append(l)
            else:
                out.append("  " + l)
        return "\n".join(out) + "\n"

def vr(b, n=1):
    return f"v{b}" if n == 1 else f"v[{b}:{b+n-1}]"
def sr(b, n=1):
    return f"s{b}" if n == 1 else f"s[{b}:{b+n-1}]"

_reg_re = re.compile(r"\b([vsa])(?:(\d+)|\[(\d+):(\d+)\])")
def regs_of(tok):
    out = set()
    for m in _reg_re.finditer(tok):
        k = m.group(1)
        if m.group(2) is not None:
            out.add((k, int(m.group(2))))
        else:
            for i in range(int(m.group(3)), int(m.group(4)) + 1):
                out.add((k, i))
    if re.search(r"\bvcc\b", tok): out.add(("s", "vcc"))
    if re.search(r"\bexec\b", tok): out.add(("s", "exec"))
    if re.search(r"\bm0\b", tok): out.add(("s", "m0"))
    return out

TRANS = ("v_exp_f32", "v_log_f32", "v_rcp_f32", "v_rsq_f32", "v_sqrt_f32", "v_sin_f32", "v_cos_f32")

class Ins:
    def __init__(self, text):
        self.text = text
        t = text.split(";")[0].strip()
        sp = t.split(None, 1)
        self.op = sp[0]
        rest = sp[1] if len(sp) > 1 else ""
        ops = []; depth = 0; cur = ""
        for ch in rest:
            if ch == "[": depth += 1
            if ch == "]": depth -= 1
            if ch == "," and depth == 0:
                ops.append(cur.strip()); cur = ""
            else:
                cur += ch
        if cur.strip(): ops.append(cur.strip())
        self.ops = ops
        op = self.op
        self.is_mfma = op.startswith("v_mfma")
        self.is_valu = op.startswith("v_") and not self.is_mfma
        self.is_salu = op.startswith("s_")
        self.is_vmem = op.startswith("buffer_") or op.startswith("global_")
        self.is_ds = op.startswith("ds_")
        self.is_trans = any(op.startswith(x) for x in TRANS)
        self.is_dpp = "_dpp" in op or "quad_perm" in rest or "row_" in rest
        self.is_perml = op.startswith("v_permlane")
        self.is_lds_dma = self.is_vmem and re.search(r"\blds\b", rest) is not None
        self.w = set(); self.r = set()
        self.srcC = set(); self.srcAB = set(); self.stdata = set()
        self.ws = 1
        if op == "s_nop":
            self.ws = int(ops[0], 0) + 1
        R = [regs_of(o) for o in ops]
        if self.is_mfma:
            self.w = R[0]; self.srcAB = R[1] | R[2]; self.srcC = R[3]; self.r = self.srcAB | self.srcC
            if "32x32x16" in op or "32x32x8" in op: self.passes = 8
            elif "16x16x32" in op or "16x16x16" in op: self.passes = 4
            else: raise ValueError(op)
        elif self.is_valu:
            if op.startswith("v_cmp"):
                self.w = R[0]; self.r = set().union(*R[1:])
                if op.startswith("v_cmpx"): self.w |= {("s", "exec")}
            elif op.startswith("v_readfirstlane") or op.startswith("v_readlane"):
                self.w = R[0]; self.r = set().union(*R[1:])
            elif self.is_perml or op.startswith("v_swap"):
                self.w = R[0] | R[1]; self.r = R[0] | R[1]
            elif op.startswith("v_add_co") or op.startswith("v_addc_co") or op.startswith("v_sub_co"):
                self.w = R[0] | R[1]; self.r = set().union(*R[2:])
            else:
                self.w = R[0]; self.r = set().union(*R[1:]) if len(R) > 1 else set()
                if op.startswith("v_fmac") or op.startswith("v_dot2c") or "sdwa" in op or self.is_dpp or op.startswith("v_writelane"):
                    self.r |= R[0]
                if op.startswith("v_cndmask") and len(ops) == 3:
                    self.r |= {("s", "vcc")}
        elif self.is_vmem:
            if "store" in op or "atomic" in op:
                self.stdata = R[0]; self.r = set().union(*R)
                if "atomic" in op and "sc0" in rest: self.w = R[0]
            elif op in ("buffer_wbl2", "buffer_inv"):
                pass
            elif self.is_lds_dma:
                self.r = set().union(*R) | {("s", "m0")}
            else:
                self.w = R[0]; self.r = set().union(*R[1:])
        elif self.is_ds:
            if "read" in op or "permute" in op or "swizzle" in op or "rtn" in op:
                self.w = R[0]; self.r = set().union(*R[1:])
            else:
                self.r = set().union(*R)
        elif self.is_salu:
            if op.startswith("s_cmp") or op.startswith("s_cbranch") or op in ("s_branch", "s_waitcnt", "s_barrier", "s_nop", "s_endpgm", "s_setprio", "s_sleep"):
                self.r = set().union(*R) if R else set()
            else:
                self.w = R[0] if R else set(); self.r = set().union(*R[1:]) if len(R) > 1 else set()
                if "saveexec" in op: self.w |= {("s", "exec")}; self.r |= {("s", "exec")}

def _need(p, c):
    n = 0
    vw = {x for x in p.w if x[0] in "va"}
    sw = {x for x in p.w if x[0] == "s"}
    if p.is_valu:
        if c.is_mfma and (vw & c.r): n = max(n, 2)
        if c.is_valu and c.is_dpp and (vw & c.r): n = max(n, 2)
        if c.is_perml and (vw & c.r): n = max(n, 2)
        if c.op.startswith("v_readfirstlane") or c.op.startswith("v_readlane"):
            if vw & c.r: n = max(n, 1)
            if sw & c.r: n = max(n, 4)
        if p.is_trans and c.is_valu and not c.is_trans and (vw & c.r): n = max(n, 1)
        if p.is_trans and (c.is_mfma) and (vw & c.r): n = max(n, 2)
        if "sdwa" in p.op and c.is_valu and (vw & (c.r | c.w)): n = max(n, 1)
        if sw:
            if c.is_vmem and (sw & c.r): n = max(n, 5)
            if c.is_valu and (sw & c.r): n = max(n, 2)
            if ("s", "exec") in sw:
                if c.is_mfma: n = max(n, 4)
                if c.is_dpp: n = max(n, 5)
                if c.is_perml: n = max(n, 4)
    if p.is_salu and ("s", "m0") in p.w and c.is_lds_dma: n = max(n, 1)
    if p.is_mfma:
        big = {8: 12, 4: 8}[p.passes]
        ovl = {8: 10, 4: 6}[p.passes]
        war = {8: 7, 4: 3}[p.passes]
        if c.is_mfma:
            if p.w & c.srcAB: n = max(n, big)
            if p.w & c.srcC:
                if not (p.w == c.srcC and p.passes == c.passes): n = max(n, ovl)
            elif p.w & c.w:
                n = max(n, ovl)
        elif c.is_valu or c.is_vmem or c.is_ds:
            if p.w & (c.r | c.w): n = max(n, big)
            if c.is_valu and (p.srcC & c.w): n = max(n, war)
    if p.is_vmem and p.stdata and len(p.stdata) >= 3:
        if (p.stdata & c.w): n = max(n, 2 if c.is_valu else 1)
    return n

def check_hazards(lines, window=24):
    ins = []; labels = {}
    for l in lines:
        if l.endswith(":"):
            labels[l[:-1]] = len(ins); continue
        if l.startswith(".") or l.startswith(";"): continue
        ins.append(Ins(l))
    probs = []
    def succs(i):
        x = ins[i]
        if x.op == "s_endpgm": return []
        if x.op == "s_branch": return [labels[x.ops[0]]]
        if x.op.startswith("s_cbranch"): return [i + 1, labels[x.ops[0]]]
        return [i + 1]
    for i, p in enumerate(ins):
        if not (p.is_valu or p.is_mfma or p.is_vmem or (p.is_salu and ("s", "m0") in p.w)): continue
        stack = [(s, 0) for s in succs(i)]
        seen = {}
        while stack:
            j, d = stack.pop()
            if j >= len(ins) or d >= 13: continue
            if j in seen and seen[j] <= d: continue
            seen[j] = d
            c = ins[j]
            n = _need(p, c)
            if n > d:
                probs.append(f"hazard: need {n} have {d}: [{p.text}] -> [{c.text}]")
            for s in succs(j):
                stack.append((s, d + c.ws))
    return probs
```

```python
import sys, struct
from asmlib import *

NAME = "recurrent_scan__grouped_kv_mqa__swiglu_ffn__prompt"
S, D, H, DH, F = 2048, 640, 32, 20, 1728
WS_XN = 0
WS_QF = 0x300000
WS_KV = 0x600000
WS_HF = 0x700000
WS_OF = 0xE00000
WS_SIZE = 0x1200000
KVT = 3584
OOB = 0x7f000000

def f32bits(x):
    return struct.unpack("<I", struct.pack("<f", x))[0]
QSCALE = (DH ** -0.5) * 1.4426950408889634

sWV, sG, sJ = 3, 4, 5
SRD_X, SRD_WQ, SRD_WKV, SRD_WO, SRD_WG, SRD_WU, SRD_WD, SRD_OUT, SRD_WS = 40, 44, 48, 52, 56, 60, 64, 68, 72
P_X, P_WQ, P_WK, P_WV, P_WO, P_BX, P_WG, P_WU, P_WD, P_OUT, P_DBG, P_WS = [16 + 2 * i for i in range(12)]

def srd(a, dst, ptr, nbytes):
    a(f"s_mov_b32 s{dst}, s{ptr}")
    a(f"s_mov_b32 s{dst+1}, s{ptr+1}")
    a(f"s_mov_b32 s{dst+2}, {nbytes}")
    a(f"s_mov_b32 s{dst+3}, 0x20000")

def S4(b): return f"s[{b}:{b+3}]"

def kernel_head(a, name, endlab):
    a.lines.append(f".globl {name}")
    a.lines.append(".p2align 8")
    a.lines.append(f".type {name},@function")
    a.label(name)
    a(f"s_cmp_ge_u32 s2, 256")
    a(f"s_cbranch_scc1 {endlab}")
    a("s_load_dwordx16 s[16:31], s[0:1], 0")
    a("s_load_dwordx8 s[32:39], s[0:1], 64")
    a("v_lshrrev_b32 v1, 6, v0")
    a("v_and_b32 v0, 63, v0")
    a(f"v_readfirstlane_b32 s{sWV}, v1")
    a("s_and_b32 s6, s2, 7")
    a("s_lshl_b32 s6, s6, 2")
    a("s_bfe_u32 s7, s2, 0x20003")
    a(f"s_add_u32 s{sG}, s6, s7")
    a(f"s_lshr_b32 s{sJ}, s2, 5")
    a("s_waitcnt lgkmcnt(0)")

def kernel_desc(name, vgpr=256):
    return f""".amdhsa_kernel {name}
  .amdhsa_next_free_vgpr {vgpr}
  .amdhsa_next_free_sgpr 102
  .amdhsa_accum_offset {vgpr}
  .amdhsa_group_segment_fixed_size 0
  .amdhsa_kernarg_size 96
  .amdhsa_user_sgpr_count 2
  .amdhsa_user_sgpr_kernarg_segment_ptr 1
  .amdhsa_system_sgpr_workgroup_id_x 1
.end_amdhsa_kernel
"""

def mfma32(a, d, A, B, c=None):
    cs = vr(d, 16) if c is None else c
    a(f"v_mfma_f32_32x32x16_bf16 {vr(d,16)}, {vr(A,4)}, {vr(B,4)}, {cs}")
def mfma32x8(a, d, A, B, c=None):
    cs = vr(d, 16) if c is None else c
    a(f"v_mfma_f32_32x32x8_bf16 {vr(d,16)}, {vr(A,2)}, {vr(B,2)}, {cs}")
def mfma16(a, d, A, B, c=None):
    cs = vr(d, 4) if c is None else c
    a(f"v_mfma_f32_16x16x32_bf16 {vr(d,4)}, {vr(A,4)}, {vr(B,4)}, {cs}")

L_XN = 0
L_RING = 81920
L_WKV = 81920 + 49152
LDS_TOTAL = 163840

def emit_xn_read_addrs(a, XA, tmp):
    a(f"v_lshrrev_b32 v{tmp}, 5, v0")
    for m in range(4):
        a(f"v_or_b32 v{XA+m}, {2*m}, v{tmp}")
        a(f"v_xor_b32 v{XA+m}, v{XA+m}, v0")
        a(f"v_lshlrev_b32 v{XA+m}, 4, v{XA+m}")

def emit_pre(a):
    name = "pre_kernel"
    END = "pre_end"
    kernel_head(a, name, END)
    srd(a, SRD_X, P_X, S * D * 2)
    srd(a, SRD_WQ, P_WQ, D * D * 2)
    srd(a, SRD_WS, P_WS, WS_SIZE)
    a(f"s_and_b32 s6, s{sJ}, 1")
    a("s_cmp_eq_u32 s6, 0")
    a(f"s_cselect_b32 s{SRD_WKV}, s{P_WK}, s{P_WV}")
    a(f"s_cselect_b32 s{SRD_WKV+1}, s{P_WK+1}, s{P_WV+1}")
    a(f"s_mov_b32 s{SRD_WKV+2}, {D*DH*2}")
    a(f"s_mov_b32 s{SRD_WKV+3}, 0x20000")
    XR, DD = 16, 64
    vP, vSum, vSq, vT = 2, 4, 6, 8
    a("v_lshrrev_b32 v10, 3, v0")
    a("v_and_b32 v11, 7, v0")
    a("v_mul_u32_u24 v12, 1280, v10")
    a("v_lshl_add_u32 v13, v11, 4, v12")
    a(f"s_lshl_b32 s6, s{sG}, 3")
    a(f"s_add_u32 s6, s6, s{sWV}")
    a(f"s_mul_i32 s6, s6, {8*1280}")
    a(f"buffer_load_ushort v{vP}, v12, {S4(SRD_X)}, s6 offen")
    for i in range(10):
        a(f"buffer_load_dwordx4 {vr(XR+4*i,4)}, v13, {S4(SRD_X)}, s6 offen offset:{i*128}")
    NSQ = 8
    a("v_lshlrev_b32 v14, 4, v0")
    a(f"s_cmp_ge_u32 s{sWV}, 4")
    a("s_cbranch_scc1 pre_qdma")
    a(f"s_lshl_b32 s7, s{sWV}, 10")
    for n in range(7):
        a(f"s_add_u32 m0, s7, {L_WKV + n*4096}")
        a(f"s_add_u32 s8, s7, {n*4096}")
        a(f"buffer_load_dwordx4 v14, {S4(SRD_WKV)}, s8 offen lds")
    a("s_nop 0")
    a(f"buffer_load_dword v15, v12, {S4(SRD_X)}, s6 offen")
    a("s_branch pre_ln")
    a.label("pre_qdma")
    vQO = 15
    a("v_lshrrev_b32 v8, 2, v0")
    a("v_mul_u32_u24 v8, 1280, v8")
    a("v_and_b32 v9, 3, v0")
    a(f"v_lshl_add_u32 v{vQO}, v9, 4, v8")
    a(f"s_mul_i32 s7, s{sJ}, 160")
    a(f"s_sub_u32 s9, s{sWV}, 4")
    a("s_mul_i32 s8, s9, 40")
    a("s_add_u32 s7, s7, s8")
    a(f"v_add_u32 v{vQO}, s7, v{vQO}")
    a("v_cmp_eq_u32 vcc, 3, v9")
    a(f"v_mov_b32 v8, {OOB}")
    a("s_nop 0")
    a(f"v_cndmask_b32 v{vQO}, v{vQO}, v8, vcc")
    a(f"s_mul_i32 s10, s9, 12288")
    a(f"s_add_u32 s10, s10, {L_RING}")
    a("s_mov_b32 s11, 0")
    for n in range(NSQ):
        a(f"s_add_u32 m0, s10, {n*1024}")
        a("s_nop 0")
        a(f"buffer_load_dwordx4 v{vQO}, {S4(SRD_WQ)}, s11 offen lds")
        a(f"s_add_u32 s11, s11, {16*1280}")
    a.label("pre_ln")
    a(f"v_mov_b32 v{vSum}, 0\nv_mov_b32 v{vSum+1}, 0\nv_mov_b32 v{vSq}, 0\nv_mov_b32 v{vSq+1}, 0")
    a("s_mov_b32 s12, 0xffff0000")
    a(f"s_waitcnt vmcnt({8+10})")
    a(f"v_lshlrev_b32 v{vP}, 16, v{vP}")
    for i in range(10):
        a(f"s_waitcnt vmcnt({8+9-i})")
        for e in range(4):
            d = DD + 8 * i + 2 * e
            a(f"v_lshlrev_b32 v{d}, 16, v{XR+4*i+e}")
            a(f"v_and_b32 v{d+1}, s12, v{XR+4*i+e}")
        for e in range(4):
            d = DD + 8 * i + 2 * e
            a(f"v_pk_add_f32 {vr(d,2)}, {vr(d,2)}, {vr(vP,2)} op_sel_hi:[1,0] neg_lo:[0,1] neg_hi:[0,1]")
        for e in range(4):
            d = DD + 8 * i + 2 * e
            a(f"v_pk_add_f32 {vr(vSum,2)}, {vr(vSum,2)}, {vr(d,2)}")
            a(f"v_pk_fma_f32 {vr(vSq,2)}, {vr(d,2)}, {vr(d,2)}, {vr(vSq,2)}")
    a(f"v_add_f32 v{vSum}, v{vSum}, v{vSum+1}")
    a(f"v_add_f32 v{vSq}, v{vSq}, v{vSq+1}")
    for ctl in ("quad_perm:[1,0,3,2]", "quad_perm:[2,3,0,1]", "row_half_mirror"):
        a("s_nop 1")
        a(f"v_add_f32_dpp v{vSum}, v{vSum}, v{vSum} {ctl} row_mask:0xf bank_mask:0xf")
        a(f"v_add_f32_dpp v{vSq}, v{vSq}, v{vSq} {ctl} row_mask:0xf bank_mask:0xf")
    inv = f32bits(1.0 / D)
    a(f"v_mul_f32 v{vSum}, {hex(inv)}, v{vSum}")
    a(f"v_mul_f32 v{vSq}, {hex(inv)}, v{vSq}")
    a(f"v_fma_f32 v{vSq}, -v{vSum}, v{vSum}, v{vSq}")
    a(f"v_max_f32 v{vSq}, 0, v{vSq}")
    a(f"v_add_f32 v{vSq}, {hex(f32bits(1e-5))}, v{vSq}")
    a(f"v_rsq_f32 v{vSq}, v{vSq}")
    a("s_nop 0")
    a(f"v_mul_f32 v{vSum}, v{vSum}, v{vSq}")
    a(f"s_and_b32 s7, s{sWV}, 3")
    a("s_lshl_b32 s7, s7, 3")
    a("v_add_u32 v8, s7, v10")
    a("v_and_b32 v9, 1, v11")
    a("v_lshl_add_u32 v8, v9, 5, v8")
    a("v_xor_b32 v8, v8, v11")
    a("v_lshlrev_b32 v8, 4, v8")
    a("v_lshrrev_b32 v9, 1, v11")
    a("v_lshl_add_u32 v8, v9, 11, v8")
    a(f"s_lshr_b32 s7, s{sWV}, 2")
    a("s_lshl_b32 s7, s7, 10")
    a("v_add_u32 v8, s7, v8")
    a("v_add_u32 v9, 0x10000, v8")
    for i in range(10):
        for e in range(4):
            d = DD + 8 * i + 2 * e
            a(f"v_pk_fma_f32 {vr(d,2)}, {vr(d,2)}, {vr(vSq,2)}, {vr(vSum,2)} op_sel_hi:[1,0,0] neg_lo:[0,0,1] neg_hi:[0,0,1]")
        for e in range(4):
            d = DD + 8 * i + 2 * e
            a(f"v_cvt_pk_bf16_f32 v{XR+4*i+e}, v{d}, v{d+1}")
        off = i * 8192
        if off < 65536:
            a(f"ds_write_b128 v8, {vr(XR+4*i,4)} offset:{L_XN+off}")
        else:
            a(f"ds_write_b128 v9, {vr(XR+4*i,4)} offset:{L_XN+off-65536}")
    a(f"s_cmp_lg_u32 s{sWV}, s{sJ}")
    a("s_cbranch_scc1 pre_noxn")
    a(f"s_mul_i32 s7, s{sG}, 81920")
    for i in range(10):
        a(f"buffer_store_dwordx4 {vr(XR+4*i,4)}, v8, {S4(SRD_WS)}, s7 offen")
        a(f"s_add_u32 s7, s7, 8192")
    a.label("pre_noxn")
    a(f"s_cmp_ge_u32 s{sWV}, 4")
    a("s_cbranch_scc1 pre_bar")
    a("s_waitcnt vmcnt(0)")
    a.label("pre_bar")
    a("s_waitcnt lgkmcnt(0)")
    a("s_barrier")
    a(f"s_cmp_ge_u32 s{sWV}, 4")
    a("s_cbranch_scc1 pre_q")
    a(f"s_cmp_ge_u32 s{sWV}, 2")
    a(f"s_cbranch_scc1 {END}")
    emit_kv(a, END)
    a.label("pre_q")
    emit_q(a, NSQ, vQO)
    a.label(END)
    a("s_endpgm")

def emit_kv(a, END):
    vWA, vXE, vXO, vXE2, vXO2 = 2, 3, 4, 5, 6
    ACC = 96
    FB = 16
    a("v_lshrrev_b32 v10, 4, v0")
    a("v_bfe_u32 v11, v0, 2, 2")
    a("v_lshl_add_u32 v11, v10, 3, v11")
    a("v_mul_u32_u24 v11, 40, v11")
    a("v_and_b32 v12, 3, v0")
    a("v_lshlrev_b32 v12, 3, v12")
    a(f"s_cmp_eq_u32 s{sWV}, 0")
    a("s_cselect_b32 s7, -1, 0")
    a("s_cselect_b32 s8, 0, 32")
    a("v_and_b32 v12, s7, v12")
    a("v_add3_u32 v11, v11, v12, s8")
    a(f"v_add_u32 v{vWA}, {L_WKV}, v11")
    a(f"s_lshr_b32 s9, s{sJ}, 1")
    a("s_and_b32 s10, s9, 1")
    a("s_lshr_b32 s11, s9, 1")
    a("s_lshl_b32 s12, s10, 4")
    a("v_and_b32 v13, 15, v0")
    a("v_add_u32 v13, s12, v13")
    a("v_and_b32 v14, 1, v10")
    a("v_lshl_add_u32 v14, v14, 5, v13")
    a("v_xor_b32 v15, v14, v10")
    a("v_lshrrev_b32 v7, 1, v10")
    a("v_lshlrev_b32 v7, 11, v7")
    a("s_lshl_b32 s12, s11, 10")
    a("v_add_u32 v7, s12, v7")
    a(f"v_lshl_add_u32 v{vXE}, v15, 4, v7")
    a("v_xor_b32 v15, 4, v15")
    a(f"v_lshl_add_u32 v{vXO}, v15, 4, v7")
    a(f"v_add_u32 v{vXE2}, 0x10000, v{vXE}")
    a(f"v_add_u32 v{vXO2}, 0x10000, v{vXO}")
    def reads(b):
        for t in range(4):
            s = 4 * b + t
            fb = FB + (b & 1) * 32 + t * 8
            a(f"ds_read_b64_tr_b16 {vr(fb,2)}, v{vWA} offset:{s*1280}")
            a(f"ds_read_b64_tr_b16 {vr(fb+2,2)}, v{vWA} offset:{s*1280+160}")
            off = L_XN + s * 4096
            reg = (vXO if s & 1 else vXE) if off < 65536 else (vXO2 if s & 1 else vXE2)
            a(f"ds_read_b128 {vr(fb+4,4)}, v{reg} offset:{off % 65536}")
    a(f"s_and_b32 s6, s{sJ}, 1")
    a("s_cmp_eq_u32 s6, 1")
    a("s_cbranch_scc1 kv_v")
    for kv in (0, 1):
        if kv: a.label("kv_v")
        reads(0)
        for b in range(5):
            if b < 4:
                reads(b + 1)
                a("s_waitcnt lgkmcnt(12)")
            else:
                a("s_waitcnt lgkmcnt(0)")
            for t in range(4):
                fb = FB + (b & 1) * 32 + t * 8
                c = "0" if (b == 0 and t == 0) else None
                if kv == 0: mfma16(a, ACC, fb, fb + 4, c)
                else:       mfma16(a, ACC, fb + 4, fb, c)
        a(f"s_lshl_b32 s12, s{sG}, 1")
        a("s_add_u32 s12, s12, s11")
        a(f"s_mul_i32 s12, s12, {KVT}")
        a(f"s_add_u32 s12, s12, {WS_KV}")
        if kv == 0:
            a("v_lshrrev_b32 v2, 1, v10")
            a("v_lshl_add_u32 v2, v2, 5, v13")
            a("v_lshlrev_b32 v2, 4, v2")
            a("v_and_b32 v3, 1, v10")
            a("v_lshl_add_u32 v2, v3, 3, v2")
            a("v_lshl_add_u32 v3, v10, 5, v13")
            a("v_lshlrev_b32 v3, 3, v3")
            a("v_add_u32 v3, 3072, v3")
            a(f"v_mov_b32 v4, {OOB}")
            a("v_cmp_lt_u32 vcc, 1, v10")
            a("s_nop 1")
            a("v_cndmask_b32 v3, v3, v4, vcc")
            a("s_nop 2")
            a(f"v_cvt_pk_bf16_f32 v6, v{ACC}, v{ACC+1}")
            a(f"v_cvt_pk_bf16_f32 v7, v{ACC+2}, v{ACC+3}")
            a(f"s_cmp_eq_u32 s{sWV}, 0")
            a("s_cbranch_scc1 kv_store")
            a("v_mov_b32 v2, v3")
            a("v_cmp_eq_u32 vcc, 1, v10")
            a("v_mov_b32 v4, 0x3f803f80")
            a("v_mov_b32 v5, 0x00003f80")
            a("v_cndmask_b32 v6, v6, v4, vcc")
            a("v_cndmask_b32 v7, v7, v5, vcc")
            a("s_branch kv_store")
        else:
            a("v_and_b32 v2, 15, v0")
            a(f"s_lshl_b32 s13, s{sWV}, 4")
            a("v_add_u32 v3, s13, v2")
            a("v_and_b32 v4, 1, v10")
            a("v_lshl_add_u32 v3, v4, 5, v3")
            a("v_lshlrev_b32 v3, 4, v3")
            a("v_lshrrev_b32 v4, 1, v10")
            a("v_lshl_add_u32 v3, v4, 3, v3")
            a("s_lshl_b32 s13, s10, 10")
            a("s_add_u32 s13, s13, 1024")
            a("v_add_u32 v3, s13, v3")
            a("s_nop 2")
            a(f"v_cvt_pk_bf16_f32 v6, v{ACC}, v{ACC+1}")
            a(f"v_cvt_pk_bf16_f32 v7, v{ACC+2}, v{ACC+3}")
            a(f"s_cmp_eq_u32 s{sWV}, 0")
            a("s_cbranch_scc1 kv_vst")
            a("v_cmp_eq_u32 vcc, 4, v2")
            a("v_mov_b32 v4, 0x3f803f80")
            a("v_mov_b32 v5, 0")
            a("v_cndmask_b32 v4, v5, v4, vcc")
            a("v_cmp_lt_u32 vcc, 3, v2")
            a("s_nop 1")
            a("v_cndmask_b32 v6, v6, v4, vcc")
            a("v_cndmask_b32 v7, v7, v4, vcc")
            a.label("kv_vst")
            a("v_mov_b32 v2, v3")
    a.label("kv_store")
    a(f"buffer_store_dwordx2 v[6:7], v2, {S4(SRD_WS)}, s12 offen")
    a(f"s_branch {END}")

def emit_q(a, NS, vQO):
    XA, vTA = 2, 6
    ACC = 64
    FB = 16
    emit_xn_read_addrs(a, XA, 7)
    a("v_lshrrev_b32 v8, 5, v0")
    a("v_bfe_u32 v9, v0, 2, 2")
    a("v_lshl_add_u32 v8, v8, 3, v9")
    a("v_lshlrev_b32 v8, 6, v8")
    a("v_and_b32 v9, 1, v0")
    a("v_lshlrev_b32 v9, 1, v9")
    a("v_bfe_u32 v10, v0, 1, 1")
    a("v_or_b32 v9, v9, v10")
    a("v_and_b32 v10, 16, v0")
    a("v_cmp_ne_u32 vcc, 0, v10")
    a("v_mov_b32 v10, 4")
    a("s_nop 0")
    a("v_cndmask_b32 v9, v9, v10, vcc")
    a("v_lshl_add_u32 v8, v9, 3, v8")
    a(f"v_add_u32 v{vTA}, s10, v8")
    for i in range(32):
        a(f"v_mov_b32 v{ACC+i}, 0")
    U = NS
    def reads(u):
        fb = FB + (u & 1) * 12
        slot = u % NS
        a(f"ds_read_b64_tr_b16 {vr(fb,2)}, v{vTA} offset:{slot*1024}")
        a(f"ds_read_b64_tr_b16 {vr(fb+2,2)}, v{vTA} offset:{slot*1024+256}")
        a(f"ds_read_b128 {vr(fb+4,4)}, v{XA+(u&3)} offset:{L_XN+u*2048}")
        a(f"ds_read_b128 {vr(fb+8,4)}, v{XA+(u&3)} offset:{L_XN+u*2048+1024}")
    a("s_waitcnt vmcnt(0)")
    reads(0)
    a(f"s_mov_b32 s12, {40//U}")
    a.label("q_loop")
    for u in range(U):
        a(f"s_waitcnt vmcnt({NS-2})")
        reads(u + 1)
        a("s_waitcnt lgkmcnt(4)")
        fb = FB + (u & 1) * 12
        mfma32(a, ACC, fb, fb + 4)
        mfma32(a, ACC + 16, fb, fb + 8)
        a(f"s_add_u32 m0, s10, {(u%NS)*1024}")
        a("s_nop 0")
        a(f"buffer_load_dwordx4 v{vQO}, {S4(SRD_WQ)}, s11 offen lds")
        a(f"s_add_u32 s11, s11, {16*1280}")
    for m in range(4):
        a(f"v_add_u32 v{XA+m}, {U*2048}, v{XA+m}")
    a("s_sub_u32 s12, s12, 1")
    a("s_cmp_lg_u32 s12, 0")
    a("s_cbranch_scc1 q_loop")
    a(f"v_mov_b32 v8, {hex(f32bits(QSCALE))}")
    a("v_cmp_gt_u32 vcc, 32, v0")
    a("v_mov_b32 v10, 0")
    a("s_nop 0")
    a("v_cndmask_b32 v9, v10, v8, vcc")
    a("v_lshlrev_b32 v12, 4, v0")
    a("v_lshlrev_b32 v13, 3, v0")
    a("s_lshl_b32 s13, s2, 3")
    a("s_lshl_b32 s14, s9, 1")
    a("s_add_u32 s13, s13, s14")
    a("s_mul_i32 s13, s13, 1536")
    a(f"s_add_u32 s13, s13, {WS_QF}")
    a("s_waitcnt lgkmcnt(0)")
    a("s_nop 7")
    for rt in range(2):
        ac = ACC + 16 * rt
        for i in range(8):
            a(f"v_mul_f32 v{ac+i}, v8, v{ac+i}")
        for i in range(8, 12):
            a(f"v_mul_f32 v{ac+i}, v9, v{ac+i}")
        o = FB + 8 * rt
        for i in range(6):
            a(f"v_cvt_pk_bf16_f32 v{o+i}, v{ac+2*i}, v{ac+2*i+1}")
        a(f"buffer_store_dwordx4 {vr(o,4)}, v12, {S4(SRD_WS)}, s13 offen offset:{rt*1536}")
        a(f"buffer_store_dwordx2 {vr(o+4,2)}, v13, {S4(SRD_WS)}, s13 offen offset:{rt*1536+1024}")

L_ORED = 0

def emit_att(a, END):
    NQ = 8
    OA = 128
    QF = 80
    SB = 48
    KB = 16
    v16, v8 = 2, 3
    a(f"v_lshlrev_b32 v{v16}, 4, v0")
    a(f"v_lshlrev_b32 v{v8}, 3, v0")
    a("s_mul_i32 s6, s2, 12288")
    a(f"s_add_u32 s6, s6, {WS_QF}")
    a(f"s_mul_i32 s7, s{sWV}, {16*KVT}")
    a(f"s_add_u32 s7, s7, {WS_KV}")
    def kvload(b):
        kb = KB + 16 * b
        a(f"buffer_load_dwordx4 {vr(kb,4)}, v{v16}, {S4(SRD_WS)}, s7 offen")
        a(f"buffer_load_dwordx2 {vr(kb+12,2)}, v{v8}, {S4(SRD_WS)}, s7 offen offset:3072")
        a(f"buffer_load_dwordx4 {vr(kb+4,4)}, v{v16}, {S4(SRD_WS)}, s7 offen offset:1024")
        a(f"buffer_load_dwordx4 {vr(kb+8,4)}, v{v16}, {S4(SRD_WS)}, s7 offen offset:2048")
        a(f"s_add_u32 s7, s7, {KVT}")
    for qt in range(NQ):
        if qt % 2 == 0 and qt:
            a("s_add_u32 s6, s6, 3072")
        o = (qt % 2) * 1536
        a(f"buffer_load_dwordx4 {vr(QF+4*qt,4)}, v{v16}, {S4(SRD_WS)}, s6 offen offset:{o}")
        a(f"buffer_load_dwordx2 {vr(QF+32+2*qt,2)}, v{v8}, {S4(SRD_WS)}, s6 offen offset:{o+1024}")
    kvload(0)
    for i in range(16):
        a(f"v_mov_b32 v{KB+16+i}, 0")
    for i in range(NQ * 16):
        a(f"v_mov_b32 v{OA+i}, 0")
    for i in range(16):
        a(f"v_mov_b32 v{SB+16+i}, 0")
    a("s_waitcnt vmcnt(0)")
    def qk0(n):
        b = (n // NQ) & 1; qt = n % NQ
        mfma32(a, SB + 16 * (n & 1), KB + 16 * b, QF + 4 * qt, "0")
    def qk1(n):
        b = (n // NQ) & 1; qt = n % NQ
        mfma32x8(a, SB + 16 * (n & 1), KB + 16 * b + 12, QF + 32 + 2 * qt)
    def pv(n, t):
        b = (n // NQ) & 1; qt = n % NQ
        mfma32(a, OA + 16 * qt, KB + 16 * b + 4 + 4 * t, SB + 16 * (n & 1) + 4 * t)
    qk0(0); qk1(0)
    a("s_nop 7"); a("s_nop 3")
    a("s_mov_b32 s8, 8")
    a.lines.append(".p2align 6")
    a.label("att_loop")
    for n in range(2 * NQ):
        s = SB + 16 * (n & 1)
        def e(i): a(f"v_exp_f32 v{s+i}, v{s+i}")
        def c(i): a(f"v_cvt_pk_bf16_f32 v{s+i}, v{s+2*i}, v{s+2*i+1}")
        e(0); e(1)
        pv((n - 1) % (2 * NQ), 1)
        if n % NQ == 0:
            kvload(((n // NQ) + 1) & 1)
        e(2); e(3); c(0); c(1)
        if (n + 1) % NQ == 0:
            a("s_waitcnt vmcnt(0)")
        qk0(n + 1)
        e(4); e(5); e(6); e(7); c(2); c(3)
        qk1(n + 1)
        e(8); e(9)
        pv(n, 0)
        e(10); e(11); c(4); c(5)
        e(12); e(13); e(14); e(15); c(6); c(7)
    a("s_sub_u32 s8, s8, 1")
    a("s_cmp_lg_u32 s8, 0")
    a("s_cbranch_scc1 att_loop")
    pv(2 * NQ - 1, 1)
    a("s_waitcnt vmcnt(0)")
    a("s_barrier")
    a(f"s_mul_i32 s9, s{sWV}, {8*3072}")
    a(f"v_add_u32 v4, s9, v{v16}")
    a("s_nop 7")
    for qt in range(NQ):
        for q4 in range(3):
            a(f"ds_write_b128 v4, {vr(OA+16*qt+4*q4,4)} offset:{L_ORED+qt*3072+q4*1024}")
    a("s_waitcnt lgkmcnt(0)")
    a("s_barrier")
    a(f"s_mul_i32 s9, s{sWV}, {2*3072}")
    a(f"v_add_u32 v4, s9, v{v16}")
    a(f"v_add_u32 v5, {2*8*3072}, v4")
    R = 16
    for rt in range(2):
        for src in range(4):
            for q4 in range(3):
                reg = 4 if src < 2 else 5
                a(f"ds_read_b128 {vr(R+rt*48+src*12+q4*4,4)}, v{reg} offset:{L_ORED+(src&1)*8*3072+rt*3072+q4*1024}")
        a("s_waitcnt lgkmcnt(0)")
    a(f"s_mul_i32 s10, s{sG}, 40")
    a(f"s_mul_i32 s11, s{sJ}, 5")
    a("s_add_u32 s10, s10, s11")
    a(f"s_add_u32 s11, s10, 4")
    a(f"s_add_u32 s10, s10, s{sWV}")
    a("s_lshl_b32 s10, s10, 11")
    a(f"s_add_u32 s10, s10, {WS_OF}")
    a("s_lshl_b32 s11, s11, 11")
    a(f"s_add_u32 s11, s11, {WS_OF}")
    a(f"s_lshr_b32 s12, s{sWV}, 1")
    a("s_lshl_b32 s12, s12, 9")
    a(f"s_and_b32 s13, s{sWV}, 1")
    a("s_lshl_b32 s13, s13, 3")
    a("s_add_u32 s12, s12, s13")
    a(f"v_add_u32 v6, s12, v{v16}")
    a(f"v_mov_b32 v7, {OOB}")
    a("v_cmp_gt_u32 vcc, 32, v0")
    a("s_nop 1")
    a("v_cndmask_b32 v6, v7, v6, vcc")
    for rt in range(2):
        b = R + rt * 48
        for i in range(12):
            a(f"v_add_f32 v{b+i}, v{b+i}, v{b+12+i}")
            a(f"v_add_f32 v{b+24+i}, v{b+24+i}, v{b+36+i}")
        for i in range(12):
            a(f"v_add_f32 v{b+i}, v{b+i}, v{b+24+i}")
        a(f"v_mov_b32 v8, v{b+8}")
        a(f"v_mov_b32 v9, v{b+8}")
        a("s_nop 1")
        a("v_permlane32_swap_b32 v8, v9")
        a("s_nop 1")
        a("v_rcp_f32 v9, v9")
        a("s_nop 0")
        for i in range(12):
            a(f"v_mul_f32 v{b+i}, v9, v{b+i}")
        for i in range(6):
            a(f"v_cvt_pk_bf16_f32 v{b+12+i}, v{b+2*i}, v{b+2*i+1}")
        a(f"buffer_store_dwordx4 {vr(b+12,4)}, v{v16}, {S4(SRD_WS)}, s10 offen offset:{rt*1024}")
        a(f"buffer_store_dwordx2 {vr(b+16,2)}, v6, {S4(SRD_WS)}, s11 offen offset:{rt*1024}")
    a(f"s_branch {END}")

def emit_f1(a, END):
    NS = 4
    XA, TA = 2, 6
    vGO, vUO = 10, 11
    FB = 16
    ACC = 64
    a(f"s_sub_u32 s9, s{sWV}, 4")
    a("s_lshl_b32 s6, s9, 3")
    a(f"s_add_u32 s6, s6, s{sJ}")
    a("s_lshl_b32 s10, s9, 14")
    a(f"s_add_u32 s10, s10, {L_RING}")
    a("v_lshlrev_b32 v12, 4, v0")
    a(f"s_mul_i32 s7, s{sG}, 81920")
    a(f"s_mul_i32 s8, s9, 20480")
    a("s_add_u32 s7, s7, s8")
    for n in range(20):
        a(f"s_add_u32 m0, s8, {L_XN + n*1024}")
        a("s_nop 0")
        a(f"buffer_load_dwordx4 v12, {S4(SRD_WS)}, s7 offen lds")
        a("s_add_u32 s7, s7, 1024")
    a("v_lshrrev_b32 v13, 3, v0")
    a("v_mul_u32_u24 v14, 3456, v13")
    a("v_bfe_u32 v15, v0, 1, 2")
    a("v_bfe_u32 v13, v0, 4, 1")
    a("v_xor_b32 v15, v15, v13")
    a("v_and_b32 v13, 1, v0")
    a("v_lshl_add_u32 v14, v13, 4, v14")
    a("s_lshl_b32 s7, s6, 7")
    a("v_add_u32 v14, s7, v14")
    a(f"v_lshl_add_u32 v{vGO}, v15, 5, v14")
    a("v_xor_b32 v15, 2, v15")
    a(f"v_lshl_add_u32 v{vUO}, v15, 5, v14")
    a("s_mov_b32 s11, 0")
    def dma(slot):
        for gu in range(2):
            for i in range(2):
                a(f"s_add_u32 m0, s10, {slot*4096 + gu*2048 + i*1024}")
                if i: a(f"s_add_u32 s12, s11, {8*3456}")
                else: a("s_nop 0")
                a(f"buffer_load_dwordx4 v{vUO if gu else vGO}, {S4(SRD_WU if gu else SRD_WG)}, {'s12' if i else 's11'} offen lds")
        a(f"s_add_u32 s11, s11, {16*3456}")
    a("s_cmp_ge_u32 s6, 27")
    a("s_cbranch_scc1 f1_idle")
    for n in range(NS):
        dma(n)
    emit_xn_read_addrs(a, XA, 12)
    a("v_lshrrev_b32 v12, 5, v0")
    a("v_bfe_u32 v13, v0, 2, 2")
    a("v_lshl_add_u32 v12, v12, 3, v13")
    a("v_lshlrev_b32 v12, 7, v12")
    a("v_bfe_u32 v13, v0, 1, 1")
    a("v_lshl_add_u32 v12, v13, 11, v12")
    a("v_and_b32 v14, 1, v0")
    a("v_lshl_add_u32 v12, v14, 4, v12")
    a("v_bfe_u32 v14, v0, 4, 1")
    a("v_lshl_add_u32 v12, v14, 3, v12")
    a("v_add_u32 v12, s10, v12")
    a("v_bfe_u32 v14, v0, 3, 1")
    a("v_lshl_or_b32 v14, v13, 1, v14")
    for t in range(4):
        a(f"v_xor_b32 v15, {t}, v14")
        a(f"v_lshl_add_u32 v{TA+t}, v15, 5, v12")
    for i in range(128):
        a(f"v_mov_b32 v{ACC+i}, 0")
    a(f"s_waitcnt vmcnt({4*NS})")
    a("s_barrier")
    def reads(u):
        fb = FB + (u & 1) * 24
        slot = u % NS
        a(f"ds_read_b128 {vr(fb+16,4)}, v{XA+(u&3)} offset:{L_XN+u*2048}")
        a(f"ds_read_b128 {vr(fb+20,4)}, v{XA+(u&3)} offset:{L_XN+u*2048+1024}")
        for t in range(4):
            a(f"ds_read_b64_tr_b16 {vr(fb+4*t,2)}, v{TA+t} offset:{slot*4096}")
            a(f"ds_read_b64_tr_b16 {vr(fb+4*t+2,2)}, v{TA+t} offset:{slot*4096+512}")
    a(f"s_waitcnt vmcnt({4*(NS-1)})")
    reads(0)
    a("s_mov_b32 s13, 10")
    a.lines.append(".p2align 6")
    a.label("f1_loop")
    for u in range(4):
        a(f"s_waitcnt vmcnt({4*(NS-2)})")
        reads(u + 1)
        a("s_waitcnt lgkmcnt(10)")
        fb = FB + (u & 1) * 24
        for t in range(4):
            for rt in range(2):
                mfma32(a, ACC + (t * 2 + rt) * 16, fb + 4 * t, fb + 16 + 4 * rt)
        dma(u % NS)
    for m in range(4):
        a(f"v_add_u32 v{XA+m}, 8192, v{XA+m}")
    a("s_sub_u32 s13, s13, 1")
    a("s_cmp_lg_u32 s13, 0")
    a("s_cbranch_scc1 f1_loop")
    a("v_lshlrev_b32 v12, 4, v0")
    a(f"s_mul_i32 s7, s{sG}, {108*2048}")
    a("s_lshl_b32 s8, s6, 13")
    a("s_add_u32 s7, s7, s8")
    a(f"s_add_u32 s7, s7, {WS_HF}")
    a("s_waitcnt vmcnt(0) lgkmcnt(0)")
    a("s_nop 7")
    T = 16
    nl2e = hex(f32bits(-1.4426950408889634))
    for t in range(4):
        for rt in range(2):
            ac = ACC + (t * 2 + rt) * 16
            idx = [(0, 4), (1, 5), (2, 6), (3, 7), (8, 12), (9, 13), (10, 14), (11, 15)]
            for e, (gi, ui) in enumerate(idx):
                a(f"v_mul_f32 v{T+e}, {nl2e}, v{ac+gi}")
            for e in range(8):
                a(f"v_exp_f32 v{T+e}, v{T+e}")
            for e in range(8):
                a(f"v_add_f32 v{T+e}, 1.0, v{T+e}")
            for e in range(8):
                a(f"v_rcp_f32 v{T+e}, v{T+e}")
            for e, (gi, ui) in enumerate(idx):
                a(f"v_mul_f32 v{ac+gi}, v{ac+gi}, v{ac+ui}")
            for e, (gi, ui) in enumerate(idx):
                a(f"v_mul_f32 v{T+e}, v{T+e}, v{ac+gi}")
            for e in range(4):
                a(f"v_cvt_pk_bf16_f32 v{ac+e}, v{T+2*e}, v{T+2*e+1}")
            a(f"buffer_store_dwordx4 {vr(ac,4)}, v12, {S4(SRD_WS)}, s7 offen offset:{(t&1)*2048+rt*1024}")
        if t == 1:
            a("s_add_u32 s7, s7, 4096")
    a(f"s_branch {END}")
    a.label("f1_idle")
    a("s_waitcnt vmcnt(0)")
    a("s_barrier")
    a(f"s_branch {END}")

def emit_main(a):
    END = "main_end"
    kernel_head(a, "main_kernel", END)
    srd(a, SRD_WS, P_WS, WS_SIZE)
    srd(a, SRD_WG, P_WG, D * F * 2)
    srd(a, SRD_WU, P_WU, D * F * 2)
    a(f"s_cmp_ge_u32 s{sWV}, 4")
    a("s_cbranch_scc1 main_g")
    a("s_barrier")
    emit_att(a, END)
    a.label("main_g")
    emit_f1(a, END)
    a.label(END)
    a("s_endpgm")

def emit_fin(a):
    END = "fin_end"
    kernel_head(a, "fin_kernel", END)
    srd(a, SRD_WS, P_WS, WS_SIZE)
    srd(a, SRD_WD, P_WD, F * D * 2)
    srd(a, SRD_WO, P_WO, D * D * 2)
    srd(a, SRD_X, P_X, S * D * 2)
    srd(a, SRD_OUT, P_OUT, S * D * 2)
    NS = 4
    WOFF = 2
    TA = 5
    TA5 = 8
    TA5b = 11
    vBX, vBY = 14, 15
    FB = 16
    BB = 40
    ACC = 80
    GG = 160
    RR = 180
    L_R = 0
    L_RED = 0
    a(f"s_and_b32 s6, s{sJ}, 1")
    a(f"s_lshr_b32 s7, s{sJ}, 1")
    a("s_mul_i32 s7, s7, 320")
    a("s_lshl_b32 s8, s6, 7")
    a("s_add_u32 s7, s7, s8")
    a(f"s_mul_i32 s10, s{sWV}, 30720")
    for i in range(3):
        a(f"v_add_u32 v12, {i*64}, v0")
        a("v_mul_u32_u24 v13, 0xaab, v12")
        a("v_lshrrev_b32 v13, 15, v13")
        a("v_mul_u32_u24 v14, 12, v13")
        a("v_sub_u32 v14, v12, v14")
        a("v_mul_u32_u24 v13, 1280, v13")
        a("v_lshl_add_u32 v13, v14, 4, v13")
        a(f"v_add_u32 v{WOFF+i}, s7, v13")
    a("s_lshl_b32 s12, s6, 6")
    a("s_add_u32 s13, s12, 64")
    a("s_cmp_eq_u32 s6, 0")
    a("s_cselect_b32 s14, 128, 0")
    a("v_bfe_u32 v12, v0, 2, 2")
    a("v_mul_u32_u24 v12, 192, v12")
    a("v_bfe_u32 v13, v0, 4, 1")
    a("v_lshl_add_u32 v12, v13, 5, v12")
    a("v_and_b32 v13, 3, v0")
    a("v_lshl_add_u32 v12, v13, 3, v12")
    a("v_add_u32 v12, s10, v12")
    a("v_lshrrev_b32 v13, 5, v0")
    a(f"v_mul_u32_u24 v14, {8*192}, v13")
    a(f"v_mul_u32_u24 v15, {4*192}, v13")
    a(f"v_mul_u32_u24 v16, {40*192}, v13")
    for t, sT in enumerate((12, 13, 14)):
        a(f"v_add3_u32 v{TA+t}, v12, v14, s{sT}")
    a("v_add_u32 v17, v12, v15")
    a("v_add_u32 v18, v12, v16")
    for t, sT in enumerate((12, 13, 14)):
        a(f"v_add_u32 v{TA5+t}, s{sT}, v17")
    for t, sT in enumerate((12, 13, 14)):
        a(f"v_add_u32 v{TA5b+t}, s{sT}, v18")
    a("v_lshlrev_b32 v17, 4, v0")
    a("s_lshl_b32 s15, s6, 10")
    a(f"v_add_u32 v{vBX}, s15, v17")
    a("s_xor_b32 s15, s15, 1024")
    a(f"v_add_u32 v{vBY}, s15, v17")
    a(f"s_mul_i32 s76, s{sWV}, 28")
    a(f"s_mul_i32 s11, s76, {16*1280}")
    a(f"s_mul_i32 s77, s{sG}, {108*2048}")
    a("s_lshl_b32 s78, s76, 11")
    a("s_add_u32 s77, s77, s78")
    a(f"s_add_u32 s77, s77, {WS_HF}")
    def dma(slot):
        for i in range(3):
            a(f"s_add_u32 m0, s10, {slot*3072 + i*1024}")
            a("s_nop 0")
            a(f"buffer_load_dwordx4 v{WOFF+i}, {S4(SRD_WD)}, s11 offen lds")
        a(f"s_add_u32 s11, s11, {16*1280}")
        a(f"buffer_load_dwordx4 {vr(BB+slot*8,4)}, v{vBX}, {S4(SRD_WS)}, s77 offen")
        a(f"buffer_load_dwordx4 {vr(BB+slot*8+4,4)}, v{vBY}, {S4(SRD_WS)}, s77 offen")
        a("s_add_u32 s77, s77, 2048")
    for n in range(NS):
        dma(n)
    for i in range(80):
        a(f"v_mov_b32 v{ACC+i}, 0")
    def reads(u):
        fb = FB + (u & 1) * 12
        slot = u % NS
        for t in range(3):
            a(f"ds_read_b64_tr_b16 {vr(fb+4*t,2)}, v{TA+t} offset:{slot*3072}")
            a(f"ds_read_b64_tr_b16 {vr(fb+4*t+2,2)}, v{TA+t} offset:{slot*3072+4*192}")
    def mm(fb, bx, by):
        mfma32(a, ACC + 0, fb + 0, bx)
        mfma32(a, ACC + 16, fb + 0, by)
        mfma32(a, ACC + 32, fb + 4, bx)
        mfma32(a, ACC + 48, fb + 4, by)
        mfma32(a, ACC + 64, fb + 8, bx)
    a(f"s_waitcnt vmcnt({5*(NS-1)})")
    reads(0)
    a(f"s_cmp_eq_u32 s{sWV}, 3")
    a("s_cselect_b32 s79, 6, 7")
    a.lines.append(".p2align 6")
    a.label("f2_loop")
    for u in range(4):
        a(f"s_waitcnt vmcnt({5*(NS-2)})")
        reads(u + 1)
        a("s_waitcnt lgkmcnt(6)")
        mm(FB + (u & 1) * 12, BB + (u % NS) * 8, BB + (u % NS) * 8 + 4)
        dma(u % NS)
    a("s_sub_u32 s79, s79, 1")
    a("s_cmp_lg_u32 s79, 0")
    a("s_cbranch_scc1 f2_loop")
    a("s_waitcnt vmcnt(0) lgkmcnt(0)")
    def reduce(dst):
        a("s_barrier")
        a("v_lshlrev_b32 v17, 4, v0")
        a(f"s_mul_i32 s15, s{sWV}, 20480")
        a("v_add_u32 v18, s15, v17")
        a("s_nop 4")
        for u in range(5):
            for q4 in range(4):
                a(f"ds_write_b128 v18, {vr(ACC+16*u+4*q4,4)} offset:{L_RED+u*4096+q4*1024}")
        a("s_waitcnt lgkmcnt(0)")
        a("s_barrier")
        a(f"s_lshl_b32 s15, s{sWV}, 10")
        a("v_add_u32 v18, s15, v17")
        a("v_add_u32 v19, 40960, v18")
        for src in range(4):
            for u in range(5):
                d = dst + 4 * u if src == 0 else RR + (src - 1) * 20 + 4 * u
                a(f"ds_read_b128 {vr(d,4)}, v{18 if src < 2 else 19} offset:{L_RED+(src&1)*20480+u*4096}")
            if src == 1: a("s_waitcnt lgkmcnt(0)")
        a("s_waitcnt lgkmcnt(0)")
        for i in range(20):
            a(f"v_add_f32 v{dst+i}, v{dst+i}, v{RR+i}")
            a(f"v_add_f32 v{RR+20+i}, v{RR+20+i}, v{RR+40+i}")
        for i in range(20):
            a(f"v_add_f32 v{dst+i}, v{dst+i}, v{RR+20+i}")
        a("s_barrier")
    reduce(GG)
    nl2e = hex(f32bits(-1.4426950408889634))
    for i in range(20):
        a(f"v_mul_f32 v{RR+i}, {nl2e}, v{GG+i}")
    for i in range(20):
        a(f"v_exp_f32 v{RR+i}, v{RR+i}")
    for i in range(20):
        a(f"v_add_f32 v{RR+i}, 1.0, v{RR+i}")
    for i in range(20):
        a(f"v_rcp_f32 v{RR+i}, v{RR+i}")
    a("s_nop 0")
    for i in range(20):
        a(f"v_mul_f32 v{GG+i}, v{GG+i}, v{RR+i}")
    a(f"s_mul_i32 s11, s{sWV}, {160*1280}")
    for n in range(10):
        for i in range(3):
            a(f"s_add_u32 m0, s10, {n*3072 + i*1024}")
            a("s_nop 0")
            a(f"buffer_load_dwordx4 v{WOFF+i}, {S4(SRD_WO)}, s11 offen lds")
        a(f"s_add_u32 s11, s11, {16*1280}")
    a(f"s_mul_i32 s77, s{sG}, {40*2048}")
    a(f"s_mul_i32 s78, s{sWV}, {10*2048}")
    a("s_add_u32 s77, s77, s78")
    a(f"s_add_u32 s77, s77, {WS_OF}")
    for i in range(80):
        a(f"v_mov_b32 v{ACC+i}, 0")
    OB = 180
    for sl in range(2):
        for s5 in range(5):
            a(f"buffer_load_dwordx4 {vr(OB+s5*8,4)}, v{vBX}, {S4(SRD_WS)}, s77 offen")
            a(f"buffer_load_dwordx4 {vr(OB+s5*8+4,4)}, v{vBY}, {S4(SRD_WS)}, s77 offen")
            a("s_add_u32 s77, s77, 2048")
        a("s_waitcnt vmcnt(0)")
        for s5 in range(5):
            fb = FB + (s5 & 1) * 12
            base = sl * 80 * 192
            for t in range(3):
                if s5 < 4:
                    a(f"ds_read_b64_tr_b16 {vr(fb+4*t,2)}, v{TA5+t} offset:{base+s5*20*192}")
                    a(f"ds_read_b64_tr_b16 {vr(fb+4*t+2,2)}, v{TA5+t} offset:{base+(s5*20+8)*192}")
                else:
                    a(f"ds_read_b64_tr_b16 {vr(fb+4*t,2)}, v{TA5b+t} offset:{base+16*192}")
                    a(f"ds_read_b64_tr_b16 {vr(fb+4*t+2,2)}, v{TA5b+t} offset:{base+36*192}")
            a("s_waitcnt lgkmcnt(0)")
            mm(fb, OB + s5 * 8, OB + s5 * 8 + 4)
    SS = 40
    a("s_nop 7")
    a("s_nop 7")
    reduce(SS)
    a("v_and_b32 v17, 31, v0")
    a("v_mul_u32_u24 v17, 1280, v17")
    a("v_lshrrev_b32 v18, 5, v0")
    a("v_lshl_add_u32 v17, v18, 3, v17")
    a(f"s_lshl_b32 s15, s{sWV}, 4")
    a("s_add_u32 s15, s15, s7")
    a(f"s_mul_i32 s76, s{sG}, {64*1280}")
    a("s_add_u32 s15, s15, s76")
    a(f"s_mul_i32 s76, s6, {32*1280}")
    a(f"s_sub_u32 s77, {32*1280}, s76")
    a("s_add_u32 s76, s76, s15")
    a("s_add_u32 s77, s77, s15")
    units = [(12, 76), (12, 77), (13, 76), (13, 77), (14, 76)]
    for u, (st, srow) in enumerate(units):
        a(f"s_add_u32 s{80+u}, s{st}, s{srow}")
        a(f"buffer_load_dwordx2 {vr(ACC+2*u,2)}, v17, {S4(SRD_X)}, s{80+u} offen")
    a("s_mov_b32 s78, 0xffff0000")
    a("s_waitcnt vmcnt(0)")
    for u in range(5):
        t = ACC + 16 + 4 * u
        a(f"v_lshlrev_b32 v{t}, 16, v{ACC+2*u}")
        a(f"v_and_b32 v{t+1}, s78, v{ACC+2*u}")
        a(f"v_lshlrev_b32 v{t+2}, 16, v{ACC+2*u+1}")
        a(f"v_and_b32 v{t+3}, s78, v{ACC+2*u+1}")
        for i in range(4):
            a(f"v_fmac_f32 v{t+i}, v{SS+4*u+i}, v{GG+4*u+i}")
        a(f"v_cvt_pk_bf16_f32 v{ACC+2*u}, v{t}, v{t+1}")
        a(f"v_cvt_pk_bf16_f32 v{ACC+2*u+1}, v{t+2}, v{t+3}")
        a(f"buffer_store_dwordx2 {vr(ACC+2*u,2)}, v17, {S4(SRD_OUT)}, s{80+u} offen")
    a.label(END)
    a("s_endpgm")

def build():
    a = Asm()
    hdr = open("cdna_kernels/" + NAME + ".s.ref").read().split("\n")
    head = [l for l in hdr if l.startswith(";") and "@launch" not in l and "Override launch" not in l and "grid=ceil" not in l]
    out = "\n".join(head) + "\n"
    out += f"; @launch kernel=pre_kernel grid=(256,1,1) block=(512,1,1) lds={LDS_TOTAL}\n"
    out += f"; @launch kernel=main_kernel grid=(256,1,1) block=(512,1,1) lds={LDS_TOTAL}\n"
    out += f"; @launch kernel=fin_kernel grid=(256,1,1) block=(256,1,1) lds={LDS_TOTAL}\n"
    out += '.amdgcn_target "amdgcn-amd-amdhsa--gfx950"\n.text\n'
    emit_pre(a); emit_main(a); emit_fin(a)
    probs = check_hazards(a.lines)
    for p in probs: print(p, file=sys.stderr)
    out += a.text()
    out += '.section .rodata,"a"\n'
    for k in ("pre_kernel", "main_kernel", "fin_kernel"):
        out += ".p2align 6\n" + kernel_desc(k)
    return out

if __name__ == "__main__":
    path = sys.argv[1] if len(sys.argv) > 1 else "cdna_kernels/" + NAME + ".s"
    open(path, "w").write(build())
```

```python
import sys, struct, os
from asmlib import *

NAME = "recurrent_scan__grouped_kv_mqa__swiglu_ffn__prompt"
KNAME = NAME + "_kernel"
S, D, H, DH, F = 2048, 640, 32, 20, 1728
WS_EPOCH = 0
FL_KV = 0x1000
FL_H = 0x2000
FL_O = 0x3000
WS_KV = 0x10000
WS_HF = 0x100000
WS_OF = 0x800000
WS_STAMP = 0xB00000
WS_SIZE = 0xC00000
KVT = 3584
OOB = 0x7f000000
POLL_CAP = 3000

OPT = dict(stamp=False, touch=True, aprio=0, gprio=0, eprio=2, mapping=3, codetouch=True, kvsleep=2, kvdelay=0, g2prio=0, kvprio=3)

def f32bits(x): return struct.unpack("<I", struct.pack("<f", x))[0]
QSCALE = (DH ** -0.5) * 1.4426950408889634
NL2E = hex(f32bits(-1.4426950408889634))

sWV, sG, sJ = 3, 4, 5
sTAG = 15
sIDX = 14
P_X, P_WQ, P_WK, P_WV, P_WO, P_BX, P_WG, P_WU, P_WD, P_OUT, P_DBG, P_WS = [16 + 2 * i for i in range(12)]
SRD_X, SRD_WQ, SRD_WKV, SRD_WO, SRD_WG, SRD_WU, SRD_WD, SRD_OUT, SRD_WS = 40, 44, 48, 52, 56, 60, 64, 68, 72
sE = 84
L_XN = 0
L_RING = 81920
L_QX = 147456
L_CNT = 159744
L_WKV = 134144
LDS_TOTAL = 163840
C_F1, C_A1, C_G1, C_G2, C_A2, C_BAD, C_KVD, C_QR = 0, 4, 8, 12, 16, 20, 24, 28
SRD_KVR = SRD_WKV
SRD_H = SRD_WQ

def S4(b): return f"s[{b}:{b+3}]"
def srd(a, dst, ptr, nbytes):
    a(f"s_mov_b32 s{dst}, s{ptr}")
    a(f"s_mov_b32 s{dst+1}, s{ptr+1}")
    a(f"s_mov_b32 s{dst+2}, {nbytes}")
    a(f"s_mov_b32 s{dst+3}, 0x20000")

NST = 14
def stamp(a, i):
    if not OPT["stamp"]: return
    a("s_memtime s[98:99]")
    a("s_waitcnt lgkmcnt(0)")
    a(f"s_mov_b32 s{STR[i]}, s98")
STR = [86+i for i in range(10)] + [26, 27, 36, 37]
def stamp_head(a):
    if not OPT["stamp"]: return
    for i in range(NST): a(f"s_mov_b32 s{STR[i]}, 0")
    a("s_memrealtime s[96:97]")
    stamp(a, 0)
def stamp_flush(a):
    if not OPT["stamp"]: return
    stamp(a, NST-1)
    a("s_memrealtime s[98:99]")
    a("s_waitcnt lgkmcnt(0)")
    a("s_mov_b32 s97, s98")
    a("s_lshl_b32 s98, s2, 3")
    a(f"s_add_u32 s98, s98, s{sWV}")
    a("s_lshl_b32 s98, s98, 6")
    a(f"s_add_u32 s98, s98, {WS_STAMP}")
    a("s_mov_b64 exec, 1")
    a("v_mov_b32 v0, 0")
    for i, r in enumerate(STR + [96, 97]): a(f"v_mov_b32 v{4+i}, s{r}")
    for q in range(4):
        a(f"buffer_store_dwordx4 v[{4+4*q}:{7+4*q}], v0, {S4(SRD_WS)}, s98 offen offset:{16*q}")

def mfma32(a, d, A, B, c=None):
    a(f"v_mfma_f32_32x32x16_bf16 {vr(d,16)}, {vr(A,4)}, {vr(B,4)}, {vr(d,16) if c is None else c}")
def mfma32x8(a, d, A, B, c=None):
    a(f"v_mfma_f32_32x32x8_bf16 {vr(d,16)}, {vr(A,2)}, {vr(B,2)}, {vr(d,16) if c is None else c}")
def mfma16(a, d, A, B, c=None):
    a(f"v_mfma_f32_16x16x32_bf16 {vr(d,4)}, {vr(A,4)}, {vr(B,4)}, {vr(d,4) if c is None else c}")

def interleave(a, main, side, per):
    k = 0
    for i, m in enumerate(main):
        m()
        for _ in range(per[i]):
            if k < len(side):
                side[k](); k += 1
    while k < len(side):
        side[k](); k += 1

def lds_signal(a, cnt, vt):
    a("s_waitcnt lgkmcnt(0)")
    a(f"v_mov_b32 v{vt}, {L_CNT + cnt}")
    a(f"v_mov_b32 v{vt+1}, 1")
    a("s_mov_b64 exec, 1")
    a(f"ds_add_u32 v{vt}, v{vt+1}")
    a("s_mov_b64 exec, -1")
def lds_wait(a, cnt, target, vt, st):
    L = a.newlabel("lw"); Dn = a.newlabel("lwd")
    a(f"v_mov_b32 v{vt}, {L_CNT + cnt}")
    a(f"s_mov_b32 s{st+1}, 0x40000")
    a.label(L)
    a(f"ds_read_b32 v{vt+1}, v{vt}")
    a("s_waitcnt lgkmcnt(0)")
    a(f"v_readfirstlane_b32 s{st}, v{vt+1}")
    a(f"s_cmp_ge_u32 s{st}, {target}")
    a(f"s_cbranch_scc1 {Dn}")
    a("s_sleep 1")
    a(f"s_sub_u32 s{st+1}, s{st+1}, 1")
    a(f"s_cmp_lg_u32 s{st+1}, 0")
    a(f"s_cbranch_scc1 {L}")
    a.label(Dn)

def flag_set(a, soff, vt):
    a(f"v_mov_b32 v{vt}, 0")
    a(f"v_mov_b32 v{vt+1}, s{sTAG}")
    a("s_waitcnt vmcnt(0)")
    a("s_mov_b64 exec, 1")
    a(f"buffer_store_dword v{vt+1}, v{vt}, {S4(SRD_WS)}, s{soff} offen sc1")
    a("s_mov_b64 exec, -1")
def flag_poll(a, vaddr, soff, vt, st, two=False, sleep=2):
    L = a.newlabel("fp"); Dn = a.newlabel("fpd")
    a(f"s_mov_b32 s{st}, {POLL_CAP}")
    a.label(L)
    if two:
        a(f"buffer_load_dwordx2 {vr(vt,2)}, v{vaddr}, {S4(SRD_WS)}, s{soff} offen sc1")
        a("s_waitcnt vmcnt(0)")
        a(f"v_xor_b32 v{vt}, s{sTAG}, v{vt}")
        a(f"v_xor_b32 v{vt+1}, s{sTAG}, v{vt+1}")
        a(f"v_or_b32 v{vt}, v{vt}, v{vt+1}")
        a(f"v_cmp_ne_u32 vcc, 0, v{vt}")
    else:
        a(f"buffer_load_dword v{vt}, v{vaddr}, {S4(SRD_WS)}, s{soff} offen sc1")
        a("s_waitcnt vmcnt(0)")
        a(f"v_cmp_ne_u32 vcc, s{sTAG}, v{vt}")
    a(f"s_cbranch_vccz {Dn}")
    a(f"s_sleep {sleep}")
    a(f"s_sub_u32 s{st}, s{st}, 1")
    a(f"s_cmp_lg_u32 s{st}, 0")
    a(f"s_cbranch_scc1 {L}")
    a.label(Dn)

def xn_read_addrs(a, XA, tmp):
    a(f"v_lshrrev_b32 v{tmp}, 5, v0")
    for m in range(4):
        a(f"v_or_b32 v{XA+m}, {2*m}, v{tmp}")
        a(f"v_xor_b32 v{XA+m}, v{XA+m}, v0")
        a(f"v_lshlrev_b32 v{XA+m}, 4, v{XA+m}")

NSQ = 10
def qslot(n): return (n >> 2) * 16384 + (n & 3) * 1024
vQO = 15

def emit_prologue(a):
    a("s_cmp_ge_u32 s2, 256")
    a("s_cbranch_scc1 k_exit")
    a("s_load_dwordx16 s[16:31], s[0:1], 0")
    a("s_load_dwordx8 s[32:39], s[0:1], 64")
    a("v_lshrrev_b32 v1, 6, v0")
    a("v_and_b32 v0, 63, v0")
    a(f"v_readfirstlane_b32 s{sWV}, v1")
    if OPT["mapping"] == 3:
        a("s_bfe_u32 s6, s2, 0x20001")
        a("s_lshl_b32 s6, s6, 3")
        a(f"s_bfe_u32 s{sIDX}, s2, 0x30003")
        a(f"s_add_u32 s{sG}, s6, s{sIDX}")
        a("s_and_b32 s6, s2, 1")
        a("s_lshl_b32 s6, s6, 2")
        a("s_lshr_b32 s7, s2, 6")
        a(f"s_add_u32 s{sJ}, s6, s7")
    else:
        raise ValueError
    a("v_lshrrev_b32 v10, 3, v0")
    a("v_and_b32 v11, 7, v0")
    a("v_mul_u32_u24 v12, 1280, v10")
    a("v_lshl_add_u32 v13, v11, 4, v12")
    a(f"s_lshl_b32 s6, s{sG}, 3")
    a(f"s_add_u32 s6, s6, s{sWV}")
    a(f"s_mul_i32 s6, s6, {8*1280}")
    a("s_waitcnt lgkmcnt(0)")
    srd(a, SRD_X, P_X, S * D * 2)
    XR, DD = 16, 64
    vP, vSum, vSq = 2, 4, 6
    a(f"buffer_load_ushort v{vP}, v12, {S4(SRD_X)}, s6 offen")
    for i in range(10):
        a(f"buffer_load_dwordx4 {vr(XR+4*i,4)}, v13, {S4(SRD_X)}, s6 offen offset:{i*128}")
    a(f"s_load_dword s{sE}, s[{P_WS}:{P_WS+1}], {WS_EPOCH}")
    stamp_head(a)
    srd(a, SRD_WQ, P_WQ, D * D * 2)
    srd(a, SRD_WS, P_WS, WS_SIZE)
    srd(a, SRD_WG, P_WG, D * F * 2)
    srd(a, SRD_WU, P_WU, D * F * 2)
    srd(a, SRD_WD, P_WD, F * D * 2)
    srd(a, SRD_WO, P_WO, D * D * 2)
    srd(a, SRD_OUT, P_OUT, S * D * 2)
    a(f"s_and_b32 s6, s{sJ}, 1")
    a("s_cmp_eq_u32 s6, 0")
    a(f"s_cselect_b32 s{SRD_WKV}, s{P_WK}, s{P_WV}")
    a(f"s_cselect_b32 s{SRD_WKV+1}, s{P_WK+1}, s{P_WV+1}")
    a(f"s_mov_b32 s{SRD_WKV+2}, {D*DH*2}")
    a(f"s_mov_b32 s{SRD_WKV+3}, 0x20000")
    a(f"v_mov_b32 v{vSum}, 0\nv_mov_b32 v{vSum+1}, 0\nv_mov_b32 v{vSq}, 0\nv_mov_b32 v{vSq+1}, 0")
    a("s_mov_b32 s12, 0xffff0000")
    a("v_lshlrev_b32 v14, 4, v0")
    a("v_lshrrev_b32 v8, 2, v0")
    a("v_mul_u32_u24 v8, 1280, v8")
    a("v_and_b32 v9, 3, v0")
    a(f"v_lshl_add_u32 v{vQO}, v9, 4, v8")
    a(f"s_mul_i32 s7, s{sJ}, 160")
    a(f"s_and_b32 s9, s{sWV}, 3")
    a("s_mul_i32 s8, s9, 40")
    a("s_add_u32 s7, s7, s8")
    a(f"v_add_u32 v{vQO}, s7, v{vQO}")
    a("v_cmp_eq_u32 vcc, 3, v9")
    a(f"v_mov_b32 v8, {OOB}")
    a("s_lshl_b32 s10, s9, 12")
    a(f"v_cndmask_b32 v{vQO}, v{vQO}, v8, vcc")
    a(f"s_add_u32 s10, s10, {L_RING}")
    NEXTRA = 10
    def extra():
        a(f"s_cmp_ge_u32 s{sWV}, 4")
        a("s_cbranch_scc1 pro_gdma")
        for n in range(7):
            a(f"s_add_u32 s7, s{sWV}, {4*n}")
            if n == 6: a("s_min_u32 s7, s7, 24")
            a("s_lshl_b32 s7, s7, 10")
            a(f"s_add_u32 m0, s7, {L_WKV}")
            a("s_nop 0")
            a(f"buffer_load_dwordx4 v14, {S4(SRD_WKV)}, s7 offen lds")
        a("v_lshl_add_u32 v8, v0, 3, s%d" % sIDX)
        a("v_mul_u32_u24 v9, 3456, v8")
        a("s_lshl_b32 s7, s9, 3")
        a(f"s_add_u32 s7, s7, s{sJ}")
        a("s_min_u32 s7, s7, 26")
        a("s_lshl_b32 s7, s7, 7")
        if OPT["touch"]:
            a(f"buffer_load_dword v56, v9, {S4(SRD_WG)}, s7 offen")
            a(f"buffer_load_dword v57, v9, {S4(SRD_WU)}, s7 offen")
            a("v_mul_u32_u24 v9, 1280, v8")
            a(f"s_mul_i32 s7, s{sJ}, 160")
            a("s_and_b32 s8, s9, 1")
            a("s_mul_i32 s8, s8, 156")
            a("s_add_u32 s7, s7, s8")
            a(f"s_add_u32 s7, s7, {160*1280}")
            a(f"buffer_load_dword v58, v9, {S4(SRD_WQ)}, s7 offen")
        else:
            a(f"v_mov_b32 v9, {OOB}")
            for i in range(3): a(f"buffer_load_dword v{56+i}, v9, {S4(SRD_WG)}, 0 offen")
        a("s_branch pro_ln2")
        a.label("pro_gdma")
        a("s_mov_b32 s11, 0")
        for n in range(NSQ):
            a(f"s_add_u32 m0, s10, {qslot(n)}")
            a("s_nop 0")
            a(f"buffer_load_dwordx4 v{vQO}, {S4(SRD_WQ)}, s11 offen lds")
            a(f"s_add_u32 s11, s11, {16*1280}")
        a.label("pro_ln2")
    a("s_waitcnt vmcnt(10)")
    stamp(a, 1)
    a(f"v_lshlrev_b32 v{vP}, 16, v{vP}")
    XPOS = 1
    for i in range(10):
        a(f"s_waitcnt vmcnt({9-i + (NEXTRA if i > XPOS else 0)})")
        for e in range(4):
            d = DD + 8 * i + 2 * e
            a(f"v_lshlrev_b32 v{d}, 16, v{XR+4*i+e}")
            a(f"v_and_b32 v{d+1}, s12, v{XR+4*i+e}")
        for e in range(4):
            d = DD + 8 * i + 2 * e
            a(f"v_pk_add_f32 {vr(d,2)}, {vr(d,2)}, {vr(vP,2)} op_sel_hi:[1,0] neg_lo:[0,1] neg_hi:[0,1]")
        for e in range(4):
            d = DD + 8 * i + 2 * e
            a(f"v_pk_add_f32 {vr(vSum,2)}, {vr(vSum,2)}, {vr(d,2)}")
            a(f"v_pk_fma_f32 {vr(vSq,2)}, {vr(d,2)}, {vr(d,2)}, {vr(vSq,2)}")
        if i == XPOS: extra()
    stamp(a, 2)
    a(f"v_add_f32 v{vSum}, v{vSum}, v{vSum+1}")
    a(f"v_add_f32 v{vSq}, v{vSq}, v{vSq+1}")
    for ctl in ("quad_perm:[1,0,3,2]", "quad_perm:[2,3,0,1]", "row_half_mirror"):
        a("s_nop 1")
        a(f"v_add_f32_dpp v{vSum}, v{vSum}, v{vSum} {ctl} row_mask:0xf bank_mask:0xf")
        a(f"v_add_f32_dpp v{vSq}, v{vSq}, v{vSq} {ctl} row_mask:0xf bank_mask:0xf")
    inv = f32bits(1.0 / D)
    a(f"v_mul_f32 v{vSum}, {hex(inv)}, v{vSum}")
    a(f"v_mul_f32 v{vSq}, {hex(inv)}, v{vSq}")
    a(f"v_fma_f32 v{vSq}, -v{vSum}, v{vSum}, v{vSq}")
    a(f"v_max_f32 v{vSq}, 0, v{vSq}")
    a(f"v_add_f32 v{vSq}, {hex(f32bits(1e-5))}, v{vSq}")
    a(f"v_rsq_f32 v{vSq}, v{vSq}")
    a("s_lshl_b32 s7, s9, 3")
    a(f"v_mul_f32 v{vSum}, v{vSum}, v{vSq}")
    a("v_add_u32 v8, s7, v10")
    a("v_and_b32 v9, 1, v11")
    a("v_lshl_add_u32 v8, v9, 5, v8")
    a("v_xor_b32 v8, v8, v11")
    a("v_lshlrev_b32 v8, 4, v8")
    a("v_lshrrev_b32 v9, 1, v11")
    a("v_lshl_add_u32 v8, v9, 11, v8")
    a(f"s_lshr_b32 s7, s{sWV}, 2")
    a("s_lshl_b32 s7, s7, 10")
    a("v_add_u32 v8, s7, v8")
    a("v_add_u32 v9, 0x10000, v8")
    for i in range(10):
        for e in range(4):
            d = DD + 8 * i + 2 * e
            a(f"v_pk_fma_f32 {vr(d,2)}, {vr(d,2)}, {vr(vSq,2)}, {vr(vSum,2)} op_sel_hi:[1,0,0] neg_lo:[0,0,1] neg_hi:[0,0,1]")
        for e in range(4):
            d = DD + 8 * i + 2 * e
            a(f"v_cvt_pk_bf16_f32 v{XR+4*i+e}, v{d}, v{d+1}")
        off = i * 8192
        a(f"ds_write_b128 v{8 if off < 65536 else 9}, {vr(XR+4*i,4)} offset:{L_XN + off % 65536}")
    a("v_lshlrev_b32 v8, 2, v0")
    a(f"v_add_u32 v8, {L_CNT}, v8")
    a("v_mov_b32 v9, 0")
    a("ds_write_b32 v8, v9")
    a(f"s_cmp_ge_u32 s{sWV}, 4")
    a("s_cbranch_scc1 pro_bar")
    a("s_waitcnt vmcnt(3)")
    a.label("pro_bar")
    a("s_waitcnt lgkmcnt(0)")
    a(f"s_add_u32 s{sE}, s{sE}, 1")
    a(f"s_mul_i32 s{sTAG}, s{sE}, 0x9e3779b1")
    a(f"s_or_b32 s{sTAG}, s{sTAG}, 1")
    stamp(a, 3)
    a("s_barrier")
    a(f"s_cmp_ge_u32 s{sWV}, 4")
    a("s_cbranch_scc1 role_g")

def emit_kv(a):
    vWA, vXE, vXO, vXE2, vXO2 = 2, 3, 4, 5, 6
    ACC = 96
    FB = 16
    a("v_lshrrev_b32 v10, 4, v0")
    a("v_bfe_u32 v11, v0, 2, 2")
    a("v_lshl_add_u32 v11, v10, 3, v11")
    a("v_mul_u32_u24 v11, 40, v11")
    a("v_and_b32 v12, 3, v0")
    a("v_lshlrev_b32 v12, 3, v12")
    a(f"s_cmp_eq_u32 s{sWV}, 0")
    a("s_cselect_b32 s7, -1, 0")
    a("s_cselect_b32 s8, 0, 32")
    a("v_and_b32 v12, s7, v12")
    a("v_add3_u32 v11, v11, v12, s8")
    a(f"v_add_u32 v{vWA}, {L_WKV}, v11")
    a(f"s_lshr_b32 s9, s{sJ}, 1")
    a("s_and_b32 s10, s9, 1")
    a("s_lshr_b32 s11, s9, 1")
    a("s_lshl_b32 s12, s10, 4")
    a("v_and_b32 v13, 15, v0")
    a("v_add_u32 v13, s12, v13")
    a("v_and_b32 v14, 1, v10")
    a("v_lshl_add_u32 v14, v14, 5, v13")
    a("v_xor_b32 v15, v14, v10")
    a("v_lshrrev_b32 v7, 1, v10")
    a("v_lshlrev_b32 v7, 11, v7")
    a("s_lshl_b32 s12, s11, 10")
    a("v_add_u32 v7, s12, v7")
    a(f"v_lshl_add_u32 v{vXE}, v15, 4, v7")
    a("v_xor_b32 v15, 4, v15")
    a(f"v_lshl_add_u32 v{vXO}, v15, 4, v7")
    a(f"v_add_u32 v{vXE2}, 0x10000, v{vXE}")
    a(f"v_add_u32 v{vXO2}, 0x10000, v{vXO}")
    def reads(b):
        for t in range(4):
            s = 4 * b + t
            fb = FB + (b & 1) * 32 + t * 8
            a(f"ds_read_b64_tr_b16 {vr(fb,2)}, v{vWA} offset:{s*1280}")
            a(f"ds_read_b64_tr_b16 {vr(fb+2,2)}, v{vWA} offset:{s*1280+160}")
            off = L_XN + s * 4096
            reg = (vXO if s & 1 else vXE) if off < 65536 else (vXO2 if s & 1 else vXE2)
            a(f"ds_read_b128 {vr(fb+4,4)}, v{reg} offset:{off % 65536}")
    a(f"s_and_b32 s6, s{sJ}, 1")
    a("s_cmp_eq_u32 s6, 1")
    a("s_cbranch_scc1 kv_v")
    for kv in (0, 1):
        if kv: a.label("kv_v")
        reads(0)
        for b in range(5):
            if b < 4:
                reads(b + 1)
                a("s_waitcnt lgkmcnt(12)")
            else:
                a("s_waitcnt lgkmcnt(0)")
            for t in range(4):
                fb = FB + (b & 1) * 32 + t * 8
                c = "0" if (b == 0 and t == 0) else None
                if kv == 0: mfma16(a, ACC, fb, fb + 4, c)
                else:       mfma16(a, ACC, fb + 4, fb, c)
        a(f"s_lshl_b32 s12, s{sG}, 1")
        a("s_add_u32 s12, s12, s11")
        a(f"s_mul_i32 s12, s12, {KVT}")
        a(f"s_add_u32 s12, s12, {WS_KV}")
        if kv == 0:
            a("v_lshrrev_b32 v2, 1, v10")
            a("v_lshl_add_u32 v2, v2, 5, v13")
            a("v_lshlrev_b32 v2, 4, v2")
            a("v_and_b32 v3, 1, v10")
            a("v_lshl_add_u32 v2, v3, 3, v2")
            a("v_lshl_add_u32 v3, v10, 5, v13")
            a("v_lshlrev_b32 v3, 3, v3")
            a("v_add_u32 v3, 3072, v3")
            a(f"v_mov_b32 v4, {OOB}")
            a("v_cmp_lt_u32 vcc, 1, v10")
            a("s_nop 1")
            a("v_cndmask_b32 v3, v3, v4, vcc")
            a(f"v_cvt_pk_bf16_f32 v6, v{ACC}, v{ACC+1}")
            a(f"v_cvt_pk_bf16_f32 v7, v{ACC+2}, v{ACC+3}")
            a(f"s_cmp_eq_u32 s{sWV}, 0")
            a("s_cbranch_scc1 kv_store")
            a("v_mov_b32 v2, v3")
            a("v_cmp_eq_u32 vcc, 1, v10")
            a("v_mov_b32 v4, 0x3f803f80")
            a("v_mov_b32 v5, 0x00003f80")
            a("v_cndmask_b32 v6, v6, v4, vcc")
            a("v_cndmask_b32 v7, v7, v5, vcc")
            a("s_branch kv_store")
        else:
            a("v_and_b32 v2, 15, v0")
            a(f"s_lshl_b32 s13, s{sWV}, 4")
            a("v_add_u32 v3, s13, v2")
            a("v_and_b32 v4, 1, v10")
            a("v_lshl_add_u32 v3, v4, 5, v3")
            a("v_lshlrev_b32 v3, 4, v3")
            a("v_lshrrev_b32 v4, 1, v10")
            a("v_lshl_add_u32 v3, v4, 3, v3")
            a("s_lshl_b32 s13, s10, 10")
            a("s_add_u32 s13, s13, 1024")
            a("v_add_u32 v3, s13, v3")
            a(f"v_cvt_pk_bf16_f32 v6, v{ACC}, v{ACC+1}")
            a(f"v_cvt_pk_bf16_f32 v7, v{ACC+2}, v{ACC+3}")
            a(f"s_cmp_eq_u32 s{sWV}, 0")
            a("s_cbranch_scc1 kv_vst")
            a("v_cmp_eq_u32 vcc, 4, v2")
            a("v_mov_b32 v4, 0x3f803f80")
            a("v_mov_b32 v5, 0")
            a("v_cndmask_b32 v4, v5, v4, vcc")
            a("v_cmp_lt_u32 vcc, 3, v2")
            a("s_nop 1")
            a("v_cndmask_b32 v6, v6, v4, vcc")
            a("v_cndmask_b32 v7, v7, v4, vcc")
            a.label("kv_vst")
            a("v_mov_b32 v2, v3")
    a.label("kv_store")
    a(f"buffer_store_dwordx2 v[6:7], v2, {S4(SRD_WS)}, s12 offen sc1")
    lds_signal(a, C_KVD, 8)
    a(f"s_lshl_b32 s12, s{sG}, 3")
    a(f"s_add_u32 s12, s12, s{sJ}")
    a("s_lshl_b32 s12, s12, 1")
    a(f"s_add_u32 s12, s12, s{sWV}")
    a("s_lshl_b32 s12, s12, 2")
    a(f"s_add_u32 s12, s12, {FL_KV}")
    flag_set(a, 12, 8)

def emit_late_touch(a):
    if not OPT["touch"]: return
    a("s_lshr_b32 s6, s2, 3")
    a(f"s_cmp_eq_u32 s{sWV}, 3")
    a("s_cbranch_scc1 lt_3")
    a("v_and_b32 v8, 15, v0")
    a(f"v_lshl_add_u32 v8, v8, 3, s{sIDX}")
    a("v_mul_u32_u24 v8, 3456, v8")
    a("v_lshrrev_b32 v9, 4, v0")
    a("v_lshlrev_b32 v9, 3, v9")
    a(f"v_add_u32 v9, s{sJ}, v9")
    a("v_min_u32 v9, 26, v9")
    a("v_lshl_add_u32 v8, v9, 7, v8")
    a(f"s_mov_b32 s7, {512*3456}")
    a(f"buffer_load_dword v56, v8, {S4(SRD_WG)}, s7 offen")
    a(f"buffer_load_dword v57, v8, {S4(SRD_WU)}, s7 offen")
    for i in range(2):
        a(f"v_add_u32 v8, {64*i}, v0")
        a("v_min_u32 v8, 99, v8")
        a("v_mul_u32_u24 v9, 0x3334, v8")
        a("v_lshrrev_b32 v9, 16, v9")
        a("v_mul_u32_u24 v10, 5, v9")
        a("v_sub_u32 v10, v8, v10")
        a("v_mul_u32_u24 v9, 1280, v9")
        a("v_lshl_add_u32 v9, v10, 7, v9")
        a(f"s_mul_i32 s7, s6, {20*1280}")
        a("s_and_b32 s8, s2, 1")
        a("s_mul_i32 s8, s8, 640")
        a("s_add_u32 s7, s7, s8")
        a(f"buffer_load_dword v{58+i}, v9, {S4(SRD_WO)}, s7 offen")
    a("s_branch lt_done")
    a.label("lt_3")
    for i in range(5):
        a(f"v_add_u32 v8, {64*i}, v0")
        a("v_min_u32 v8, 269, v8")
        a("v_mul_u32_u24 v9, 0x3334, v8")
        a("v_lshrrev_b32 v9, 16, v9")
        a("v_mul_u32_u24 v10, 5, v9")
        a("v_sub_u32 v10, v8, v10")
        a("v_mul_u32_u24 v9, 1280, v9")
        a("v_lshl_add_u32 v9, v10, 7, v9")
        a(f"s_mul_i32 s7, s6, {54*1280}")
        a("s_and_b32 s8, s2, 1")
        a("s_mul_i32 s8, s8, 640")
        a("s_add_u32 s7, s7, s8")
        a(f"buffer_load_dword v{56+i}, v9, {S4(SRD_WD)}, s7 offen")
    a.label("lt_done")

def emit_role_a(a):
    NQ = 8
    OA, QF, SB, KB = 128, 80, 48, 16
    v16, v8 = 2, 3
    a(f"s_cmp_ge_u32 s{sWV}, 2")
    a("s_cbranch_scc1 a_touch")
    a(f"s_setprio {OPT['kvprio']}")
    emit_kv(a)
    a("s_setprio 0")
    a("s_branch a_join")
    a.label("a_touch")
    emit_late_touch(a)
    a.label("a_join")
    stamp(a, 4)
    a(f"s_mov_b32 s{SRD_KVR}, s{P_WS}")
    a(f"s_mov_b32 s{SRD_KVR+1}, s{P_WS+1}")
    a(f"s_mul_i32 s{SRD_KVR+2}, s{sWV}, {16*KVT}")
    a(f"s_add_u32 s{SRD_KVR+2}, s{SRD_KVR+2}, {WS_KV + 16*KVT}")
    a(f"v_lshlrev_b32 v{v16}, 4, v0")
    a(f"v_lshlrev_b32 v{v8}, 3, v0")
    a("s_waitcnt vmcnt(0)")
    for i in range(NQ * 16): a(f"v_mov_b32 v{OA+i}, 0")
    for i in range(16): a(f"v_mov_b32 v{SB+16+i}, 0")
    for i in range(16): a(f"v_mov_b32 v{KB+16+i}, 0")
    a(f"s_lshl_b32 s6, s{sWV}, 9")
    a(f"s_add_u32 s6, s6, {FL_KV}")
    if OPT["kvdelay"]: lds_wait(a, C_QR, 4, 6, 8)
    flag_poll(a, v8, 6, 4, 7, two=True, sleep=OPT["kvsleep"])
    stamp(a, 5)
    a(f"s_mul_i32 s7, s{sWV}, {16*KVT}")
    a(f"s_add_u32 s7, s7, {WS_KV}")
    def kvload(b):
        kb = KB + 16 * b
        a(f"buffer_load_dwordx4 {vr(kb,4)}, v{v16}, {S4(SRD_KVR)}, s7 offen sc1")
        a(f"buffer_load_dwordx2 {vr(kb+12,2)}, v{v8}, {S4(SRD_KVR)}, s7 offen offset:3072 sc1")
        a(f"buffer_load_dwordx4 {vr(kb+4,4)}, v{v16}, {S4(SRD_KVR)}, s7 offen offset:1024 sc1")
        a(f"buffer_load_dwordx4 {vr(kb+8,4)}, v{v16}, {S4(SRD_KVR)}, s7 offen offset:2048 sc1")
        a(f"s_add_u32 s7, s7, {KVT}")
    kvload(0)
    if OPT["touch"]:
        a(f"s_mul_i32 s8, s{sIDX}, {56*128}")
        a("s_add_u32 s8, s8, s7")
        a(f"s_sub_u32 s8, s8, {KVT}")
        a("v_min_u32 v4, 55, v0")
        a("v_lshlrev_b32 v4, 7, v4")
        a(f"buffer_load_dword v5, v4, {S4(SRD_KVR)}, s8 offen sc1")
    lds_wait(a, C_QR, 4, 6, 8)
    for d in range(4):
        a(f"s_add_u32 s8, s{sWV}, {d}")
        a("s_and_b32 s8, s8, 3")
        a("s_mul_i32 s8, s8, 3072")
        a(f"s_add_u32 s8, s8, {L_QX}")
        a(f"v_add_u32 v6, s8, v{v16}")
        a(f"v_add_u32 v7, s8, v{v8}")
        for rt in range(2):
            t = 2 * d + rt
            a(f"ds_read_b128 {vr(QF+4*t,4)}, v6 offset:{rt*1536}")
            a(f"ds_read_b64 {vr(QF+32+2*t,2)}, v7 offset:{rt*1536+1024}")
        if d == 2: a("s_waitcnt lgkmcnt(4)")
    if OPT["aprio"]: a(f"s_setprio {OPT['aprio']}")
    a("s_waitcnt vmcnt(0) lgkmcnt(0)")
    def qk0(n):
        b = (n // NQ) & 1; qt = n % NQ
        mfma32(a, SB + 16 * (n & 1), KB + 16 * b, QF + 4 * qt, "0")
    def qk1(n):
        b = (n // NQ) & 1; qt = n % NQ
        mfma32x8(a, SB + 16 * (n & 1), KB + 16 * b + 12, QF + 32 + 2 * qt)
    def pv(n, t):
        b = (n // NQ) & 1; qt = n % NQ
        mfma32(a, OA + 16 * qt, KB + 16 * b + 4 + 4 * t, SB + 16 * (n & 1) + 4 * t)
    stamp(a, 6)
    qk0(0); qk1(0)
    a("s_nop 7"); a("s_nop 3")
    a("s_mov_b32 s8, 8")
    a.lines.append(".p2align 6")
    a.label("att_loop")
    for n in range(2 * NQ):
        s = SB + 16 * (n & 1)
        def e(i): a(f"v_exp_f32 v{s+i}, v{s+i}")
        def c(i): a(f"v_cvt_pk_bf16_f32 v{s+i}, v{s+2*i}, v{s+2*i+1}")
        e(0); e(1)
        pv((n - 1) % (2 * NQ), 1)
        if n % NQ == 0:
            kvload(((n // NQ) + 1) & 1)
        e(2); e(3); c(0); c(1); e(4)
        if (n + 1) % NQ == 0:
            a("s_waitcnt vmcnt(0)")
        qk0(n + 1)
        e(5); e(6); e(7); c(2); c(3); e(8)
        qk1(n + 1)
        e(9); e(10); e(11); c(4); c(5); e(12)
        pv(n, 0)
        e(13); e(14); e(15); c(6); c(7)
    a("s_sub_u32 s8, s8, 1")
    a("s_cmp_lg_u32 s8, 0")
    a("s_cbranch_scc1 att_loop")
    pv(2 * NQ - 1, 1)
    stamp(a, 7)
    lds_wait(a, C_F1, 4, 4, 8)
    a(f"s_mul_i32 s9, s{sWV}, {6*3072}")
    a(f"v_add_u32 v4, s9, v{v16}")
    for t in range(2, 8):
        for q4 in range(3):
            a(f"ds_write_b128 v4, {vr(OA+16*t+4*q4,4)} offset:{(t-2)*3072+q4*1024}")
    lds_signal(a, C_A1, 6)
    stamp(a, 8)
    a(f"s_mul_i32 s10, s{sG}, 40")
    a(f"s_mul_i32 s11, s{sJ}, 5")
    a("s_add_u32 s10, s10, s11")
    a("s_add_u32 s11, s10, 4")
    a(f"s_add_u32 s10, s10, s{sWV}")
    a("s_lshl_b32 s10, s10, 11")
    a(f"s_add_u32 s10, s10, {WS_OF}")
    a("s_lshl_b32 s11, s11, 11")
    a(f"s_add_u32 s11, s11, {WS_OF}")
    a(f"s_lshr_b32 s12, s{sWV}, 1")
    a("s_lshl_b32 s12, s12, 9")
    a(f"s_and_b32 s13, s{sWV}, 1")
    a("s_lshl_b32 s13, s13, 3")
    a("s_add_u32 s12, s12, s13")
    a(f"v_add_u32 v10, s12, v{v16}")
    a(f"v_mov_b32 v11, {OOB}")
    a("v_cmp_gt_u32 vcc, 32, v0")
    for d in range(1, 4):
        a(f"s_sub_u32 s9, s{sWV}, {d}")
        a("s_and_b32 s9, s9, 3")
        a(f"s_mul_i32 s9, s9, {6*3072}")
        a(f"v_add_u32 v{11+d}, s9, v{v16}")
    a("v_cndmask_b32 v10, v11, v10, vcc")
    lds_wait(a, C_A1, 4, 4, 8)
    stamp(a, 9)
    R = 16
    for rt in range(2):
        for d in range(1, 4):
            for q4 in range(3):
                a(f"ds_read_b128 {vr(R+rt*36+(d-1)*12+q4*4,4)}, v{11+d} offset:{(2*(d-1)+rt)*3072+q4*1024}")
    for rt in range(2):
        a(f"s_waitcnt lgkmcnt({9 if rt == 0 else 0})")
        b = R + rt * 36; o = OA + 16 * rt
        for i in range(12):
            a(f"v_add_f32 v{o+i}, v{o+i}, v{b+i}")
            a(f"v_add_f32 v{b+12+i}, v{b+12+i}, v{b+24+i}")
        for i in range(12):
            a(f"v_add_f32 v{o+i}, v{o+i}, v{b+12+i}")
        a(f"v_mov_b32 v8, v{o+8}")
        a(f"v_mov_b32 v9, v{o+8}")
        a("s_nop 1")
        a("v_permlane32_swap_b32 v8, v9")
        a("s_nop 1")
        a("v_rcp_f32 v9, v9")
        a("s_nop 0")
        for i in range(12):
            a(f"v_mul_f32 v{o+i}, v9, v{o+i}")
        for i in range(6):
            a(f"v_cvt_pk_bf16_f32 v{b+i}, v{o+2*i}, v{o+2*i+1}")
        a(f"buffer_store_dwordx4 {vr(b,4)}, v{v16}, {S4(SRD_WS)}, s10 offen offset:{rt*1024} sc1")
        a(f"buffer_store_dwordx2 {vr(b+4,2)}, v10, {S4(SRD_WS)}, s11 offen offset:{rt*1024} sc1")
    a(f"s_lshl_b32 s12, s{sG}, 5")
    a(f"s_lshl_b32 s13, s{sJ}, 2")
    a("s_add_u32 s12, s12, s13")
    a(f"s_add_u32 s12, s12, s{sWV}")
    a("s_lshl_b32 s12, s12, 2")
    a(f"s_add_u32 s12, s12, {FL_O}")
    stamp(a, 10)
    flag_set(a, 12, 8)
    stamp(a, 11)
    a(f"s_or_b32 s12, s2, s{sWV}")
    a("s_cmp_lg_u32 s12, 0")
    a("s_cbranch_scc1 k_end")
    a(f"v_mov_b32 v8, {WS_EPOCH}")
    a(f"v_mov_b32 v9, s{sE}")
    a("s_mov_b64 exec, 1")
    a(f"buffer_store_dword v9, v8, {S4(SRD_WS)}, 0 offen sc1")
    a("s_mov_b64 exec, -1")
    a("s_branch k_end")

def emit_role_g(a):
    a.label("role_g")
    a(f"s_setprio {OPT['eprio']}")
    XA, vTQ = 2, 6
    TA = 6
    vGO, vUO = 10, 11
    QACC, FB = 64, 16
    xn_read_addrs(a, XA, 7)
    a("v_lshrrev_b32 v8, 5, v0")
    a("v_bfe_u32 v9, v0, 2, 2")
    a("v_lshl_add_u32 v8, v8, 3, v9")
    a("v_lshlrev_b32 v8, 6, v8")
    a("v_and_b32 v9, 1, v0")
    a("v_lshlrev_b32 v9, 1, v9")
    a("v_bfe_u32 v10, v0, 1, 1")
    a("v_or_b32 v9, v9, v10")
    a("v_and_b32 v10, 3, v0")
    a("v_cmp_ne_u32 vcc, 0, v10")
    a("v_mov_b32 v10, 4")
    a("v_mov_b32 v11, 6")
    a("v_cndmask_b32 v10, v10, v11, vcc")
    a("v_and_b32 v11, 16, v0")
    a("v_cmp_ne_u32 vcc, 0, v11")
    a("s_nop 1")
    a("v_cndmask_b32 v9, v9, v10, vcc")
    a("v_lshl_add_u32 v8, v9, 3, v8")
    a(f"v_add_u32 v{vTQ}, s10, v8")
    a("s_lshl_b32 s6, s9, 3")
    a(f"s_add_u32 s6, s6, s{sJ}")
    a("v_lshrrev_b32 v13, 3, v0")
    a("v_mul_u32_u24 v14, 3456, v13")
    a("v_bfe_u32 v12, v0, 1, 2")
    a("v_bfe_u32 v13, v0, 4, 1")
    a("v_xor_b32 v12, v12, v13")
    a("v_and_b32 v13, 1, v0")
    a("v_lshl_add_u32 v14, v13, 4, v14")
    a("s_lshl_b32 s7, s6, 7")
    a("s_cmp_ge_u32 s6, 27")
    a(f"s_cselect_b32 s7, {OOB}, s7")
    a("v_add_u32 v14, s7, v14")
    a(f"v_lshl_add_u32 v{vGO}, v12, 5, v14")
    a("v_xor_b32 v12, 2, v12")
    a(f"v_lshl_add_u32 v{vUO}, v12, 5, v14")
    a("s_mov_b32 s13, 0")
    def f1_dma_ops(slot):
        ops = []
        for gu in range(2):
            for i in range(2):
                def op(gu=gu, i=i):
                    a(f"s_add_u32 m0, s10, {slot*16384 + gu*2048 + i*1024}")
                    if i: a(f"s_add_u32 s12, s13, {8*3456}")
                    else: a("s_nop 0")
                    a(f"buffer_load_dwordx4 v{vUO if gu else vGO}, {S4(SRD_WU if gu else SRD_WG)}, {'s12' if i else 's13'} offen lds")
                    if gu == 1 and i == 1: a(f"s_add_u32 s13, s13, {16*3456}")
                ops.append(op)
        return ops
    XH = 12
    XHr = [12, 13, 14, 1]
    for m in range(4): a(f"v_add_u32 v{XHr[m]}, 0x10000, v{XA+m}")
    def qreads(u):
        fb = FB + (u & 1) * 12
        off = L_XN + u * 2048
        xr = XA + (u & 3) if off < 65536 else XHr[u & 3]
        a(f"ds_read_b64_tr_b16 {vr(fb,2)}, v{vTQ} offset:{qslot(u % NSQ)}")
        a(f"ds_read_b64_tr_b16 {vr(fb+2,2)}, v{vTQ} offset:{qslot(u % NSQ)+256}")
        a(f"ds_read_b128 {vr(fb+4,4)}, v{xr} offset:{off % 65536}")
        a(f"ds_read_b128 {vr(fb+8,4)}, v{xr} offset:{off % 65536 + 1024}")
    out = [("q", n) for n in range(NSQ)]
    def wait_for(tag):
        if tag in out:
            idx = out.index(tag)
            n = len(out) - 1 - idx
            a(f"s_waitcnt vmcnt({n})")
            del out[:idx + 1]
    wait_for(("q", 0))
    qreads(0)
    for u in range(40):
        if u + 1 < 40:
            wait_for(("q", u + 1))
            qreads(u + 1)
            a("s_waitcnt lgkmcnt(4)")
        else:
            a("s_waitcnt lgkmcnt(0)")
        fb = FB + (u & 1) * 12
        mfma32(a, QACC, fb, fb + 4, "0" if u == 0 else None)
        if u + NSQ < 40:
            a(f"s_add_u32 m0, s10, {qslot(u % NSQ)}")
            a("s_nop 0")
            a(f"buffer_load_dwordx4 v{vQO}, {S4(SRD_WQ)}, s11 offen lds")
            a(f"s_add_u32 s11, s11, {16*1280}")
            out.append(("q", u + NSQ))
        mfma32(a, QACC + 16, fb, fb + 8, "0" if u == 0 else None)
        fs = {33: 0, 37: 1, 39: 2}.get(u)
        if fs is not None:
            for k, op in enumerate(f1_dma_ops(fs)):
                op(); out.append(("f", fs, k))
    stamp(a, 4)
    a(f"v_mov_b32 v8, {hex(f32bits(QSCALE))}")
    a("v_lshlrev_b32 v12, 4, v0")
    a("v_lshlrev_b32 v13, 3, v0")
    a("s_mul_i32 s7, s9, 3072")
    a(f"s_add_u32 s7, s7, {L_QX}")
    a("v_add_u32 v12, s7, v12")
    a("v_add_u32 v13, s7, v13")
    lds_wait(a, C_KVD, 2, 40, 7)
    for op in f1_dma_ops(3): op()
    for rt in range(2):
        ac = QACC + 16 * rt
        for i in range(12):
            a(f"v_mul_f32 v{ac+i}, v8, v{ac+i}")
        o = FB + 8 * rt
        for i in range(6):
            a(f"v_cvt_pk_bf16_f32 v{o+i}, v{ac+2*i}, v{ac+2*i+1}")
        a(f"ds_write_b128 v12, {vr(o,4)} offset:{rt*1536}")
        a(f"ds_write_b64 v13, {vr(o+4,2)} offset:{rt*1536+1024}")
    lds_signal(a, C_QR, 40)
    ACC = 64
    a("s_cmp_ge_u32 s6, 27")
    a("s_cbranch_scc1 f1_skip")
    a("v_lshrrev_b32 v12, 5, v0")
    a("v_bfe_u32 v13, v0, 2, 2")
    a("v_lshl_add_u32 v12, v12, 3, v13")
    a("v_lshlrev_b32 v12, 7, v12")
    a("v_bfe_u32 v13, v0, 1, 1")
    a("v_lshl_add_u32 v12, v13, 11, v12")
    a("v_and_b32 v14, 1, v0")
    a("v_lshl_add_u32 v12, v14, 4, v12")
    a("v_bfe_u32 v14, v0, 4, 1")
    a("v_lshl_add_u32 v12, v14, 3, v12")
    a("v_add_u32 v12, s10, v12")
    a("v_bfe_u32 v14, v0, 3, 1")
    a("v_lshl_or_b32 v14, v13, 1, v14")
    for t in range(4):
        a(f"v_xor_b32 v15, {t}, v14")
        a(f"v_lshl_add_u32 v{TA+t}, v15, 5, v12")
    for i in range(128): a(f"v_mov_b32 v{ACC+i}, 0")
    def f1_read_ops(u):
        fb = FB + (u & 1) * 24
        slot = u % 4
        ops = [lambda: a(f"ds_read_b128 {vr(fb+16,4)}, v{XA+(u&3)} offset:{L_XN+u*2048}"),
               lambda: a(f"ds_read_b128 {vr(fb+20,4)}, v{XA+(u&3)} offset:{L_XN+u*2048+1024}")]
        for t in range(4):
            ops.append(lambda t=t: a(f"ds_read_b64_tr_b16 {vr(fb+4*t,2)}, v{TA+t} offset:{slot*16384}"))
            ops.append(lambda t=t: a(f"ds_read_b64_tr_b16 {vr(fb+4*t+2,2)}, v{TA+t} offset:{slot*16384+512}"))
        return ops
    a("s_waitcnt vmcnt(12)")
    for op in f1_read_ops(0): op()
    a("s_mov_b32 s8, 10")
    stamp(a, 5)
    a(f"s_setprio {OPT['gprio']}")
    a.lines.append(".p2align 6")
    a.label("f1_loop")
    for u in range(4):
        a("s_waitcnt vmcnt(8) lgkmcnt(0)")
        fb = FB + (u & 1) * 24
        mm = [(lambda t=t, rt=rt: mfma32(a, ACC + (t * 2 + rt) * 16, fb + 4 * t, fb + 16 + 4 * rt)) for t in range(4) for rt in range(2)]
        side = f1_read_ops(u + 1) + f1_dma_ops(u % 4)
        interleave(a, mm, side, [3, 3, 2, 2, 1, 1, 1, 1])
    for m in range(4): a(f"v_add_u32 v{XA+m}, 8192, v{XA+m}")
    a("s_sub_u32 s8, s8, 1")
    a("s_cmp_lg_u32 s8, 0")
    a("s_cbranch_scc1 f1_loop")
    a.label("f1_skip")
    a(f"s_setprio {OPT['eprio']}")
    stamp(a, 6)
    WOFF = 2
    TB = 6
    vBX, vBY = 9, 10
    a("s_waitcnt vmcnt(0) lgkmcnt(0)")
    lds_signal(a, C_F1, 12)
    a(f"s_and_b32 s76, s{sJ}, 1")
    a(f"s_lshr_b32 s77, s{sJ}, 1")
    a("s_mul_i32 s77, s77, 320")
    a("s_lshl_b32 s8, s76, 7")
    a("s_add_u32 s77, s77, s8")
    for i in range(4):
        a(f"v_add_u32 v12, {i*64}, v0")
        a("v_mul_u32_u24 v13, 0xaab, v12")
        a("v_lshrrev_b32 v13, 15, v13")
        a("v_mul_u32_u24 v14, 12, v13")
        a("v_sub_u32 v14, v12, v14")
        a("v_mul_u32_u24 v13, 1280, v13")
        a("v_lshl_add_u32 v13, v14, 4, v13")
        a(f"v_add_u32 v{WOFF+i}, s77, v13")
    a(f"s_mul_i32 s78, s9, 28")
    a(f"s_mul_i32 s11, s78, {16*1280}")
    def wd_dma_ops(slot):
        ops = []
        for i in range(3):
            def op(i=i):
                a(f"s_add_u32 m0, s10, {slot*16384 + i*1024}")
                a("s_nop 0")
                a(f"buffer_load_dwordx4 v{WOFF+i}, {S4(SRD_WD)}, s11 offen lds")
                if i == 2: a(f"s_add_u32 s11, s11, {16*1280}")
            ops.append(op)
        return ops
    for n in range(4):
        for op in wd_dma_ops(n): op()
    a("s_cmp_ge_u32 s6, 27")
    a("s_cbranch_scc1 f1_epi_skip")
    a("v_lshlrev_b32 v12, 4, v0")
    a(f"s_mul_i32 s7, s{sG}, {108*2048}")
    a("s_lshl_b32 s8, s6, 13")
    a("s_add_u32 s7, s7, s8")
    a(f"s_add_u32 s7, s7, {WS_HF}")
    T = 16
    idx = [(0, 4), (1, 5), (2, 6), (3, 7), (8, 12), (9, 13), (10, 14), (11, 15)]
    for t in range(4):
        for rt in range(2):
            ac = ACC + (t * 2 + rt) * 16
            for e, (gi, ui) in enumerate(idx): a(f"v_mul_f32 v{T+e}, {NL2E}, v{ac+gi}")
            for e in range(8): a(f"v_exp_f32 v{T+e}, v{T+e}")
            for e in range(8): a(f"v_add_f32 v{T+e}, 1.0, v{T+e}")
            for e in range(8): a(f"v_rcp_f32 v{T+e}, v{T+e}")
            for e, (gi, ui) in enumerate(idx): a(f"v_mul_f32 v{ac+gi}, v{ac+gi}, v{ac+ui}")
            for e, (gi, ui) in enumerate(idx): a(f"v_mul_f32 v{T+e}, v{T+e}, v{ac+gi}")
            for e in range(4): a(f"v_cvt_pk_bf16_f32 v{ac+e}, v{T+2*e}, v{T+2*e+1}")
            a(f"buffer_store_dwordx4 {vr(ac,4)}, v12, {S4(SRD_WS)}, s7 offen offset:{(t&1)*2048+rt*1024} sc1")
        if t == 1: a("s_add_u32 s7, s7, 4096")
    a(f"s_lshl_b32 s7, s{sG}, 5")
    a("s_add_u32 s7, s7, s6")
    a("s_lshl_b32 s7, s7, 2")
    a(f"s_add_u32 s7, s7, {FL_H}")
    flag_set(a, 7, 12)
    a.label("f1_epi_skip")
    stamp(a, 7)
    FB2, BB, ACC2 = 16, 40, 80
    a("s_lshl_b32 s79, s76, 6")
    a("s_add_u32 s80, s79, 64")
    a("s_cmp_eq_u32 s76, 0")
    a("s_cselect_b32 s81, 128, 0")
    a("v_bfe_u32 v12, v0, 2, 2")
    a("v_mul_u32_u24 v12, 192, v12")
    a("v_bfe_u32 v13, v0, 4, 1")
    a("v_bfe_u32 v14, v0, 1, 1")
    a("v_lshl_add_u32 v13, v13, 1, v14")
    a("v_add_u32 v13, s9, v13")
    a("v_and_b32 v13, 3, v13")
    a("v_lshl_add_u32 v12, v13, 4, v12")
    a("v_and_b32 v13, 1, v0")
    a("v_lshl_add_u32 v12, v13, 3, v12")
    a("v_add_u32 v11, s10, v12")
    a("v_lshrrev_b32 v13, 5, v0")
    a(f"v_mul_u32_u24 v14, {8*192}, v13")
    for t, sT in enumerate((79, 80, 81)):
        a(f"v_add3_u32 v{TB+t}, v11, v14, s{sT}")
    a("v_lshlrev_b32 v12, 4, v0")
    a("s_lshl_b32 s7, s76, 10")
    a(f"v_add_u32 v{vBX}, s7, v12")
    a("s_xor_b32 s7, s7, 1024")
    a(f"v_add_u32 v{vBY}, s7, v12")
    for i in range(80): a(f"v_mov_b32 v{ACC2+i}, 0")
    a("s_mul_i32 s7, s9, 7")
    a("v_min_u32 v12, 6, v0")
    a("v_add_u32 v12, s7, v12")
    a("v_min_u32 v12, 26, v12")
    a("v_lshlrev_b32 v12, 2, v12")
    a(f"s_lshl_b32 s7, s{sG}, 7")
    a(f"s_add_u32 s7, s7, {FL_H}")
    flag_poll(a, 12, 7, 13, 8, sleep=8)
    stamp(a, 8)
    a(f"s_mul_i32 s82, s{sG}, {108*2048}")
    a("s_lshl_b32 s7, s78, 11")
    a("s_add_u32 s82, s82, s7")
    a(f"s_add_u32 s82, s82, {WS_HF}")
    a(f"s_mov_b32 s{SRD_H}, s{P_WS}")
    a(f"s_mov_b32 s{SRD_H+1}, s{P_WS+1}")
    a("s_cmp_eq_u32 s9, 3")
    a("s_cselect_b32 s7, 24, 28")
    a("s_lshl_b32 s7, s7, 11")
    a(f"s_add_u32 s{SRD_H+2}, s82, s7")
    def h_ops(slot):
        return [lambda: a(f"buffer_load_dwordx4 {vr(BB+slot*8,4)}, v{vBX}, {S4(SRD_H)}, s82 offen sc1"),
                lambda: (a(f"buffer_load_dwordx4 {vr(BB+slot*8+4,4)}, v{vBY}, {S4(SRD_H)}, s82 offen sc1"), a("s_add_u32 s82, s82, 2048"))]
    for n in range(4):
        for op in h_ops(n): op()
    if OPT["touch"]:
        a(f"s_and_b32 s7, s{sJ}, 3")
        a("v_lshlrev_b32 v12, 9, v0")
        a("s_lshl_b32 s7, s7, 7")
        a("s_add_u32 s7, s7, s82")
        a(f"buffer_load_dword v13, v12, {S4(SRD_H)}, s7 offen sc1")
        a("v_min_u32 v12, 31, v0")
        a("v_lshlrev_b32 v12, 9, v12")
        a("s_add_u32 s7, s7, 32768")
        a(f"buffer_load_dword v14, v12, {S4(SRD_H)}, s7 offen sc1")
    def f2_read_ops(u):
        fb = FB2 + (u & 1) * 12
        slot = u % 4
        ops = []
        for t in range(3):
            ops.append(lambda t=t: a(f"ds_read_b64_tr_b16 {vr(fb+4*t,2)}, v{TB+t} offset:{slot*16384}"))
            ops.append(lambda t=t: a(f"ds_read_b64_tr_b16 {vr(fb+4*t+2,2)}, v{TB+t} offset:{slot*16384+4*192}"))
        return ops
    def mm5(fb, bx, by, acc):
        return [lambda: mfma32(a, acc + 0, fb + 0, bx), lambda: mfma32(a, acc + 16, fb + 0, by),
                lambda: mfma32(a, acc + 32, fb + 4, bx), lambda: mfma32(a, acc + 48, fb + 4, by),
                lambda: mfma32(a, acc + 64, fb + 8, bx)]
    for op in f2_read_ops(0): op()
    a("s_cmp_eq_u32 s9, 3")
    a("s_cselect_b32 s8, 6, 7")
    a(f"s_waitcnt vmcnt({2 if OPT['touch'] else 0})")
    a(f"s_setprio {OPT['g2prio']}")
    a.lines.append(".p2align 6")
    a.label("f2_loop")
    for u in range(4):
        a("s_waitcnt vmcnt(10) lgkmcnt(0)")
        mm = mm5(FB2 + (u & 1) * 12, BB + u * 8, BB + u * 8 + 4, ACC2)
        interleave(a, mm, f2_read_ops(u + 1) + wd_dma_ops(u), [3, 3, 1, 1, 1])
        for op in h_ops(u): op()
    a("s_sub_u32 s8, s8, 1")
    a("s_cmp_lg_u32 s8, 0")
    a("s_cbranch_scc1 f2_loop")
    a(f"s_setprio {OPT['eprio']}")
    a("s_waitcnt vmcnt(0) lgkmcnt(0)")
    stamp(a, 9)
    RA = 12
    def blk_off(u, d):
        n = u * 3 + (d - 1)
        return (n >> 2) * 16384 + (n & 3) * 1024
    def reduce(acc, RR, cnt):
        a(f"v_lshlrev_b32 v{RA}, 4, v0")
        for d in range(1, 4):
            a(f"s_sub_u32 s7, s9, {d}")
            a("s_and_b32 s7, s7, 3")
            a("s_lshl_b32 s7, s7, 12")
            a(f"s_add_u32 s7, s7, {L_RING}")
            a(f"v_add_u32 v{RA+d}, s7, v{RA}")
        a(f"v_add_u32 v{RA}, s10, v{RA}")
        for u in range(5):
            for d in range(1, 4):
                a(f"ds_write_b128 v{RA}, {vr(acc+16*u+4*d,4)} offset:{blk_off(u,d)}")
        lds_signal(a, cnt, RR)
        lds_wait(a, cnt, 4, RR, 7)
        for d in range(1, 4):
            for u in range(5):
                a(f"ds_read_b128 {vr(RR+(d-1)*20+4*u,4)}, v{RA+d} offset:{blk_off(u,d)}")
        a("s_waitcnt lgkmcnt(5)")
        for u in range(5):
            for i in range(4):
                a(f"v_add_f32 v{RR+4*u+i}, v{RR+4*u+i}, v{RR+20+4*u+i}")
        a("s_waitcnt lgkmcnt(0)")
        lds_signal(a, cnt, RR + 60)
        for u in range(5):
            for i in range(4):
                a(f"v_add_f32 v{acc+16*u+i}, v{acc+16*u+i}, v{RR+40+4*u+i}")
        for u in range(5):
            for i in range(4):
                a(f"v_add_f32 v{RR+4*u+i}, v{RR+4*u+i}, v{acc+16*u+i}")
    RR = 170
    a("s_nop 7")
    reduce(ACC2, RR, C_G1)
    GG = 240
    for i in range(20): a(f"v_mul_f32 v{RR+20+i}, {NL2E}, v{RR+i}")
    for i in range(20): a(f"v_exp_f32 v{RR+20+i}, v{RR+20+i}")
    for i in range(20): a(f"v_add_f32 v{RR+20+i}, 1.0, v{RR+20+i}")
    for i in range(20): a(f"v_rcp_f32 v{RR+20+i}, v{RR+20+i}")
    a("s_nop 0")
    for i in range(20): a(f"v_mul_f32 v{RR+i}, v{RR+i}, v{RR+20+i}")
    for i in range(10): a(f"v_cvt_pk_bf16_f32 v{GG+i}, v{RR+2*i}, v{RR+2*i+1}")
    stamp(a, 10)
    lds_wait(a, C_G1, 8, 12, 7)
    WF = 16
    OB = 160
    ACC3 = 80
    def wo_stage(sl):
        for s in range(4):
            a(f"s_mul_i32 s11, s9, {160*1280}")
            a(f"s_add_u32 s11, s11, {(sl*80 + s*20)*1280}")
            for i in range(4):
                a(f"s_add_u32 m0, s10, {s*16384 + i*1024}")
                a("s_nop 0")
                a(f"buffer_load_dwordx4 v{WOFF+i}, {S4(SRD_WO)}, s11 offen lds")
    TC, TD = 250, 253
    a("v_lshrrev_b32 v13, 5, v0")
    a(f"v_mul_u32_u24 v14, {4*192}, v13")
    a(f"v_lshlrev_b32 v15, 15, v13")
    for t, sT in enumerate((79, 80, 81)):
        a(f"v_add3_u32 v{TC+t}, v11, v14, s{sT}")
        a(f"v_add3_u32 v{TD+t}, v11, v15, s{sT}")
    def wo_reads():
        for s5 in range(5):
            for t in range(3):
                f = WF + s5 * 12 + 4 * t
                if s5 < 4:
                    a(f"ds_read_b64_tr_b16 {vr(f,2)}, v{TC+t} offset:{s5*16384}")
                    a(f"ds_read_b64_tr_b16 {vr(f+2,2)}, v{TC+t} offset:{s5*16384+8*192}")
                else:
                    a(f"ds_read_b64_tr_b16 {vr(f,2)}, v{TD+t} offset:{16*192}")
                    a(f"ds_read_b64_tr_b16 {vr(f+2,2)}, v{TD+t} offset:{16384+16*192}")
    wo_stage(0)
    a("s_waitcnt vmcnt(0)")
    wo_reads()
    a("s_waitcnt lgkmcnt(0)")
    wo_stage(1)
    XP = 76
    a("v_and_b32 v1, 31, v0")
    a("v_mul_u32_u24 v1, 1280, v1")
    a("v_lshrrev_b32 v12, 5, v0")
    a("v_lshl_add_u32 v1, v12, 3, v1")
    a("s_lshl_b32 s7, s9, 4")
    a("s_add_u32 s7, s7, s77")
    a(f"s_mul_i32 s8, s{sG}, {64*1280}")
    a("s_add_u32 s7, s7, s8")
    a(f"s_mul_i32 s8, s76, {32*1280}")
    a(f"s_sub_u32 s78, {32*1280}, s8")
    a("s_add_u32 s8, s8, s7")
    a("s_add_u32 s78, s78, s7")
    a("s_add_u32 s83, s79, s8")
    a("s_add_u32 s85, s79, s78")
    a("s_add_u32 s6, s80, s8")
    a("s_add_u32 s12, s80, s78")
    a("s_add_u32 s13, s81, s8")
    US = [83, 85, 6, 12, 13]
    XPR = [76, 78, 2, 4, 6]
    a("v_min_u32 v12, 7, v0")
    a("v_lshlrev_b32 v12, 2, v12")
    a(f"s_lshl_b32 s7, s{sG}, 7")
    a("s_lshl_b32 s8, s9, 5")
    a("s_add_u32 s7, s7, s8")
    a(f"s_add_u32 s7, s7, {FL_O}")
    for u in range(5):
        a(f"buffer_load_dwordx2 {vr(XPR[u],2)}, v1, {S4(SRD_X)}, s{US[u]} offen")
    stamp(a, 11)
    flag_poll(a, 12, 7, 13, 8, sleep=2)
    stamp(a, 12)
    a(f"s_mul_i32 s82, s{sG}, {40*2048}")
    a(f"s_mul_i32 s7, s9, {10*2048}")
    a("s_add_u32 s82, s82, s7")
    a(f"s_add_u32 s82, s82, {WS_OF}")
    for k in range(10):
        a(f"buffer_load_dwordx4 {vr(OB+k*8,4)}, v{vBX}, {S4(SRD_WS)}, s82 offen sc1")
        a(f"buffer_load_dwordx4 {vr(OB+k*8+4,4)}, v{vBY}, {S4(SRD_WS)}, s82 offen sc1")
        a("s_add_u32 s82, s82, 2048")
    for k in range(10):
        if k == 5:
            wo_reads()
        a(f"s_waitcnt vmcnt({18-2*k})" + (f" lgkmcnt({min(15, 24-6*(k-5))})" if k >= 5 else ""))
        f = WF + (k % 5) * 12
        bx, by = OB + k * 8, OB + k * 8 + 4
        c = "0" if k == 0 else None
        mfma32(a, ACC3 + 0, f, bx, c); mfma32(a, ACC3 + 16, f, by, c)
        mfma32(a, ACC3 + 32, f + 4, bx, c); mfma32(a, ACC3 + 48, f + 4, by, c)
        mfma32(a, ACC3 + 64, f + 8, bx, c)
    a("s_nop 7")
    reduce(ACC3, RR, C_G2)
    a("s_mov_b32 s7, 0xffff0000")
    for u in range(5):
        t = 16 + 8 * u
        x = XPR[u]
        a(f"v_lshlrev_b32 v{t}, 16, v{x}")
        a(f"v_and_b32 v{t+1}, s7, v{x}")
        a(f"v_lshlrev_b32 v{t+2}, 16, v{x+1}")
        a(f"v_and_b32 v{t+3}, s7, v{x+1}")
        a(f"v_lshlrev_b32 v{t+4}, 16, v{GG+2*u}")
        a(f"v_and_b32 v{t+5}, s7, v{GG+2*u}")
        a(f"v_lshlrev_b32 v{t+6}, 16, v{GG+2*u+1}")
        a(f"v_and_b32 v{t+7}, s7, v{GG+2*u+1}")
        for i in range(4):
            a(f"v_fmac_f32 v{t+i}, v{RR+4*u+i}, v{t+4+i}")
        a(f"v_cvt_pk_bf16_f32 v{t+4}, v{t}, v{t+1}")
        a(f"v_cvt_pk_bf16_f32 v{t+5}, v{t+2}, v{t+3}")
        a(f"buffer_store_dwordx2 {vr(t+4,2)}, v1, {S4(SRD_OUT)}, s{US[u]} offen")

def build():
    a = Asm()
    hdr = open("cdna_kernels/" + NAME + ".s.ref").read().split("\n")
    head = [l for l in hdr if l.startswith(";") and "@launch" not in l]
    out = "\n".join(head) + "\n"
    out += f"; @launch grid=(256,1,1) block=(512,1,1) lds={LDS_TOTAL}\n"
    out += '.amdgcn_target "amdgcn-amd-amdhsa--gfx950"\n.text\n'
    a.lines += [f".globl {KNAME}", ".p2align 8", f".type {KNAME},@function"]
    a.label(KNAME)
    emit_prologue(a)
    emit_role_a(a)
    emit_role_g(a)
    a.label("k_end")
    stamp_flush(a)
    a.label("k_exit")
    a("s_endpgm")
    probs = check_hazards(a.lines)
    for p in probs: print(p, file=sys.stderr)
    out += a.text()
    out += f""".section .rodata,"a"
.p2align 6
.amdhsa_kernel {KNAME}
  .amdhsa_next_free_vgpr 256
  .amdhsa_next_free_sgpr 102
  .amdhsa_accum_offset 256
  .amdhsa_group_segment_fixed_size 0
  .amdhsa_kernarg_size 96
  .amdhsa_user_sgpr_count 2
  .amdhsa_user_sgpr_kernarg_segment_ptr 1
  .amdhsa_system_sgpr_workgroup_id_x 1
.end_amdhsa_kernel
"""
    return out

if __name__ == "__main__":
    path = sys.argv[1] if len(sys.argv) > 1 else "cdna_kernels/" + NAME + ".s"
    for kv in sys.argv[2:]:
        k, v = kv.split("=")
        OPT[k] = int(v)
    open(path, "w").write(build())
```

```python
import sys, struct, os
from asmlib import *

NAME = "recurrent_scan__grouped_kv_mqa__swiglu_ffn__prompt"
KNAME = NAME + "_kernel"
S, D, H, DH, F = 2048, 640, 32, 20, 1728
WS_EPOCH = 0
FL_KV = 0x1000
FL_H = 0x2000
FL_O = 0x3000
WS_KV = 0x10000
WS_HF = 0x100000
WS_OF = 0x800000
WS_STAMP = 0xB00000
WS_SIZE = 0xC00000
KVT = 3584
OOB = 0x7f000000
POLL_CAP = 3000

OPT = dict(stamp=False, touch=True, aprio=0, gprio=0, eprio=2, mapping=3, codetouch=True, kvsleep=2, kvdelay=0, g2prio=0, kvprio=3)

def f32bits(x): return struct.unpack("<I", struct.pack("<f", x))[0]
QSCALE = (DH ** -0.5) * 1.4426950408889634
NL2E = hex(f32bits(-1.4426950408889634))

sWV, sG, sJ = 3, 4, 5
sTAG = 15
sIDX = 14
P_X, P_WQ, P_WK, P_WV, P_WO, P_BX, P_WG, P_WU, P_WD, P_OUT, P_DBG, P_WS = [16 + 2 * i for i in range(12)]
SRD_X, SRD_WQ, SRD_WKV, SRD_WO, SRD_WG, SRD_WU, SRD_WD, SRD_OUT, SRD_WS = 40, 44, 48, 52, 56, 60, 64, 68, 72
sE = 84
L_XN = 0
L_RING = 81920
L_QX = 147456
L_CNT = 159744
L_WKV = 134144
LDS_TOTAL = 163840
C_F1, C_A1, C_G1, C_G2, C_A2, C_BAD, C_KVD, C_QR = 0, 4, 8, 12, 16, 20, 24, 28
SRD_KVR = SRD_WKV
SRD_H = SRD_WQ

def S4(b): return f"s[{b}:{b+3}]"
def srd(a, dst, ptr, nbytes):
    a(f"s_mov_b32 s{dst}, s{ptr}")
    a(f"s_mov_b32 s{dst+1}, s{ptr+1}")
    a(f"s_mov_b32 s{dst+2}, {nbytes}")
    a(f"s_mov_b32 s{dst+3}, 0x20000")

NST = 14
def stamp(a, i):
    if not OPT["stamp"]: return
    a("s_memtime s[98:99]")
    a("s_waitcnt lgkmcnt(0)")
    a(f"s_mov_b32 s{STR[i]}, s98")
STR = [86+i for i in range(10)] + [26, 27, 100, 101]
def stamp_head(a):
    if not OPT["stamp"]: return
    for i in range(NST): a(f"s_mov_b32 s{STR[i]}, 0")
    a("s_memrealtime s[96:97]")
    stamp(a, 0)
def stamp_flush(a):
    if not OPT["stamp"]: return
    stamp(a, NST-1)
    a("s_memrealtime s[98:99]")
    a("s_waitcnt lgkmcnt(0)")
    a("s_mov_b32 s97, s98")
    a("s_lshl_b32 s98, s2, 3")
    a(f"s_add_u32 s98, s98, s{sWV}")
    a("s_lshl_b32 s98, s98, 6")
    a(f"s_add_u32 s98, s98, {WS_STAMP}")
    a("s_mov_b64 exec, 1")
    a("v_mov_b32 v0, 0")
    for i, r in enumerate(STR + [96, 97]): a(f"v_mov_b32 v{4+i}, s{r}")
    for q in range(4):
        a(f"buffer_store_dwordx4 v[{4+4*q}:{7+4*q}], v0, {S4(SRD_WS)}, s98 offen offset:{16*q}")
    if OPT.get("dbgout"):
        srd(a, SRD_X, P_DBG, 256)
        a("v_not_b32 v20, v18")
        a(f"buffer_atomic_umax v19, v0, {S4(SRD_X)}, 0 offen")
        a(f"buffer_atomic_umax v20, v0, {S4(SRD_X)}, 0 offen offset:4")
        a(f"buffer_atomic_umax v18, v0, {S4(SRD_X)}, 0 offen offset:8")
        a(f"s_lshl_b32 s98, s2, 3")
        a(f"s_add_u32 s98, s98, s{sWV}")
        a(f"s_cmp_lg_u32 s98, {OPT['dbgout']}")
        a("s_cbranch_scc1 k_exit")
        for i in range(1, 14):
            a(f"v_sub_u32 v{4+i}, v{4+i}, v4")
            a(f"buffer_store_dword v{4+i}, v0, {S4(SRD_X)}, 0 offen offset:{8+4*i}")

def mfma32(a, d, A, B, c=None):
    a(f"v_mfma_f32_32x32x16_bf16 {vr(d,16)}, {vr(A,4)}, {vr(B,4)}, {vr(d,16) if c is None else c}")
def mfma32x8(a, d, A, B, c=None):
    a(f"v_mfma_f32_32x32x8_bf16 {vr(d,16)}, {vr(A,2)}, {vr(B,2)}, {vr(d,16) if c is None else c}")
def mfma16(a, d, A, B, c=None):
    a(f"v_mfma_f32_16x16x32_bf16 {vr(d,4)}, {vr(A,4)}, {vr(B,4)}, {vr(d,4) if c is None else c}")

def interleave(a, main, side, per):
    k = 0
    for i, m in enumerate(main):
        m()
        for _ in range(per[i]):
            if k < len(side):
                side[k](); k += 1
    while k < len(side):
        side[k](); k += 1

def lds_signal(a, cnt, vt):
    a("s_waitcnt lgkmcnt(0)")
    a(f"v_mov_b32 v{vt}, {L_CNT + cnt}")
    a(f"v_mov_b32 v{vt+1}, 1")
    a("s_mov_b64 exec, 1")
    a(f"ds_add_u32 v{vt}, v{vt+1}")
    a("s_mov_b64 exec, -1")
def lds_wait(a, cnt, target, vt, st):
    L = a.newlabel("lw"); Dn = a.newlabel("lwd")
    a(f"v_mov_b32 v{vt}, {L_CNT + cnt}")
    a(f"s_mov_b32 s{st+1}, 0x40000")
    a.label(L)
    a(f"ds_read_b32 v{vt+1}, v{vt}")
    a("s_waitcnt lgkmcnt(0)")
    a(f"v_readfirstlane_b32 s{st}, v{vt+1}")
    a(f"s_cmp_ge_u32 s{st}, {target}")
    a(f"s_cbranch_scc1 {Dn}")
    a("s_sleep 1")
    a(f"s_sub_u32 s{st+1}, s{st+1}, 1")
    a(f"s_cmp_lg_u32 s{st+1}, 0")
    a(f"s_cbranch_scc1 {L}")
    a.label(Dn)

def flag_set(a, soff, vt):
    a(f"v_mov_b32 v{vt}, 0")
    a(f"v_mov_b32 v{vt+1}, s{sTAG}")
    a("s_waitcnt vmcnt(0)")
    a("s_mov_b64 exec, 1")
    a(f"buffer_store_dword v{vt+1}, v{vt}, {S4(SRD_WS)}, s{soff} offen sc1")
    a("s_mov_b64 exec, -1")
def flag_poll(a, vaddr, soff, vt, st, two=False, sleep=2):
    L = a.newlabel("fp"); Dn = a.newlabel("fpd")
    a(f"s_mov_b32 s{st}, {POLL_CAP}")
    a.label(L)
    if two:
        a(f"buffer_load_dwordx2 {vr(vt,2)}, v{vaddr}, {S4(SRD_WS)}, s{soff} offen sc1")
        a("s_waitcnt vmcnt(0)")
        a(f"v_xor_b32 v{vt}, s{sTAG}, v{vt}")
        a(f"v_xor_b32 v{vt+1}, s{sTAG}, v{vt+1}")
        a(f"v_or_b32 v{vt}, v{vt}, v{vt+1}")
        a(f"v_cmp_ne_u32 vcc, 0, v{vt}")
    else:
        a(f"buffer_load_dword v{vt}, v{vaddr}, {S4(SRD_WS)}, s{soff} offen sc1")
        a("s_waitcnt vmcnt(0)")
        a(f"v_cmp_ne_u32 vcc, s{sTAG}, v{vt}")
    a(f"s_cbranch_vccz {Dn}")
    a(f"s_sleep {sleep}")
    a(f"s_sub_u32 s{st}, s{st}, 1")
    a(f"s_cmp_lg_u32 s{st}, 0")
    a(f"s_cbranch_scc1 {L}")
    a.label(Dn)

def xn_read_addrs(a, XA, tmp):
    a(f"v_lshrrev_b32 v{tmp}, 5, v0")
    for m in range(4):
        a(f"v_or_b32 v{XA+m}, {2*m}, v{tmp}")
        a(f"v_xor_b32 v{XA+m}, v{XA+m}, v0")
        a(f"v_lshlrev_b32 v{XA+m}, 4, v{XA+m}")

NSQ = 10
def qslot(n): return (n >> 2) * 16384 + (n & 3) * 1024
vQO = 15

def emit_prologue(a):
    a("s_cmp_ge_u32 s2, 256")
    a("s_cbranch_scc1 k_exit")
    a("s_load_dwordx16 s[16:31], s[0:1], 0")
    a("s_load_dwordx8 s[32:39], s[0:1], 64")
    a("v_lshrrev_b32 v1, 6, v0")
    a("v_and_b32 v0, 63, v0")
    a(f"v_readfirstlane_b32 s{sWV}, v1")
    if OPT["mapping"] == 3:
        a("s_bfe_u32 s6, s2, 0x20001")
        a("s_lshl_b32 s6, s6, 3")
        a(f"s_bfe_u32 s{sIDX}, s2, 0x30003")
        a(f"s_add_u32 s{sG}, s6, s{sIDX}")
        a("s_and_b32 s6, s2, 1")
        a("s_lshl_b32 s6, s6, 2")
        a("s_lshr_b32 s7, s2, 6")
        a(f"s_add_u32 s{sJ}, s6, s7")
    else:
        raise ValueError
    a("v_lshrrev_b32 v10, 3, v0")
    a("v_and_b32 v11, 7, v0")
    a("v_mul_u32_u24 v12, 1280, v10")
    a("v_lshl_add_u32 v13, v11, 4, v12")
    a(f"s_lshl_b32 s6, s{sG}, 3")
    a(f"s_add_u32 s6, s6, s{sWV}")
    a(f"s_mul_i32 s6, s6, {8*1280}")
    a("s_waitcnt lgkmcnt(0)")
    srd(a, SRD_X, P_X, S * D * 2)
    XR, DD = 16, 64
    vP, vSum, vSq = 2, 4, 6
    a(f"buffer_load_ushort v{vP}, v12, {S4(SRD_X)}, s6 offen")
    for i in range(10):
        a(f"buffer_load_dwordx4 {vr(XR+4*i,4)}, v13, {S4(SRD_X)}, s6 offen offset:{i*128}")
    a(f"s_load_dword s{sE}, s[{P_WS}:{P_WS+1}], {WS_EPOCH}")
    stamp_head(a)
    srd(a, SRD_WQ, P_WQ, D * D * 2)
    srd(a, SRD_WS, P_WS, WS_SIZE)
    srd(a, SRD_WG, P_WG, D * F * 2)
    srd(a, SRD_WU, P_WU, D * F * 2)
    srd(a, SRD_WD, P_WD, F * D * 2)
    srd(a, SRD_WO, P_WO, D * D * 2)
    srd(a, SRD_OUT, P_OUT, S * D * 2)
    a(f"s_and_b32 s6, s{sJ}, 1")
    a("s_cmp_eq_u32 s6, 0")
    a(f"s_cselect_b32 s{SRD_WKV}, s{P_WK}, s{P_WV}")
    a(f"s_cselect_b32 s{SRD_WKV+1}, s{P_WK+1}, s{P_WV+1}")
    a(f"s_mov_b32 s{SRD_WKV+2}, {D*DH*2}")
    a(f"s_mov_b32 s{SRD_WKV+3}, 0x20000")
    a(f"v_mov_b32 v{vSum}, 0\nv_mov_b32 v{vSum+1}, 0\nv_mov_b32 v{vSq}, 0\nv_mov_b32 v{vSq+1}, 0")
    a("s_mov_b32 s12, 0xffff0000")
    a("v_lshlrev_b32 v14, 4, v0")
    a("v_lshrrev_b32 v8, 2, v0")
    a("v_mul_u32_u24 v8, 1280, v8")
    a("v_and_b32 v9, 3, v0")
    a(f"v_lshl_add_u32 v{vQO}, v9, 4, v8")
    a(f"s_mul_i32 s7, s{sJ}, 160")
    a(f"s_and_b32 s9, s{sWV}, 3")
    a("s_mul_i32 s8, s9, 40")
    a("s_add_u32 s7, s7, s8")
    a(f"v_add_u32 v{vQO}, s7, v{vQO}")
    a("v_cmp_eq_u32 vcc, 3, v9")
    a(f"v_mov_b32 v8, {OOB}")
    a("s_lshl_b32 s10, s9, 12")
    a(f"v_cndmask_b32 v{vQO}, v{vQO}, v8, vcc")
    a(f"s_add_u32 s10, s10, {L_RING}")
    NEXTRA = 10
    def extra():
        a(f"s_cmp_ge_u32 s{sWV}, 4")
        a("s_cbranch_scc1 pro_gdma")
        for n in range(7):
            a(f"s_add_u32 s7, s{sWV}, {4*n}")
            if n == 6: a("s_min_u32 s7, s7, 24")
            a("s_lshl_b32 s7, s7, 10")
            a(f"s_add_u32 m0, s7, {L_WKV}")
            a("s_nop 0")
            a(f"buffer_load_dwordx4 v14, {S4(SRD_WKV)}, s7 offen lds")
        a("v_lshl_add_u32 v8, v0, 3, s%d" % sIDX)
        a("v_mul_u32_u24 v9, 3456, v8")
        a("s_lshl_b32 s7, s9, 3")
        a(f"s_add_u32 s7, s7, s{sJ}")
        a("s_min_u32 s7, s7, 26")
        a("s_lshl_b32 s7, s7, 7")
        if OPT["touch"]:
            a(f"buffer_load_dword v56, v9, {S4(SRD_WG)}, s7 offen")
            a(f"buffer_load_dword v57, v9, {S4(SRD_WU)}, s7 offen")
            a("v_mul_u32_u24 v9, 1280, v8")
            a(f"s_mul_i32 s7, s{sJ}, 160")
            a("s_and_b32 s8, s9, 1")
            a("s_mul_i32 s8, s8, 156")
            a("s_add_u32 s7, s7, s8")
            a(f"s_add_u32 s7, s7, {160*1280}")
            a(f"buffer_load_dword v58, v9, {S4(SRD_WQ)}, s7 offen")
        else:
            a(f"v_mov_b32 v9, {OOB}")
            for i in range(3): a(f"buffer_load_dword v{56+i}, v9, {S4(SRD_WG)}, 0 offen")
        a("s_branch pro_ln2")
        a.label("pro_gdma")
        a("s_mov_b32 s11, 0")
        for n in range(NSQ):
            a(f"s_add_u32 m0, s10, {qslot(n)}")
            a("s_nop 0")
            a(f"buffer_load_dwordx4 v{vQO}, {S4(SRD_WQ)}, s11 offen lds")
            a(f"s_add_u32 s11, s11, {16*1280}")
        a.label("pro_ln2")
    a("s_waitcnt vmcnt(10)")
    stamp(a, 1)
    a(f"v_lshlrev_b32 v{vP}, 16, v{vP}")
    XPOS = 1
    for i in range(10):
        a(f"s_waitcnt vmcnt({9-i + (NEXTRA if i > XPOS else 0)})")
        for e in range(4):
            d = DD + 8 * i + 2 * e
            a(f"v_lshlrev_b32 v{d}, 16, v{XR+4*i+e}")
            a(f"v_and_b32 v{d+1}, s12, v{XR+4*i+e}")
        for e in range(4):
            d = DD + 8 * i + 2 * e
            a(f"v_pk_add_f32 {vr(d,2)}, {vr(d,2)}, {vr(vP,2)} op_sel_hi:[1,0] neg_lo:[0,1] neg_hi:[0,1]")
        for e in range(4):
            d = DD + 8 * i + 2 * e
            a(f"v_pk_add_f32 {vr(vSum,2)}, {vr(vSum,2)}, {vr(d,2)}")
            a(f"v_pk_fma_f32 {vr(vSq,2)}, {vr(d,2)}, {vr(d,2)}, {vr(vSq,2)}")
        if i == XPOS: extra()
    stamp(a, 2)
    a(f"v_add_f32 v{vSum}, v{vSum}, v{vSum+1}")
    a(f"v_add_f32 v{vSq}, v{vSq}, v{vSq+1}")
    for ctl in ("quad_perm:[1,0,3,2]", "quad_perm:[2,3,0,1]", "row_half_mirror"):
        a("s_nop 1")
        a(f"v_add_f32_dpp v{vSum}, v{vSum}, v{vSum} {ctl} row_mask:0xf bank_mask:0xf")
        a(f"v_add_f32_dpp v{vSq}, v{vSq}, v{vSq} {ctl} row_mask:0xf bank_mask:0xf")
    inv = f32bits(1.0 / D)
    a(f"v_mul_f32 v{vSum}, {hex(inv)}, v{vSum}")
    a(f"v_mul_f32 v{vSq}, {hex(inv)}, v{vSq}")
    a(f"v_fma_f32 v{vSq}, -v{vSum}, v{vSum}, v{vSq}")
    a(f"v_max_f32 v{vSq}, 0, v{vSq}")
    a(f"v_add_f32 v{vSq}, {hex(f32bits(1e-5))}, v{vSq}")
    a(f"v_rsq_f32 v{vSq}, v{vSq}")
    a("s_lshl_b32 s7, s9, 3")
    a(f"v_mul_f32 v{vSum}, v{vSum}, v{vSq}")
    a("v_add_u32 v8, s7, v10")
    a("v_and_b32 v9, 1, v11")
    a("v_lshl_add_u32 v8, v9, 5, v8")
    a("v_xor_b32 v8, v8, v11")
    a("v_lshlrev_b32 v8, 4, v8")
    a("v_lshrrev_b32 v9, 1, v11")
    a("v_lshl_add_u32 v8, v9, 11, v8")
    a(f"s_lshr_b32 s7, s{sWV}, 2")
    a("s_lshl_b32 s7, s7, 10")
    a("v_add_u32 v8, s7, v8")
    a("v_add_u32 v9, 0x10000, v8")
    for i in range(10):
        for e in range(4):
            d = DD + 8 * i + 2 * e
            a(f"v_pk_fma_f32 {vr(d,2)}, {vr(d,2)}, {vr(vSq,2)}, {vr(vSum,2)} op_sel_hi:[1,0,0] neg_lo:[0,0,1] neg_hi:[0,0,1]")
        for e in range(4):
            d = DD + 8 * i + 2 * e
            a(f"v_cvt_pk_bf16_f32 v{XR+4*i+e}, v{d}, v{d+1}")
        off = i * 8192
        a(f"ds_write_b128 v{8 if off < 65536 else 9}, {vr(XR+4*i,4)} offset:{L_XN + off % 65536}")
    a("v_lshlrev_b32 v8, 2, v0")
    a(f"v_add_u32 v8, {L_CNT}, v8")
    a("v_mov_b32 v9, 0")
    a("ds_write_b32 v8, v9")
    a(f"s_cmp_ge_u32 s{sWV}, 4")
    a("s_cbranch_scc1 pro_bar")
    a("s_waitcnt vmcnt(3)")
    a.label("pro_bar")
    a("s_waitcnt lgkmcnt(0)")
    a(f"s_add_u32 s{sE}, s{sE}, 1")
    a(f"s_mul_i32 s{sTAG}, s{sE}, 0x9e3779b1")
    a(f"s_or_b32 s{sTAG}, s{sTAG}, 1")
    stamp(a, 3)
    a("s_barrier")
    a(f"s_cmp_ge_u32 s{sWV}, 4")
    a("s_cbranch_scc1 role_g")

def emit_kv(a):
    vWA, vXE, vXO, vXE2, vXO2 = 2, 3, 4, 5, 6
    ACC = 96
    FB = 16
    a("v_lshrrev_b32 v10, 4, v0")
    a("v_bfe_u32 v11, v0, 2, 2")
    a("v_lshl_add_u32 v11, v10, 3, v11")
    a("v_mul_u32_u24 v11, 40, v11")
    a("v_and_b32 v12, 3, v0")
    a("v_lshlrev_b32 v12, 3, v12")
    a(f"s_cmp_eq_u32 s{sWV}, 0")
    a("s_cselect_b32 s7, -1, 0")
    a("s_cselect_b32 s8, 0, 32")
    a("v_and_b32 v12, s7, v12")
    a("v_add3_u32 v11, v11, v12, s8")
    a(f"v_add_u32 v{vWA}, {L_WKV}, v11")
    a(f"s_lshr_b32 s9, s{sJ}, 1")
    a("s_and_b32 s10, s9, 1")
    a("s_lshr_b32 s11, s9, 1")
    a("s_lshl_b32 s12, s10, 4")
    a("v_and_b32 v13, 15, v0")
    a("v_add_u32 v13, s12, v13")
    a("v_and_b32 v14, 1, v10")
    a("v_lshl_add_u32 v14, v14, 5, v13")
    a("v_xor_b32 v15, v14, v10")
    a("v_lshrrev_b32 v7, 1, v10")
    a("v_lshlrev_b32 v7, 11, v7")
    a("s_lshl_b32 s12, s11, 10")
    a("v_add_u32 v7, s12, v7")
    a(f"v_lshl_add_u32 v{vXE}, v15, 4, v7")
    a("v_xor_b32 v15, 4, v15")
    a(f"v_lshl_add_u32 v{vXO}, v15, 4, v7")
    a(f"v_add_u32 v{vXE2}, 0x10000, v{vXE}")
    a(f"v_add_u32 v{vXO2}, 0x10000, v{vXO}")
    def reads(b):
        for t in range(4):
            s = 4 * b + t
            fb = FB + (b & 1) * 32 + t * 8
            a(f"ds_read_b64_tr_b16 {vr(fb,2)}, v{vWA} offset:{s*1280}")
            a(f"ds_read_b64_tr_b16 {vr(fb+2,2)}, v{vWA} offset:{s*1280+160}")
            off = L_XN + s * 4096
            reg = (vXO if s & 1 else vXE) if off < 65536 else (vXO2 if s & 1 else vXE2)
            a(f"ds_read_b128 {vr(fb+4,4)}, v{reg} offset:{off % 65536}")
    a(f"s_and_b32 s6, s{sJ}, 1")
    a("s_cmp_eq_u32 s6, 1")
    a("s_cbranch_scc1 kv_v")
    for kv in (0, 1):
        if kv: a.label("kv_v")
        reads(0)
        for b in range(5):
            if b < 4:
                reads(b + 1)
                a("s_waitcnt lgkmcnt(12)")
            else:
                a("s_waitcnt lgkmcnt(0)")
            for t in range(4):
                fb = FB + (b & 1) * 32 + t * 8
                c = "0" if (b == 0 and t == 0) else None
                if kv == 0: mfma16(a, ACC, fb, fb + 4, c)
                else:       mfma16(a, ACC, fb + 4, fb, c)
        a(f"s_lshl_b32 s12, s{sG}, 1")
        a("s_add_u32 s12, s12, s11")
        a(f"s_mul_i32 s12, s12, {KVT}")
        a(f"s_add_u32 s12, s12, {WS_KV}")
        if kv == 0:
            a("v_lshrrev_b32 v2, 1, v10")
            a("v_lshl_add_u32 v2, v2, 5, v13")
            a("v_lshlrev_b32 v2, 4, v2")
            a("v_and_b32 v3, 1, v10")
            a("v_lshl_add_u32 v2, v3, 3, v2")
            a("v_lshl_add_u32 v3, v10, 5, v13")
            a("v_lshlrev_b32 v3, 3, v3")
            a("v_add_u32 v3, 3072, v3")
            a(f"v_mov_b32 v4, {OOB}")
            a("v_cmp_lt_u32 vcc, 1, v10")
            a("s_nop 1")
            a("v_cndmask_b32 v3, v3, v4, vcc")
            a(f"v_cvt_pk_bf16_f32 v6, v{ACC}, v{ACC+1}")
            a(f"v_cvt_pk_bf16_f32 v7, v{ACC+2}, v{ACC+3}")
            a(f"s_cmp_eq_u32 s{sWV}, 0")
            a("s_cbranch_scc1 kv_store")
            a("v_mov_b32 v2, v3")
            a("v_cmp_eq_u32 vcc, 1, v10")
            a("v_mov_b32 v4, 0x3f803f80")
            a("v_mov_b32 v5, 0x00003f80")
            a("v_cndmask_b32 v6, v6, v4, vcc")
            a("v_cndmask_b32 v7, v7, v5, vcc")
            a("s_branch kv_store")
        else:
            a("v_and_b32 v2, 15, v0")
            a(f"s_lshl_b32 s13, s{sWV}, 4")
            a("v_add_u32 v3, s13, v2")
            a("v_and_b32 v4, 1, v10")
            a("v_lshl_add_u32 v3, v4, 5, v3")
            a("v_lshlrev_b32 v3, 4, v3")
            a("v_lshrrev_b32 v4, 1, v10")
            a("v_lshl_add_u32 v3, v4, 3, v3")
            a("s_lshl_b32 s13, s10, 10")
            a("s_add_u32 s13, s13, 1024")
            a("v_add_u32 v3, s13, v3")
            a(f"v_cvt_pk_bf16_f32 v6, v{ACC}, v{ACC+1}")
            a(f"v_cvt_pk_bf16_f32 v7, v{ACC+2}, v{ACC+3}")
            a(f"s_cmp_eq_u32 s{sWV}, 0")
            a("s_cbranch_scc1 kv_vst")
            a("v_cmp_eq_u32 vcc, 4, v2")
            a("v_mov_b32 v4, 0x3f803f80")
            a("v_mov_b32 v5, 0")
            a("v_cndmask_b32 v4, v5, v4, vcc")
            a("v_cmp_lt_u32 vcc, 3, v2")
            a("s_nop 1")
            a("v_cndmask_b32 v6, v6, v4, vcc")
            a("v_cndmask_b32 v7, v7, v4, vcc")
            a.label("kv_vst")
            a("v_mov_b32 v2, v3")
    a.label("kv_store")
    a(f"buffer_store_dwordx2 v[6:7], v2, {S4(SRD_WS)}, s12 offen sc1")
    lds_signal(a, C_KVD, 8)
    a(f"s_lshl_b32 s12, s{sG}, 3")
    a(f"s_add_u32 s12, s12, s{sJ}")
    a("s_lshl_b32 s12, s12, 1")
    a(f"s_add_u32 s12, s12, s{sWV}")
    a("s_lshl_b32 s12, s12, 2")
    a(f"s_add_u32 s12, s12, {FL_KV}")
    flag_set(a, 12, 8)

def emit_late_touch(a):
    if not OPT["touch"]: return
    a("s_lshr_b32 s6, s2, 3")
    a(f"s_cmp_eq_u32 s{sWV}, 3")
    a("s_cbranch_scc1 lt_3")
    a("v_and_b32 v8, 15, v0")
    a(f"v_lshl_add_u32 v8, v8, 3, s{sIDX}")
    a("v_mul_u32_u24 v8, 3456, v8")
    a("v_lshrrev_b32 v9, 4, v0")
    a("v_lshlrev_b32 v9, 3, v9")
    a(f"v_add_u32 v9, s{sJ}, v9")
    a("v_min_u32 v9, 26, v9")
    a("v_lshl_add_u32 v8, v9, 7, v8")
    a(f"s_mov_b32 s7, {512*3456}")
    a(f"buffer_load_dword v56, v8, {S4(SRD_WG)}, s7 offen")
    a(f"buffer_load_dword v57, v8, {S4(SRD_WU)}, s7 offen")
    for i in range(2):
        a(f"v_add_u32 v8, {64*i}, v0")
        a("v_min_u32 v8, 99, v8")
        a("v_mul_u32_u24 v9, 0x3334, v8")
        a("v_lshrrev_b32 v9, 16, v9")
        a("v_mul_u32_u24 v10, 5, v9")
        a("v_sub_u32 v10, v8, v10")
        a("v_mul_u32_u24 v9, 1280, v9")
        a("v_lshl_add_u32 v9, v10, 7, v9")
        a(f"s_mul_i32 s7, s6, {20*1280}")
        a("s_and_b32 s8, s2, 1")
        a("s_mul_i32 s8, s8, 640")
        a("s_add_u32 s7, s7, s8")
        a(f"buffer_load_dword v{58+i}, v9, {S4(SRD_WO)}, s7 offen")
    a("s_branch lt_done")
    a.label("lt_3")
    for i in range(5):
        a(f"v_add_u32 v8, {64*i}, v0")
        a("v_min_u32 v8, 269, v8")
        a("v_mul_u32_u24 v9, 0x3334, v8")
        a("v_lshrrev_b32 v9, 16, v9")
        a("v_mul_u32_u24 v10, 5, v9")
        a("v_sub_u32 v10, v8, v10")
        a("v_mul_u32_u24 v9, 1280, v9")
        a("v_lshl_add_u32 v9, v10, 7, v9")
        a(f"s_mul_i32 s7, s6, {54*1280}")
        a("s_and_b32 s8, s2, 1")
        a("s_mul_i32 s8, s8, 640")
        a("s_add_u32 s7, s7, s8")
        a(f"buffer_load_dword v{56+i}, v9, {S4(SRD_WD)}, s7 offen")
    a.label("lt_done")

def emit_role_a(a):
    NQ = 8
    OA, QF, SB, KB = 128, 80, 48, 16
    v16, v8 = 2, 3
    a(f"s_cmp_ge_u32 s{sWV}, 2")
    a("s_cbranch_scc1 a_touch")
    a(f"s_setprio {OPT['kvprio']}")
    emit_kv(a)
    a("s_setprio 0")
    a("s_branch a_join")
    a.label("a_touch")
    emit_late_touch(a)
    a.label("a_join")
    stamp(a, 4)
    a(f"s_mov_b32 s{SRD_KVR}, s{P_WS}")
    a(f"s_mov_b32 s{SRD_KVR+1}, s{P_WS+1}")
    a(f"s_mul_i32 s{SRD_KVR+2}, s{sWV}, {16*KVT}")
    a(f"s_add_u32 s{SRD_KVR+2}, s{SRD_KVR+2}, {WS_KV + 16*KVT}")
    a(f"v_lshlrev_b32 v{v16}, 4, v0")
    a(f"v_lshlrev_b32 v{v8}, 3, v0")
    a("s_waitcnt vmcnt(0)")
    for i in range(NQ * 16): a(f"v_mov_b32 v{OA+i}, 0")
    for i in range(16): a(f"v_mov_b32 v{SB+16+i}, 0")
    for i in range(16): a(f"v_mov_b32 v{KB+16+i}, 0")
    a(f"s_lshl_b32 s6, s{sWV}, 9")
    a(f"s_add_u32 s6, s6, {FL_KV}")
    if OPT["kvdelay"]: lds_wait(a, C_QR, 4, 6, 8)
    flag_poll(a, v8, 6, 4, 7, two=True, sleep=OPT["kvsleep"])
    stamp(a, 5)
    a(f"s_mul_i32 s7, s{sWV}, {16*KVT}")
    a(f"s_add_u32 s7, s7, {WS_KV}")
    def kvload(b):
        kb = KB + 16 * b
        a(f"buffer_load_dwordx4 {vr(kb,4)}, v{v16}, {S4(SRD_KVR)}, s7 offen sc1")
        a(f"buffer_load_dwordx2 {vr(kb+12,2)}, v{v8}, {S4(SRD_KVR)}, s7 offen offset:3072 sc1")
        a(f"buffer_load_dwordx4 {vr(kb+4,4)}, v{v16}, {S4(SRD_KVR)}, s7 offen offset:1024 sc1")
        a(f"buffer_load_dwordx4 {vr(kb+8,4)}, v{v16}, {S4(SRD_KVR)}, s7 offen offset:2048 sc1")
        a(f"s_add_u32 s7, s7, {KVT}")
    kvload(0)
    if OPT["touch"]:
        a(f"s_mul_i32 s8, s{sIDX}, {56*128}")
        a("s_add_u32 s8, s8, s7")
        a(f"s_sub_u32 s8, s8, {KVT}")
        a("v_min_u32 v4, 55, v0")
        a("v_lshlrev_b32 v4, 7, v4")
        a(f"buffer_load_dword v5, v4, {S4(SRD_KVR)}, s8 offen sc1")
    lds_wait(a, C_QR, 4, 6, 8)
    for d in range(4):
        a(f"s_add_u32 s8, s{sWV}, {d}")
        a("s_and_b32 s8, s8, 3")
        a("s_mul_i32 s8, s8, 3072")
        a(f"s_add_u32 s8, s8, {L_QX}")
        a(f"v_add_u32 v6, s8, v{v16}")
        a(f"v_add_u32 v7, s8, v{v8}")
        for rt in range(2):
            t = 2 * d + rt
            a(f"ds_read_b128 {vr(QF+4*t,4)}, v6 offset:{rt*1536}")
            a(f"ds_read_b64 {vr(QF+32+2*t,2)}, v7 offset:{rt*1536+1024}")
        if d == 2: a("s_waitcnt lgkmcnt(4)")
    if OPT["aprio"]: a(f"s_setprio {OPT['aprio']}")
    a("s_waitcnt vmcnt(0) lgkmcnt(0)")
    def qk0(n):
        b = (n // NQ) & 1; qt = n % NQ
        mfma32(a, SB + 16 * (n & 1), KB + 16 * b, QF + 4 * qt, "0")
    def qk1(n):
        b = (n // NQ) & 1; qt = n % NQ
        mfma32x8(a, SB + 16 * (n & 1), KB + 16 * b + 12, QF + 32 + 2 * qt)
    def pv(n, t):
        b = (n // NQ) & 1; qt = n % NQ
        mfma32(a, OA + 16 * qt, KB + 16 * b + 4 + 4 * t, SB + 16 * (n & 1) + 4 * t)
    stamp(a, 6)
    qk0(0); qk1(0)
    a("s_nop 7"); a("s_nop 3")
    a("s_mov_b32 s8, 8")
    a.lines.append(".p2align 6")
    a.label("att_loop")
    for n in range(2 * NQ):
        s = SB + 16 * (n & 1)
        def e(i): a(f"v_exp_f32 v{s+i}, v{s+i}")
        def c(i): a(f"v_cvt_pk_bf16_f32 v{s+i}, v{s+2*i}, v{s+2*i+1}")
        e(0); e(1)
        pv((n - 1) % (2 * NQ), 1)
        if n % NQ == 0:
            kvload(((n // NQ) + 1) & 1)
        e(2); e(3); c(0); c(1); e(4)
        if (n + 1) % NQ == 0:
            a("s_waitcnt vmcnt(0)")
        qk0(n + 1)
        e(5); e(6); e(7); c(2); c(3); e(8)
        qk1(n + 1)
        e(9); e(10); e(11); c(4); c(5); e(12)
        pv(n, 0)
        e(13); e(14); e(15); c(6); c(7)
    a("s_sub_u32 s8, s8, 1")
    a("s_cmp_lg_u32 s8, 0")
    a("s_cbranch_scc1 att_loop")
    pv(2 * NQ - 1, 1)
    stamp(a, 7)
    lds_wait(a, C_F1, 4, 4, 8)
    a(f"s_mul_i32 s9, s{sWV}, {6*3072}")
    a(f"v_add_u32 v4, s9, v{v16}")
    for t in range(2, 8):
        for q4 in range(3):
            a(f"ds_write_b128 v4, {vr(OA+16*t+4*q4,4)} offset:{(t-2)*3072+q4*1024}")
    lds_signal(a, C_A1, 6)
    stamp(a, 8)
    a(f"s_mul_i32 s10, s{sG}, 40")
    a(f"s_mul_i32 s11, s{sJ}, 5")
    a("s_add_u32 s10, s10, s11")
    a("s_add_u32 s11, s10, 4")
    a(f"s_add_u32 s10, s10, s{sWV}")
    a("s_lshl_b32 s10, s10, 11")
    a(f"s_add_u32 s10, s10, {WS_OF}")
    a("s_lshl_b32 s11, s11, 11")
    a(f"s_add_u32 s11, s11, {WS_OF}")
    a(f"s_lshr_b32 s12, s{sWV}, 1")
    a("s_lshl_b32 s12, s12, 9")
    a(f"s_and_b32 s13, s{sWV}, 1")
    a("s_lshl_b32 s13, s13, 3")
    a("s_add_u32 s12, s12, s13")
    a(f"v_add_u32 v10, s12, v{v16}")
    a(f"v_mov_b32 v11, {OOB}")
    a("v_cmp_gt_u32 vcc, 32, v0")
    for d in range(1, 4):
        a(f"s_sub_u32 s9, s{sWV}, {d}")
        a("s_and_b32 s9, s9, 3")
        a(f"s_mul_i32 s9, s9, {6*3072}")
        a(f"v_add_u32 v{11+d}, s9, v{v16}")
    a("v_cndmask_b32 v10, v11, v10, vcc")
    lds_wait(a, C_A1, 4, 4, 8)
    stamp(a, 9)
    R = 16
    for rt in range(2):
        for d in range(1, 4):
            for q4 in range(3):
                a(f"ds_read_b128 {vr(R+rt*36+(d-1)*12+q4*4,4)}, v{11+d} offset:{(2*(d-1)+rt)*3072+q4*1024}")
    for rt in range(2):
        a(f"s_waitcnt lgkmcnt({9 if rt == 0 else 0})")
        b = R + rt * 36; o = OA + 16 * rt
        for i in range(12):
            a(f"v_add_f32 v{o+i}, v{o+i}, v{b+i}")
            a(f"v_add_f32 v{b+12+i}, v{b+12+i}, v{b+24+i}")
        for i in range(12):
            a(f"v_add_f32 v{o+i}, v{o+i}, v{b+12+i}")
        a(f"v_mov_b32 v8, v{o+8}")
        a(f"v_mov_b32 v9, v{o+8}")
        a("s_nop 1")
        a("v_permlane32_swap_b32 v8, v9")
        a("s_nop 1")
        a("v_rcp_f32 v9, v9")
        a("s_nop 0")
        for i in range(12):
            a(f"v_mul_f32 v{o+i}, v9, v{o+i}")
        for i in range(6):
            a(f"v_cvt_pk_bf16_f32 v{b+i}, v{o+2*i}, v{o+2*i+1}")
        a(f"buffer_store_dwordx4 {vr(b,4)}, v{v16}, {S4(SRD_WS)}, s10 offen offset:{rt*1024} sc1")
        a(f"buffer_store_dwordx2 {vr(b+4,2)}, v10, {S4(SRD_WS)}, s11 offen offset:{rt*1024} sc1")
    a(f"s_lshl_b32 s12, s{sG}, 5")
    a(f"s_lshl_b32 s13, s{sJ}, 2")
    a("s_add_u32 s12, s12, s13")
    a(f"s_add_u32 s12, s12, s{sWV}")
    a("s_lshl_b32 s12, s12, 2")
    a(f"s_add_u32 s12, s12, {FL_O}")
    stamp(a, 10)
    flag_set(a, 12, 8)
    stamp(a, 11)
    a(f"s_or_b32 s12, s2, s{sWV}")
    a("s_cmp_lg_u32 s12, 0")
    a("s_cbranch_scc1 k_end")
    a(f"v_mov_b32 v8, {WS_EPOCH}")
    a(f"v_mov_b32 v9, s{sE}")
    a("s_mov_b64 exec, 1")
    a(f"buffer_store_dword v9, v8, {S4(SRD_WS)}, 0 offen sc1")
    a("s_mov_b64 exec, -1")
    a("s_branch k_end")

def emit_role_g(a):
    a.label("role_g")
    a(f"s_setprio {OPT['eprio']}")
    XA, vTQ = 2, 6
    TA = 6
    vGO, vUO = 10, 11
    QACC, FB = 64, 16
    xn_read_addrs(a, XA, 7)
    a("v_lshrrev_b32 v8, 5, v0")
    a("v_bfe_u32 v9, v0, 2, 2")
    a("v_lshl_add_u32 v8, v8, 3, v9")
    a("v_lshlrev_b32 v8, 6, v8")
    a("v_and_b32 v9, 1, v0")
    a("v_lshlrev_b32 v9, 1, v9")
    a("v_bfe_u32 v10, v0, 1, 1")
    a("v_or_b32 v9, v9, v10")
    a("v_and_b32 v10, 3, v0")
    a("v_cmp_ne_u32 vcc, 0, v10")
    a("v_mov_b32 v10, 4")
    a("v_mov_b32 v11, 6")
    a("v_cndmask_b32 v10, v10, v11, vcc")
    a("v_and_b32 v11, 16, v0")
    a("v_cmp_ne_u32 vcc, 0, v11")
    a("s_nop 1")
    a("v_cndmask_b32 v9, v9, v10, vcc")
    a("v_lshl_add_u32 v8, v9, 3, v8")
    a(f"v_add_u32 v{vTQ}, s10, v8")
    a("s_lshl_b32 s6, s9, 3")
    a(f"s_add_u32 s6, s6, s{sJ}")
    a("v_lshrrev_b32 v13, 3, v0")
    a("v_mul_u32_u24 v14, 3456, v13")
    a("v_bfe_u32 v12, v0, 1, 2")
    a("v_bfe_u32 v13, v0, 4, 1")
    a("v_xor_b32 v12, v12, v13")
    a("v_and_b32 v13, 1, v0")
    a("v_lshl_add_u32 v14, v13, 4, v14")
    a("s_lshl_b32 s7, s6, 7")
    a("s_cmp_ge_u32 s6, 27")
    a(f"s_cselect_b32 s7, {OOB}, s7")
    a("v_add_u32 v14, s7, v14")
    a(f"v_lshl_add_u32 v{vGO}, v12, 5, v14")
    a("v_xor_b32 v12, 2, v12")
    a(f"v_lshl_add_u32 v{vUO}, v12, 5, v14")
    a("s_mov_b32 s13, 0")
    def f1_dma_ops(slot):
        ops = []
        for gu in range(2):
            for i in range(2):
                def op(gu=gu, i=i):
                    a(f"s_add_u32 m0, s10, {slot*16384 + gu*2048 + i*1024}")
                    if i: a(f"s_add_u32 s12, s13, {8*3456}")
                    else: a("s_nop 0")
                    a(f"buffer_load_dwordx4 v{vUO if gu else vGO}, {S4(SRD_WU if gu else SRD_WG)}, {'s12' if i else 's13'} offen lds")
                    if gu == 1 and i == 1: a(f"s_add_u32 s13, s13, {16*3456}")
                ops.append(op)
        return ops
    XH = 12
    XHr = [12, 13, 14, 1]
    for m in range(4): a(f"v_add_u32 v{XHr[m]}, 0x10000, v{XA+m}")
    def qreads(u):
        fb = FB + (u & 1) * 12
        off = L_XN + u * 2048
        xr = XA + (u & 3) if off < 65536 else XHr[u & 3]
        a(f"ds_read_b64_tr_b16 {vr(fb,2)}, v{vTQ} offset:{qslot(u % NSQ)}")
        a(f"ds_read_b64_tr_b16 {vr(fb+2,2)}, v{vTQ} offset:{qslot(u % NSQ)+256}")
        a(f"ds_read_b128 {vr(fb+4,4)}, v{xr} offset:{off % 65536}")
        a(f"ds_read_b128 {vr(fb+8,4)}, v{xr} offset:{off % 65536 + 1024}")
    out = [("q", n) for n in range(NSQ)]
    def wait_for(tag):
        if tag in out:
            idx = out.index(tag)
            n = len(out) - 1 - idx
            a(f"s_waitcnt vmcnt({n})")
            del out[:idx + 1]
    wait_for(("q", 0))
    qreads(0)
    for u in range(40):
        if u + 1 < 40:
            wait_for(("q", u + 1))
            qreads(u + 1)
            a("s_waitcnt lgkmcnt(4)")
        else:
            a("s_waitcnt lgkmcnt(0)")
        fb = FB + (u & 1) * 12
        mfma32(a, QACC, fb, fb + 4, "0" if u == 0 else None)
        if u + NSQ < 40:
            a(f"s_add_u32 m0, s10, {qslot(u % NSQ)}")
            a("s_nop 0")
            a(f"buffer_load_dwordx4 v{vQO}, {S4(SRD_WQ)}, s11 offen lds")
            a(f"s_add_u32 s11, s11, {16*1280}")
            out.append(("q", u + NSQ))
        mfma32(a, QACC + 16, fb, fb + 8, "0" if u == 0 else None)
        fs = {33: 0, 37: 1, 39: 2}.get(u)
        if fs is not None:
            for k, op in enumerate(f1_dma_ops(fs)):
                op(); out.append(("f", fs, k))
    stamp(a, 4)
    a(f"v_mov_b32 v8, {hex(f32bits(QSCALE))}")
    a("v_lshlrev_b32 v12, 4, v0")
    a("v_lshlrev_b32 v13, 3, v0")
    a("s_mul_i32 s7, s9, 3072")
    a(f"s_add_u32 s7, s7, {L_QX}")
    a("v_add_u32 v12, s7, v12")
    a("v_add_u32 v13, s7, v13")
    lds_wait(a, C_KVD, 2, 40, 7)
    for op in f1_dma_ops(3): op()
    for rt in range(2):
        ac = QACC + 16 * rt
        for i in range(12):
            a(f"v_mul_f32 v{ac+i}, v8, v{ac+i}")
        o = FB + 8 * rt
        for i in range(6):
            a(f"v_cvt_pk_bf16_f32 v{o+i}, v{ac+2*i}, v{ac+2*i+1}")
        a(f"ds_write_b128 v12, {vr(o,4)} offset:{rt*1536}")
        a(f"ds_write_b64 v13, {vr(o+4,2)} offset:{rt*1536+1024}")
    lds_signal(a, C_QR, 40)
    ACC = 64
    a("s_cmp_ge_u32 s6, 27")
    a("s_cbranch_scc1 f1_skip")
    a("v_lshrrev_b32 v12, 5, v0")
    a("v_bfe_u32 v13, v0, 2, 2")
    a("v_lshl_add_u32 v12, v12, 3, v13")
    a("v_lshlrev_b32 v12, 7, v12")
    a("v_bfe_u32 v13, v0, 1, 1")
    a("v_lshl_add_u32 v12, v13, 11, v12")
    a("v_and_b32 v14, 1, v0")
    a("v_lshl_add_u32 v12, v14, 4, v12")
    a("v_bfe_u32 v14, v0, 4, 1")
    a("v_lshl_add_u32 v12, v14, 3, v12")
    a("v_add_u32 v12, s10, v12")
    a("v_bfe_u32 v14, v0, 3, 1")
    a("v_lshl_or_b32 v14, v13, 1, v14")
    for t in range(4):
        a(f"v_xor_b32 v15, {t}, v14")
        a(f"v_lshl_add_u32 v{TA+t}, v15, 5, v12")
    for i in range(128): a(f"v_mov_b32 v{ACC+i}, 0")
    def f1_read_ops(u):
        fb = FB + (u & 1) * 24
        slot = u % 4
        ops = [lambda: a(f"ds_read_b128 {vr(fb+16,4)}, v{XA+(u&3)} offset:{L_XN+u*2048}"),
               lambda: a(f"ds_read_b128 {vr(fb+20,4)}, v{XA+(u&3)} offset:{L_XN+u*2048+1024}")]
        for t in range(4):
            ops.append(lambda t=t: a(f"ds_read_b64_tr_b16 {vr(fb+4*t,2)}, v{TA+t} offset:{slot*16384}"))
            ops.append(lambda t=t: a(f"ds_read_b64_tr_b16 {vr(fb+4*t+2,2)}, v{TA+t} offset:{slot*16384+512}"))
        return ops
    a("s_waitcnt vmcnt(12)")
    for op in f1_read_ops(0): op()
    a("s_mov_b32 s8, 10")
    stamp(a, 5)
    a(f"s_setprio {OPT['gprio']}")
    a.lines.append(".p2align 6")
    a.label("f1_loop")
    for u in range(4):
        a("s_waitcnt vmcnt(8) lgkmcnt(0)")
        fb = FB + (u & 1) * 24
        mm = [(lambda t=t, rt=rt: mfma32(a, ACC + (t * 2 + rt) * 16, fb + 4 * t, fb + 16 + 4 * rt)) for t in range(4) for rt in range(2)]
        side = f1_read_ops(u + 1) + f1_dma_ops(u % 4)
        interleave(a, mm, side, [3, 3, 2, 2, 1, 1, 1, 1])
    for m in range(4): a(f"v_add_u32 v{XA+m}, 8192, v{XA+m}")
    a("s_sub_u32 s8, s8, 1")
    a("s_cmp_lg_u32 s8, 0")
    a("s_cbranch_scc1 f1_loop")
    a.label("f1_skip")
    a(f"s_setprio {OPT['eprio']}")
    stamp(a, 6)
    WOFF = 2
    TB = 6
    vBX, vBY = 9, 10
    a("s_waitcnt vmcnt(0) lgkmcnt(0)")
    lds_signal(a, C_F1, 12)
    a(f"s_and_b32 s76, s{sJ}, 1")
    a(f"s_lshr_b32 s77, s{sJ}, 1")
    a("s_mul_i32 s77, s77, 320")
    a("s_lshl_b32 s8, s76, 7")
    a("s_add_u32 s77, s77, s8")
    for i in range(4):
        a(f"v_add_u32 v12, {i*64}, v0")
        a("v_mul_u32_u24 v13, 0xaab, v12")
        a("v_lshrrev_b32 v13, 15, v13")
        a("v_mul_u32_u24 v14, 12, v13")
        a("v_sub_u32 v14, v12, v14")
        a("v_mul_u32_u24 v13, 1280, v13")
        a("v_lshl_add_u32 v13, v14, 4, v13")
        a(f"v_add_u32 v{WOFF+i}, s77, v13")
    a(f"s_mul_i32 s78, s9, 28")
    a(f"s_mul_i32 s11, s78, {16*1280}")
    def wd_dma_ops(slot):
        ops = []
        for i in range(3):
            def op(i=i):
                a(f"s_add_u32 m0, s10, {slot*16384 + i*1024}")
                a("s_nop 0")
                a(f"buffer_load_dwordx4 v{WOFF+i}, {S4(SRD_WD)}, s11 offen lds")
                if i == 2: a(f"s_add_u32 s11, s11, {16*1280}")
            ops.append(op)
        return ops
    for n in range(4):
        for op in wd_dma_ops(n): op()
    a("s_cmp_ge_u32 s6, 27")
    a("s_cbranch_scc1 f1_epi_skip")
    a("v_lshlrev_b32 v12, 4, v0")
    a(f"s_mul_i32 s7, s{sG}, {108*2048}")
    a("s_lshl_b32 s8, s6, 13")
    a("s_add_u32 s7, s7, s8")
    a(f"s_add_u32 s7, s7, {WS_HF}")
    T = 16
    idx = [(0, 4), (1, 5), (2, 6), (3, 7), (8, 12), (9, 13), (10, 14), (11, 15)]
    for t in range(4):
        for rt in range(2):
            ac = ACC + (t * 2 + rt) * 16
            for e, (gi, ui) in enumerate(idx): a(f"v_mul_f32 v{T+e}, {NL2E}, v{ac+gi}")
            for e in range(8): a(f"v_exp_f32 v{T+e}, v{T+e}")
            for e in range(8): a(f"v_add_f32 v{T+e}, 1.0, v{T+e}")
            for e in range(8): a(f"v_rcp_f32 v{T+e}, v{T+e}")
            for e, (gi, ui) in enumerate(idx): a(f"v_mul_f32 v{ac+gi}, v{ac+gi}, v{ac+ui}")
            for e, (gi, ui) in enumerate(idx): a(f"v_mul_f32 v{T+e}, v{T+e}, v{ac+gi}")
            for e in range(4): a(f"v_cvt_pk_bf16_f32 v{ac+e}, v{T+2*e}, v{T+2*e+1}")
            a(f"buffer_store_dwordx4 {vr(ac,4)}, v12, {S4(SRD_WS)}, s7 offen offset:{(t&1)*2048+rt*1024} sc1")
        if t == 1: a("s_add_u32 s7, s7, 4096")
    a(f"s_lshl_b32 s7, s{sG}, 5")
    a("s_add_u32 s7, s7, s6")
    a("s_lshl_b32 s7, s7, 2")
    a(f"s_add_u32 s7, s7, {FL_H}")
    flag_set(a, 7, 12)
    a.label("f1_epi_skip")
    stamp(a, 7)
    FB2, BB, ACC2 = 16, 40, 80
    a("s_lshl_b32 s79, s76, 6")
    a("s_add_u32 s80, s79, 64")
    a("s_cmp_eq_u32 s76, 0")
    a("s_cselect_b32 s81, 128, 0")
    a("v_bfe_u32 v12, v0, 2, 2")
    a("v_mul_u32_u24 v12, 192, v12")
    a("v_bfe_u32 v13, v0, 4, 1")
    a("v_bfe_u32 v14, v0, 1, 1")
    a("v_lshl_add_u32 v13, v13, 1, v14")
    a("v_add_u32 v13, s9, v13")
    a("v_and_b32 v13, 3, v13")
    a("v_lshl_add_u32 v12, v13, 4, v12")
    a("v_and_b32 v13, 1, v0")
    a("v_lshl_add_u32 v12, v13, 3, v12")
    a("v_add_u32 v11, s10, v12")
    a("v_lshrrev_b32 v13, 5, v0")
    a(f"v_mul_u32_u24 v14, {8*192}, v13")
    for t, sT in enumerate((79, 80, 81)):
        a(f"v_add3_u32 v{TB+t}, v11, v14, s{sT}")
    a("v_lshlrev_b32 v12, 4, v0")
    a("s_lshl_b32 s7, s76, 10")
    a(f"v_add_u32 v{vBX}, s7, v12")
    a("s_xor_b32 s7, s7, 1024")
    a(f"v_add_u32 v{vBY}, s7, v12")
    for i in range(80): a(f"v_mov_b32 v{ACC2+i}, 0")
    a("s_mul_i32 s7, s9, 7")
    a("v_min_u32 v12, 6, v0")
    a("v_add_u32 v12, s7, v12")
    a("v_min_u32 v12, 26, v12")
    a("v_lshlrev_b32 v12, 2, v12")
    a(f"s_lshl_b32 s7, s{sG}, 7")
    a(f"s_add_u32 s7, s7, {FL_H}")
    flag_poll(a, 12, 7, 13, 8, sleep=8)
    stamp(a, 8)
    a(f"s_mul_i32 s82, s{sG}, {108*2048}")
    a("s_lshl_b32 s7, s78, 11")
    a("s_add_u32 s82, s82, s7")
    a(f"s_add_u32 s82, s82, {WS_HF}")
    a(f"s_mov_b32 s{SRD_H}, s{P_WS}")
    a(f"s_mov_b32 s{SRD_H+1}, s{P_WS+1}")
    a("s_cmp_eq_u32 s9, 3")
    a("s_cselect_b32 s7, 24, 28")
    a("s_lshl_b32 s7, s7, 11")
    a(f"s_add_u32 s{SRD_H+2}, s82, s7")
    def h_ops(slot):
        return [lambda: a(f"buffer_load_dwordx4 {vr(BB+slot*8,4)}, v{vBX}, {S4(SRD_H)}, s82 offen sc1"),
                lambda: (a(f"buffer_load_dwordx4 {vr(BB+slot*8+4,4)}, v{vBY}, {S4(SRD_H)}, s82 offen sc1"), a("s_add_u32 s82, s82, 2048"))]
    for n in range(4):
        for op in h_ops(n): op()
    if OPT["touch"]:
        a(f"s_and_b32 s7, s{sJ}, 3")
        a("v_lshlrev_b32 v12, 9, v0")
        a("s_lshl_b32 s7, s7, 7")
        a("s_add_u32 s7, s7, s82")
        a(f"buffer_load_dword v13, v12, {S4(SRD_H)}, s7 offen sc1")
        a("v_min_u32 v12, 31, v0")
        a("v_lshlrev_b32 v12, 9, v12")
        a("s_add_u32 s7, s7, 32768")
        a(f"buffer_load_dword v14, v12, {S4(SRD_H)}, s7 offen sc1")
    def f2_read_ops(u):
        fb = FB2 + (u & 1) * 12
        slot = u % 4
        ops = []
        for t in range(3):
            ops.append(lambda t=t: a(f"ds_read_b64_tr_b16 {vr(fb+4*t,2)}, v{TB+t} offset:{slot*16384}"))
            ops.append(lambda t=t: a(f"ds_read_b64_tr_b16 {vr(fb+4*t+2,2)}, v{TB+t} offset:{slot*16384+4*192}"))
        return ops
    def mm5(fb, bx, by, acc):
        return [lambda: mfma32(a, acc + 0, fb + 0, bx), lambda: mfma32(a, acc + 16, fb + 0, by),
                lambda: mfma32(a, acc + 32, fb + 4, bx), lambda: mfma32(a, acc + 48, fb + 4, by),
                lambda: mfma32(a, acc + 64, fb + 8, bx)]
    for op in f2_read_ops(0): op()
    a("s_cmp_eq_u32 s9, 3")
    a("s_cselect_b32 s8, 6, 7")
    a(f"s_waitcnt vmcnt({2 if OPT['touch'] else 0})")
    a(f"s_setprio {OPT['g2prio']}")
    a.lines.append(".p2align 6")
    a.label("f2_loop")
    for u in range(4):
        a("s_waitcnt vmcnt(10) lgkmcnt(0)")
        mm = mm5(FB2 + (u & 1) * 12, BB + u * 8, BB + u * 8 + 4, ACC2)
        interleave(a, mm, f2_read_ops(u + 1) + wd_dma_ops(u), [3, 3, 1, 1, 1])
        for op in h_ops(u): op()
    a("s_sub_u32 s8, s8, 1")
    a("s_cmp_lg_u32 s8, 0")
    a("s_cbranch_scc1 f2_loop")
    a(f"s_setprio {OPT['eprio']}")
    a("s_waitcnt vmcnt(0) lgkmcnt(0)")
    stamp(a, 9)
    RA = 12
    def blk_off(u, d):
        n = u * 3 + (d - 1)
        return (n >> 2) * 16384 + (n & 3) * 1024
    def reduce(acc, RR, cnt):
        a(f"v_lshlrev_b32 v{RA}, 4, v0")
        for d in range(1, 4):
            a(f"s_sub_u32 s7, s9, {d}")
            a("s_and_b32 s7, s7, 3")
            a("s_lshl_b32 s7, s7, 12")
            a(f"s_add_u32 s7, s7, {L_RING}")
            a(f"v_add_u32 v{RA+d}, s7, v{RA}")
        a(f"v_add_u32 v{RA}, s10, v{RA}")
        for u in range(5):
            for d in range(1, 4):
                a(f"ds_write_b128 v{RA}, {vr(acc+16*u+4*d,4)} offset:{blk_off(u,d)}")
        lds_signal(a, cnt, RR)
        lds_wait(a, cnt, 4, RR, 7)
        for d in range(1, 4):
            for u in range(5):
                a(f"ds_read_b128 {vr(RR+(d-1)*20+4*u,4)}, v{RA+d} offset:{blk_off(u,d)}")
        a("s_waitcnt lgkmcnt(5)")
        for u in range(5):
            for i in range(4):
                a(f"v_add_f32 v{RR+4*u+i}, v{RR+4*u+i}, v{RR+20+4*u+i}")
        a("s_waitcnt lgkmcnt(0)")
        lds_signal(a, cnt, RR + 60)
        for u in range(5):
            for i in range(4):
                a(f"v_add_f32 v{acc+16*u+i}, v{acc+16*u+i}, v{RR+40+4*u+i}")
        for u in range(5):
            for i in range(4):
                a(f"v_add_f32 v{RR+4*u+i}, v{RR+4*u+i}, v{acc+16*u+i}")
    RR = 170
    a("s_nop 7")
    reduce(ACC2, RR, C_G1)
    GG = 240
    for i in range(20): a(f"v_mul_f32 v{RR+20+i}, {NL2E}, v{RR+i}")
    for i in range(20): a(f"v_exp_f32 v{RR+20+i}, v{RR+20+i}")
    for i in range(20): a(f"v_add_f32 v{RR+20+i}, 1.0, v{RR+20+i}")
    for i in range(20): a(f"v_rcp_f32 v{RR+20+i}, v{RR+20+i}")
    a("s_nop 0")
    for i in range(20): a(f"v_mul_f32 v{RR+i}, v{RR+i}, v{RR+20+i}")
    for i in range(10): a(f"v_cvt_pk_bf16_f32 v{GG+i}, v{RR+2*i}, v{RR+2*i+1}")
    stamp(a, 10)
    lds_wait(a, C_G1, 8, 12, 7)
    WF = 16
    OB = 160
    ACC3 = 80
    def wo_stage(sl):
        for s in range(4):
            a(f"s_mul_i32 s11, s9, {160*1280}")
            a(f"s_add_u32 s11, s11, {(sl*80 + s*20)*1280}")
            for i in range(4):
                a(f"s_add_u32 m0, s10, {s*16384 + i*1024}")
                a("s_nop 0")
                a(f"buffer_load_dwordx4 v{WOFF+i}, {S4(SRD_WO)}, s11 offen lds")
    TC, TD = 250, 253
    a("v_lshrrev_b32 v13, 5, v0")
    a(f"v_mul_u32_u24 v14, {4*192}, v13")
    a(f"v_lshlrev_b32 v15, 15, v13")
    for t, sT in enumerate((79, 80, 81)):
        a(f"v_add3_u32 v{TC+t}, v11, v14, s{sT}")
        a(f"v_add3_u32 v{TD+t}, v11, v15, s{sT}")
    def wo_reads():
        for s5 in range(5):
            for t in range(3):
                f = WF + s5 * 12 + 4 * t
                if s5 < 4:
                    a(f"ds_read_b64_tr_b16 {vr(f,2)}, v{TC+t} offset:{s5*16384}")
                    a(f"ds_read_b64_tr_b16 {vr(f+2,2)}, v{TC+t} offset:{s5*16384+8*192}")
                else:
                    a(f"ds_read_b64_tr_b16 {vr(f,2)}, v{TD+t} offset:{16*192}")
                    a(f"ds_read_b64_tr_b16 {vr(f+2,2)}, v{TD+t} offset:{16384+16*192}")
    wo_stage(0)
    a("s_waitcnt vmcnt(0)")
    wo_reads()
    a("s_waitcnt lgkmcnt(0)")
    wo_stage(1)
    XP = 76
    a("v_and_b32 v1, 31, v0")
    a("v_mul_u32_u24 v1, 1280, v1")
    a("v_lshrrev_b32 v12, 5, v0")
    a("v_lshl_add_u32 v1, v12, 3, v1")
    a("s_lshl_b32 s7, s9, 4")
    a("s_add_u32 s7, s7, s77")
    a(f"s_mul_i32 s8, s{sG}, {64*1280}")
    a("s_add_u32 s7, s7, s8")
    a(f"s_mul_i32 s8, s76, {32*1280}")
    a(f"s_sub_u32 s78, {32*1280}, s8")
    a("s_add_u32 s8, s8, s7")
    a("s_add_u32 s78, s78, s7")
    a("s_add_u32 s83, s79, s8")
    a("s_add_u32 s85, s79, s78")
    a("s_add_u32 s6, s80, s8")
    a("s_add_u32 s12, s80, s78")
    a("s_add_u32 s13, s81, s8")
    US = [83, 85, 6, 12, 13]
    XPR = [76, 78, 2, 4, 6]
    a("v_min_u32 v12, 7, v0")
    a("v_lshlrev_b32 v12, 2, v12")
    a(f"s_lshl_b32 s7, s{sG}, 7")
    a("s_lshl_b32 s8, s9, 5")
    a("s_add_u32 s7, s7, s8")
    a(f"s_add_u32 s7, s7, {FL_O}")
    for u in range(5):
        a(f"buffer_load_dwordx2 {vr(XPR[u],2)}, v1, {S4(SRD_X)}, s{US[u]} offen")
    stamp(a, 11)
    flag_poll(a, 12, 7, 13, 8, sleep=2)
    stamp(a, 12)
    a(f"s_mul_i32 s82, s{sG}, {40*2048}")
    a(f"s_mul_i32 s7, s9, {10*2048}")
    a("s_add_u32 s82, s82, s7")
    a(f"s_add_u32 s82, s82, {WS_OF}")
    for k in range(10):
        a(f"buffer_load_dwordx4 {vr(OB+k*8,4)}, v{vBX}, {S4(SRD_WS)}, s82 offen sc1")
        a(f"buffer_load_dwordx4 {vr(OB+k*8+4,4)}, v{vBY}, {S4(SRD_WS)}, s82 offen sc1")
        a("s_add_u32 s82, s82, 2048")
    for k in range(10):
        if k == 5:
            wo_reads()
        a(f"s_waitcnt vmcnt({18-2*k})" + (f" lgkmcnt({min(15, 24-6*(k-5))})" if k >= 5 else ""))
        f = WF + (k % 5) * 12
        bx, by = OB + k * 8, OB + k * 8 + 4
        c = "0" if k == 0 else None
        mfma32(a, ACC3 + 0, f, bx, c); mfma32(a, ACC3 + 16, f, by, c)
        mfma32(a, ACC3 + 32, f + 4, bx, c); mfma32(a, ACC3 + 48, f + 4, by, c)
        mfma32(a, ACC3 + 64, f + 8, bx, c)
    a("s_nop 7")
    reduce(ACC3, RR, C_G2)
    a("s_mov_b32 s7, 0xffff0000")
    for u in range(5):
        t = 16 + 8 * u
        x = XPR[u]
        a(f"v_lshlrev_b32 v{t}, 16, v{x}")
        a(f"v_and_b32 v{t+1}, s7, v{x}")
        a(f"v_lshlrev_b32 v{t+2}, 16, v{x+1}")
        a(f"v_and_b32 v{t+3}, s7, v{x+1}")
        a(f"v_lshlrev_b32 v{t+4}, 16, v{GG+2*u}")
        a(f"v_and_b32 v{t+5}, s7, v{GG+2*u}")
        a(f"v_lshlrev_b32 v{t+6}, 16, v{GG+2*u+1}")
        a(f"v_and_b32 v{t+7}, s7, v{GG+2*u+1}")
        for i in range(4):
            a(f"v_fmac_f32 v{t+i}, v{RR+4*u+i}, v{t+4+i}")
        a(f"v_cvt_pk_bf16_f32 v{t+4}, v{t}, v{t+1}")
        a(f"v_cvt_pk_bf16_f32 v{t+5}, v{t+2}, v{t+3}")
        a(f"buffer_store_dwordx2 {vr(t+4,2)}, v1, {S4(SRD_OUT)}, s{US[u]} offen")

def build():
    a = Asm()
    hdr = open("cdna_kernels/" + NAME + ".s.ref").read().split("\n")
    head = [l for l in hdr if l.startswith(";") and "@launch" not in l]
    out = "\n".join(head) + "\n"
    out += f"; @launch grid=(256,1,1) block=(512,1,1) lds={LDS_TOTAL}\n"
    out += '.amdgcn_target "amdgcn-amd-amdhsa--gfx950"\n.text\n'
    a.lines += [f".globl {KNAME}", ".p2align 8", f".type {KNAME},@function"]
    a.label(KNAME)
    emit_prologue(a)
    emit_role_a(a)
    emit_role_g(a)
    a.label("k_end")
    stamp_flush(a)
    a.label("k_exit")
    a("s_endpgm")
    probs = check_hazards(a.lines)
    for p in probs: print(p, file=sys.stderr)
    out += a.text()
    out += f""".section .rodata,"a"
.p2align 6
.amdhsa_kernel {KNAME}
  .amdhsa_next_free_vgpr 256
  .amdhsa_next_free_sgpr 102
  .amdhsa_accum_offset 256
  .amdhsa_group_segment_fixed_size 0
  .amdhsa_kernarg_size 96
  .amdhsa_user_sgpr_count 2
  .amdhsa_user_sgpr_kernarg_segment_ptr 1
  .amdhsa_system_sgpr_workgroup_id_x 1
.end_amdhsa_kernel
"""
    return out

if __name__ == "__main__":
    path = sys.argv[1] if len(sys.argv) > 1 else "cdna_kernels/" + NAME + ".s"
    for kv in sys.argv[2:]:
        k, v = kv.split("=")
        OPT[k] = int(v)
    open(path, "w").write(build())
```

```python
import sys, struct, os
from asmlib import *

NAME = "recurrent_scan__grouped_kv_mqa__swiglu_ffn__prompt"
KNAME = NAME + "_kernel"
S, D, H, DH, F = 2048, 640, 32, 20, 1728
WS_EPOCH = 0
FL_KV = 0x1000
MB_H = 0x80000
MB_O = 0xA0000
MB_Q = 0xC0000
WS_QG = 0x60000
WS_QGB = 0xC00000
WS_KV = 0x10000
WS_OF = 0x800000
WS_STAMP = 0xB00000
WS_HF = 0x100000
WS_SIZE = 0xC00000 + 32 * 81920
KVT = 3584
OOB = 0x7f000000
POLL_CAP = 3000

OPT = dict(stamp=False, touch=True, aprio=1, gprio=2, eprio=2, mapping=3, codetouch=True, kvsleep=16, g2prio=0, kvprio=3, ldprio=3, f1hi=0, clus=1)

def f32bits(x): return struct.unpack("<I", struct.pack("<f", x))[0]
QSCALE = (DH ** -0.5) * 1.4426950408889634
NL2E = hex(f32bits(-1.4426950408889634))

sWV, sG, sJ = 3, 4, 5
sTAG = 15
sIDX = 14
P_X, P_WQ, P_WK, P_WV, P_WO, P_BX, P_WG, P_WU, P_WD, P_OUT, P_DBG, P_WS = [16 + 2 * i for i in range(12)]
SRD_X, SRD_WQ, SRD_WKV, SRD_WO, SRD_WG, SRD_WU, SRD_WD, SRD_OUT, SRD_WS = 40, 44, 48, 52, 56, 60, 64, 68, 72
sE = 84
L_XN = 0
L_RING = 81920
L_WKV = 147456
L_CNT = 162816
L_H = 0
L_EXT = 32768
LDS_TOTAL = 163840
C_F1, C_A1, C_G1, C_G2, C_A2, C_BAD, C_KVD, C_QR, C_F2, C_WKV = 0, 4, 8, 12, 16, 20, 24, 28, 32, 36
SRD_KVR = SRD_WKV
SRD_H = SRD_WQ

def S4(b): return f"s[{b}:{b+3}]"
def srd(a, dst, ptr, nbytes):
    a(f"s_mov_b32 s{dst}, s{ptr}")
    a(f"s_mov_b32 s{dst+1}, s{ptr+1}")
    a(f"s_mov_b32 s{dst+2}, {nbytes}")
    a(f"s_mov_b32 s{dst+3}, 0x20000")

NST = 14
def stamp(a, i):
    if not OPT["stamp"]: return
    a("s_memtime s[98:99]")
    a("s_waitcnt lgkmcnt(0)")
    a(f"s_mov_b32 s{STR[i]}, s98")
STR = [86+i for i in range(10)] + [26, 27, 100, 101]
def stamp_head(a):
    if not OPT["stamp"]: return
    for i in range(NST): a(f"s_mov_b32 s{STR[i]}, 0")
    a("s_memrealtime s[96:97]")
    stamp(a, 0)
def stamp_flush(a):
    if not OPT["stamp"]: return
    stamp(a, NST-1)
    a("s_memrealtime s[98:99]")
    a("s_waitcnt lgkmcnt(0)")
    a("s_mov_b32 s97, s98")
    a("s_lshl_b32 s98, s2, 3")
    a(f"s_add_u32 s98, s98, s{sWV}")
    a("s_lshl_b32 s98, s98, 6")
    a(f"s_add_u32 s98, s98, {WS_STAMP}")
    a("s_mov_b64 exec, 1")
    a("v_mov_b32 v0, 0")
    for i, r in enumerate(STR + [96, 97]): a(f"v_mov_b32 v{4+i}, s{r}")
    for q in range(4):
        a(f"buffer_store_dwordx4 v[{4+4*q}:{7+4*q}], v0, {S4(SRD_WS)}, s98 offen offset:{16*q}")
    if OPT.get("dbgout"):
        srd(a, SRD_X, P_DBG, 256)
        a("v_not_b32 v20, v18")
        a(f"buffer_atomic_umax v19, v0, {S4(SRD_X)}, 0 offen")
        a(f"buffer_atomic_umax v20, v0, {S4(SRD_X)}, 0 offen offset:4")
        a(f"buffer_atomic_umax v18, v0, {S4(SRD_X)}, 0 offen offset:8")
        a(f"s_lshl_b32 s98, s2, 3")
        a(f"s_add_u32 s98, s98, s{sWV}")
        a(f"s_cmp_lg_u32 s98, {OPT['dbgout']}")
        a("s_cbranch_scc1 k_exit")
        for i in range(1, 14):
            a(f"v_sub_u32 v{4+i}, v{4+i}, v4")
            a(f"buffer_store_dword v{4+i}, v0, {S4(SRD_X)}, 0 offen offset:{8+4*i}")

def mfma32(a, d, A, B, c=None):
    a(f"v_mfma_f32_32x32x16_bf16 {vr(d,16)}, {vr(A,4)}, {vr(B,4)}, {vr(d,16) if c is None else c}")
def mfma32x8(a, d, A, B, c=None):
    a(f"v_mfma_f32_32x32x8_bf16 {vr(d,16)}, {vr(A,2)}, {vr(B,2)}, {vr(d,16) if c is None else c}")
def mfma16(a, d, A, B, c=None):
    a(f"v_mfma_f32_16x16x32_bf16 {vr(d,4)}, {vr(A,4)}, {vr(B,4)}, {vr(d,4) if c is None else c}")

def interleave(a, main, side, per):
    k = 0
    for i, m in enumerate(main):
        m()
        for _ in range(per[i]):
            if k < len(side):
                side[k](); k += 1
    while k < len(side):
        side[k](); k += 1

def lds_signal(a, cnt, vt):
    a("s_waitcnt lgkmcnt(0)")
    a(f"v_mov_b32 v{vt}, {L_CNT + cnt}")
    a(f"v_mov_b32 v{vt+1}, 1")
    a("s_mov_b64 exec, 1")
    a(f"ds_add_u32 v{vt}, v{vt+1}")
    a("s_mov_b64 exec, -1")
def lds_wait(a, cnt, target, vt, st, sleep=1):
    L = a.newlabel("lw"); Dn = a.newlabel("lwd")
    a(f"v_mov_b32 v{vt}, {L_CNT + cnt}")
    a(f"s_mov_b32 s{st+1}, 0x40000")
    a.label(L)
    a(f"ds_read_b32 v{vt+1}, v{vt}")
    a("s_waitcnt lgkmcnt(0)")
    a(f"v_readfirstlane_b32 s{st}, v{vt+1}")
    a(f"s_cmp_ge_u32 s{st}, {target}")
    a(f"s_cbranch_scc1 {Dn}")
    a(f"s_sleep {sleep}")
    a(f"s_sub_u32 s{st+1}, s{st+1}, 1")
    a(f"s_cmp_lg_u32 s{st+1}, 0")
    a(f"s_cbranch_scc1 {L}")
    a.label(Dn)

def flag_set(a, soff, vt):
    a(f"v_mov_b32 v{vt}, 0")
    a(f"v_mov_b32 v{vt+1}, s{sTAG}")
    a("s_waitcnt vmcnt(0)")
    a("s_mov_b64 exec, 1")
    a(f"buffer_store_dword v{vt+1}, v{vt}, {S4(SRD_WS)}, s{soff} offen sc1")
    a("s_mov_b64 exec, -1")
def flag_bcast(a, vaddr, soff, nl, vt):
    a(f"v_mov_b32 v{vt}, s{sTAG}")
    a("s_waitcnt vmcnt(0)")
    a(f"s_mov_b64 exec, {hex((1 << nl) - 1)}")
    a(f"buffer_store_dword v{vt}, v{vaddr}, {S4(SRD_WS)}, s{soff} offen sc1")
    a("s_mov_b64 exec, -1")
def flag_poll(a, vaddr, soff, vt, st, two=False, sleep=2):
    L = a.newlabel("fp"); Dn = a.newlabel("fpd")
    a(f"s_mov_b32 s{st}, {POLL_CAP}")
    a.label(L)
    if two:
        a(f"buffer_load_dwordx2 {vr(vt,2)}, v{vaddr}, {S4(SRD_WS)}, s{soff} offen sc1")
        a("s_waitcnt vmcnt(0)")
        a(f"v_xor_b32 v{vt}, s{sTAG}, v{vt}")
        a(f"v_xor_b32 v{vt+1}, s{sTAG}, v{vt+1}")
        a(f"v_or_b32 v{vt}, v{vt}, v{vt+1}")
        a(f"v_cmp_ne_u32 vcc, 0, v{vt}")
    else:
        a(f"buffer_load_dword v{vt}, v{vaddr}, {S4(SRD_WS)}, s{soff} offen sc1")
        a("s_waitcnt vmcnt(0)")
        a(f"v_cmp_ne_u32 vcc, s{sTAG}, v{vt}")
    a(f"s_cbranch_vccz {Dn}")
    a(f"s_sleep {sleep}")
    a(f"s_sub_u32 s{st}, s{st}, 1")
    a(f"s_cmp_lg_u32 s{st}, 0")
    a(f"s_cbranch_scc1 {L}")
    a.label(Dn)

def xn_read_addrs(a, XA, tmp):
    a(f"v_lshrrev_b32 v{tmp}, 5, v0")
    for m in range(4):
        a(f"v_or_b32 v{XA+m}, {2*m}, v{tmp}")
        a(f"v_xor_b32 v{XA+m}, v{XA+m}, v0")
        a(f"v_lshlrev_b32 v{XA+m}, 4, v{XA+m}")

NSQ = 12
OPT_SCHED_A1 = {7: 2, 8: 2, 9: 3}; OPT_SCHED_A2 = {}
OPT_SCHED_G1 = {9: 4}; OPT_SCHED_G2 = {i: 1 for i in range(10)}
QREG = 144
def qslot(n): return n * 1024
vQO = 15

def emit_prologue(a):
    a("s_cmp_ge_u32 s2, 256")
    a("s_cbranch_scc1 k_exit")
    a("s_load_dwordx16 s[16:31], s[0:1], 0")
    a("s_load_dwordx8 s[32:39], s[0:1], 64")
    a("v_lshrrev_b32 v1, 6, v0")
    a("v_and_b32 v0, 63, v0")
    a(f"v_readfirstlane_b32 s{sWV}, v1")
    if OPT["mapping"] == 3:
        a("s_bfe_u32 s6, s2, 0x20001")
        a("s_lshl_b32 s6, s6, 3")
        a(f"s_bfe_u32 s{sIDX}, s2, 0x30003")
        a(f"s_add_u32 s{sG}, s6, s{sIDX}")
        a("s_and_b32 s6, s2, 1")
        a("s_lshl_b32 s6, s6, 2")
        a("s_lshr_b32 s7, s2, 6")
        a(f"s_add_u32 s{sJ}, s6, s7")
    else:
        raise ValueError
    a("v_lshrrev_b32 v10, 3, v0")
    a("v_and_b32 v11, 7, v0")
    a("v_mul_u32_u24 v12, 1280, v10")
    a("v_lshl_add_u32 v13, v11, 4, v12")
    a(f"s_lshl_b32 s6, s{sG}, 3")
    a(f"s_add_u32 s6, s6, s{sWV}")
    a(f"s_mul_i32 s6, s6, {8*1280}")
    a("s_waitcnt lgkmcnt(0)")
    srd(a, SRD_X, P_X, S * D * 2)
    XR, DD = 16, 64
    vP, vSum, vSq = 2, 4, 6
    a(f"buffer_load_ushort v{vP}, v12, {S4(SRD_X)}, s6 offen")
    for i in range(10):
        a(f"buffer_load_dwordx4 {vr(XR+4*i,4)}, v13, {S4(SRD_X)}, s6 offen offset:{i*128}")
    a(f"s_load_dword s{sE}, s[{P_WS}:{P_WS+1}], {WS_EPOCH}")
    stamp_head(a)
    srd(a, SRD_WQ, P_WQ, D * D * 2)
    srd(a, SRD_WS, P_WS, WS_SIZE)
    srd(a, SRD_WG, P_WG, D * F * 2)
    srd(a, SRD_WU, P_WU, D * F * 2)
    srd(a, SRD_WD, P_WD, F * D * 2)
    srd(a, SRD_WO, P_WO, D * D * 2)
    srd(a, SRD_OUT, P_OUT, S * D * 2)
    a(f"s_and_b32 s6, s{sJ}, 1")
    a("s_cmp_eq_u32 s6, 0")
    a(f"s_cselect_b32 s{SRD_WKV}, s{P_WK}, s{P_WV}")
    a(f"s_cselect_b32 s{SRD_WKV+1}, s{P_WK+1}, s{P_WV+1}")
    a(f"s_mov_b32 s{SRD_WKV+2}, {D*DH*2}")
    a(f"s_mov_b32 s{SRD_WKV+3}, 0x20000")
    a(f"v_mov_b32 v{vSum}, 0\nv_mov_b32 v{vSum+1}, 0\nv_mov_b32 v{vSq}, 0\nv_mov_b32 v{vSq+1}, 0")
    a("s_mov_b32 s12, 0xffff0000")
    a("v_lshlrev_b32 v14, 4, v0")
    a(f"s_and_b32 s9, s{sWV}, 3")
    a("s_lshl_b32 s10, s9, 14")
    a(f"s_add_u32 s10, s10, {L_RING}")
    a(f"s_cmp_ge_u32 s{sWV}, 4")
    a("s_cbranch_scc1 pro_g")

    def ln(role, side=None, sched1=None, sched2=None):
        if role == "A":
            side = []
            if OPT["touch"]:
                side.append(lambda: touch_lin(a, SRD_WG, 8640, 17, 9, 56))
                side.append(lambda: touch_lin(a, SRD_WU, 8640, 17, 9, 57))
                side.append(lambda: touch_lin(a, SRD_WQ, 3200, 7, 9, 58))
            sched1 = {OPT.get("tpos", 9): 3}; sched2 = {}
        issued = [0]
        def do_side(n):
            for _ in range(n):
                if issued[0] < len(side):
                    side[issued[0]](); issued[0] += 1
        do_side(sched1.get(-1, 0))
        a(f"s_waitcnt vmcnt({10 + issued[0]})")
        stamp(a, 1)
        a(f"v_lshlrev_b32 v{vP}, 16, v{vP}")
        for i in range(10):
            a(f"s_waitcnt vmcnt({9-i + issued[0]})")
            for e in range(4):
                d = DD + 8 * i + 2 * e
                a(f"v_lshlrev_b32 v{d}, 16, v{XR+4*i+e}")
                a(f"v_and_b32 v{d+1}, s12, v{XR+4*i+e}")
            for e in range(4):
                d = DD + 8 * i + 2 * e
                a(f"v_pk_add_f32 {vr(d,2)}, {vr(d,2)}, {vr(vP,2)} op_sel_hi:[1,0] neg_lo:[0,1] neg_hi:[0,1]")
            for e in range(4):
                d = DD + 8 * i + 2 * e
                a(f"v_pk_add_f32 {vr(vSum,2)}, {vr(vSum,2)}, {vr(d,2)}")
                a(f"v_pk_fma_f32 {vr(vSq,2)}, {vr(d,2)}, {vr(d,2)}, {vr(vSq,2)}")
            do_side(sched1.get(i, 0))
        stamp(a, 2)
        a(f"v_add_f32 v{vSum}, v{vSum}, v{vSum+1}")
        a(f"v_add_f32 v{vSq}, v{vSq}, v{vSq+1}")
        for ctl in ("quad_perm:[1,0,3,2]", "quad_perm:[2,3,0,1]", "row_half_mirror"):
            a("s_nop 1")
            a(f"v_add_f32_dpp v{vSum}, v{vSum}, v{vSum} {ctl} row_mask:0xf bank_mask:0xf")
            a(f"v_add_f32_dpp v{vSq}, v{vSq}, v{vSq} {ctl} row_mask:0xf bank_mask:0xf")
        inv = f32bits(1.0 / D)
        a(f"v_mul_f32 v{vSum}, {hex(inv)}, v{vSum}")
        a(f"v_mul_f32 v{vSq}, {hex(inv)}, v{vSq}")
        a(f"v_fma_f32 v{vSq}, -v{vSum}, v{vSum}, v{vSq}")
        a(f"v_max_f32 v{vSq}, 0, v{vSq}")
        a(f"v_add_f32 v{vSq}, {hex(f32bits(1e-5))}, v{vSq}")
        a(f"v_rsq_f32 v{vSq}, v{vSq}")
        a("s_lshl_b32 s7, s9, 3")
        a(f"v_mul_f32 v{vSum}, v{vSum}, v{vSq}")
        a("v_add_u32 v8, s7, v10")
        a("v_and_b32 v9, 1, v11")
        a("v_lshl_add_u32 v8, v9, 5, v8")
        a("v_xor_b32 v8, v8, v11")
        a("v_lshlrev_b32 v8, 4, v8")
        a("v_lshrrev_b32 v9, 1, v11")
        a("v_lshl_add_u32 v8, v9, 11, v8")
        if role == "G": a("v_add_u32 v8, 1024, v8")
        a("v_add_u32 v9, 0x10000, v8")
        for i in range(10):
            for e in range(4):
                d = DD + 8 * i + 2 * e
                a(f"v_pk_fma_f32 {vr(d,2)}, {vr(d,2)}, {vr(vSq,2)}, {vr(vSum,2)} op_sel_hi:[1,0,0] neg_lo:[0,0,1] neg_hi:[0,0,1]")
            for e in range(4):
                d = DD + 8 * i + 2 * e
                a(f"v_cvt_pk_bf16_f32 v{XR+4*i+e}, v{d}, v{d+1}")
            off = i * 8192
            a(f"ds_write_b128 v{8 if off < 65536 else 9}, {vr(XR+4*i,4)} offset:{L_XN + off % 65536}")
            do_side(sched2.get(i, 0))
        if role == "A":
            a("v_lshlrev_b32 v8, 2, v0")
            a(f"v_add_u32 v8, {L_CNT}, v8")
            a("v_mov_b32 v9, 0")
            a("ds_write_b32 v8, v9")
            assert issued[0] == len(side)
        a("s_waitcnt lgkmcnt(0)")
        a(f"s_add_u32 s{sE}, s{sE}, 1")
        a(f"s_mul_i32 s{sTAG}, s{sE}, 0x9e3779b1")
        a(f"s_or_b32 s{sTAG}, s{sTAG}, 1")
        stamp(a, 3)
        a("s_barrier")
        do_side(99)
    ln("A")
    return ln

def emit_kv(a):
    vW0, vW1, vXE, vXO, vXE2, vXO2 = 1, 2, 3, 4, 5, 6
    ACC = 112
    FB = 16
    def wdma(first, n):
        for i in range(n):
            a(f"s_mov_b32 m0, {L_WKV + i*1024}")
            a(f"s_mov_b32 s7, {first + i*1024}")
            a(f"buffer_load_dwordx4 v14, {S4(SRD_WKV)}, s7 offen lds")
    wdma(0, 15)
    a("v_lshrrev_b32 v10, 4, v0")
    a("v_bfe_u32 v11, v0, 2, 2")
    a("v_lshl_add_u32 v11, v10, 3, v11")
    a("v_mul_u32_u24 v11, 40, v11")
    a("v_and_b32 v12, 3, v0")
    a("v_lshl_add_u32 v12, v12, 3, v11")
    a(f"v_add_u32 v{vW0}, {L_WKV}, v12")
    a(f"v_add_u32 v{vW1}, {L_WKV + 32}, v11")
    a(f"s_lshr_b32 s9, s{sJ}, 1")
    a("s_and_b32 s10, s9, 1")
    a("s_lshr_b32 s11, s9, 1")
    a("s_lshl_b32 s12, s10, 4")
    a("v_and_b32 v13, 15, v0")
    a("v_add_u32 v13, s12, v13")
    a("v_and_b32 v15, 1, v10")
    a("v_lshl_add_u32 v15, v15, 5, v13")
    a("v_xor_b32 v15, v15, v10")
    a("v_lshrrev_b32 v7, 1, v10")
    a("v_lshlrev_b32 v7, 11, v7")
    a("s_lshl_b32 s12, s11, 10")
    a("v_add_u32 v7, s12, v7")
    a(f"v_lshl_add_u32 v{vXE}, v15, 4, v7")
    a("v_xor_b32 v15, 4, v15")
    a(f"v_lshl_add_u32 v{vXO}, v15, 4, v7")
    a(f"v_add_u32 v{vXE2}, 0x10000, v{vXE}")
    a(f"v_add_u32 v{vXO2}, 0x10000, v{vXO}")
    def reads(b):
        for t in range(2):
            s = 2 * b + t
            fb = FB + (b & 1) * 24 + t * 12
            wo = (s if s < 12 else s - 12) * 1280
            a(f"ds_read_b64_tr_b16 {vr(fb,2)}, v{vW0} offset:{wo}")
            a(f"ds_read_b64_tr_b16 {vr(fb+2,2)}, v{vW0} offset:{wo+160}")
            a(f"ds_read_b64_tr_b16 {vr(fb+4,2)}, v{vW1} offset:{wo}")
            a(f"ds_read_b64_tr_b16 {vr(fb+6,2)}, v{vW1} offset:{wo+160}")
            off = L_XN + s * 4096
            reg = (vXO if s & 1 else vXE) if off < 65536 else (vXO2 if s & 1 else vXE2)
            a(f"ds_read_b128 {vr(fb+8,4)}, v{reg} offset:{off % 65536}")
    a(f"s_and_b32 s6, s{sJ}, 1")
    a("s_cmp_eq_u32 s6, 1")
    a("s_waitcnt vmcnt(0)")
    a("s_cbranch_scc1 kv_v")
    for kv in (0, 1):
        if kv: a.label("kv_v")
        reads(0)
        for b in range(10):
            if b == 5:
                a("s_waitcnt lgkmcnt(0)")
                wdma(12 * 1280, 10)
            elif b < 9:
                reads(b + 1)
                a("s_waitcnt lgkmcnt(10)")
            else:
                a("s_waitcnt lgkmcnt(0)")
            for t in range(2):
                fb = FB + (b & 1) * 24 + t * 12
                c = "0" if (b == 0 and t == 0) else None
                for ct in range(2):
                    if kv == 0: mfma16(a, ACC + 4 * ct, fb + 4 * ct, fb + 8, c)
                    else:       mfma16(a, ACC + 4 * ct, fb + 8, fb + 4 * ct, c)
            if b == 5:
                a("s_waitcnt vmcnt(0)")
                reads(6)
        a(f"s_lshl_b32 s12, s{sG}, 1")
        a("s_add_u32 s12, s12, s11")
        a(f"s_mul_i32 s12, s12, {KVT}")
        a(f"s_add_u32 s12, s12, {WS_KV}")
        if kv == 0:
            a("v_lshrrev_b32 v2, 1, v10")
            a("v_lshl_add_u32 v2, v2, 5, v13")
            a("v_lshlrev_b32 v2, 4, v2")
            a("v_and_b32 v3, 1, v10")
            a("v_lshl_add_u32 v2, v3, 3, v2")
            a("v_lshl_add_u32 v3, v10, 5, v13")
            a("v_lshlrev_b32 v3, 3, v3")
            a("v_add_u32 v3, 3072, v3")
            a(f"v_mov_b32 v4, {OOB}")
            a("v_cmp_lt_u32 vcc, 1, v10")
            a("s_nop 1")
            a("v_cndmask_b32 v3, v3, v4, vcc")
            a(f"v_cvt_pk_bf16_f32 v6, v{ACC}, v{ACC+1}")
            a(f"v_cvt_pk_bf16_f32 v7, v{ACC+2}, v{ACC+3}")
            a(f"v_cvt_pk_bf16_f32 v8, v{ACC+4}, v{ACC+5}")
            a(f"v_cvt_pk_bf16_f32 v9, v{ACC+6}, v{ACC+7}")
            a("v_cmp_eq_u32 vcc, 1, v10")
            a("v_mov_b32 v4, 0x3f803f80")
            a("v_mov_b32 v5, 0x00003f80")
            a("v_cndmask_b32 v8, v8, v4, vcc")
            a("v_cndmask_b32 v9, v9, v5, vcc")
            a("s_branch kv_store")
        else:
            a("v_and_b32 v1, 15, v0")
            a("v_and_b32 v4, 1, v10")
            a("v_lshl_add_u32 v2, v4, 5, v1")
            a("v_lshlrev_b32 v2, 4, v2")
            a("v_lshrrev_b32 v4, 1, v10")
            a("v_lshl_add_u32 v2, v4, 3, v2")
            a("s_lshl_b32 s13, s10, 10")
            a("s_add_u32 s13, s13, 1024")
            a("v_add_u32 v2, s13, v2")
            a("v_add_u32 v3, 256, v2")
            a(f"v_cvt_pk_bf16_f32 v6, v{ACC}, v{ACC+1}")
            a(f"v_cvt_pk_bf16_f32 v7, v{ACC+2}, v{ACC+3}")
            a(f"v_cvt_pk_bf16_f32 v8, v{ACC+4}, v{ACC+5}")
            a(f"v_cvt_pk_bf16_f32 v9, v{ACC+6}, v{ACC+7}")
            a("v_cmp_eq_u32 vcc, 4, v1")
            a("v_mov_b32 v4, 0x3f803f80")
            a("v_mov_b32 v5, 0")
            a("v_cndmask_b32 v4, v5, v4, vcc")
            a("v_cmp_lt_u32 vcc, 3, v1")
            a("s_nop 1")
            a("v_cndmask_b32 v8, v8, v4, vcc")
            a("v_cndmask_b32 v9, v9, v4, vcc")
    a.label("kv_store")
    a(f"buffer_store_dwordx2 v[6:7], v2, {S4(SRD_WS)}, s12 offen sc1")
    a(f"buffer_store_dwordx2 v[8:9], v3, {S4(SRD_WS)}, s12 offen sc1")
    lds_signal(a, C_F1, 10)
    a(f"s_lshl_b32 s12, s{sG}, 3")
    a(f"s_add_u32 s12, s12, s{sJ}")
    a("s_lshl_b32 s12, s12, 2")
    a(f"s_add_u32 s12, s12, {FL_KV}")
    flag_set(a, 12, 10)

def touch_lin(a, srd_, per_cu, nl, part, dst):
    a(f"v_min_u32 v8, {nl-1}, v0")
    a("v_lshlrev_b32 v8, 7, v8")
    a(f"s_mul_i32 s7, s2, {per_cu}")
    if part is not None:
        a(f"s_mul_i32 s8, s{part}, {nl*128}")
        a("s_add_u32 s7, s7, s8")
    a(f"buffer_load_dword v{dst}, v8, {S4(srd_)}, s7 offen")

def emit_late_touch(a):
    if not OPT["touch"]: return
    a(f"s_and_b32 s6, s{sWV}, 1")
    a("s_waitcnt vmcnt(0)")
    a(f"s_sleep {OPT.get('ltsleep', 32)}")
    touch_lin(a, SRD_WD, 8640, 34, 6, 57)
    touch_lin(a, SRD_WO, 3200, 13, 6, 58)

def emit_role_a(a):
    NQ = 8
    OA, QF, SB, KB = 128, 80, 48, 16
    v16, v8 = 2, 3
    a(f"s_cmp_ge_u32 s{sWV}, 2")
    a("s_cbranch_scc1 a_touch")
    a(f"s_cmp_eq_u32 s{sWV}, 1")
    a("s_cbranch_scc1 a_join")
    a(f"s_setprio {OPT['kvprio']}")
    emit_kv(a)
    a("s_setprio 0")
    a("s_branch a_join")
    a.label("a_touch")
    emit_late_touch(a)
    a.label("a_join")
    stamp(a, 4)
    a(f"s_mov_b32 s{SRD_KVR}, s{P_WS}")
    a(f"s_mov_b32 s{SRD_KVR+1}, s{P_WS+1}")
    a(f"s_mul_i32 s{SRD_KVR+2}, s{sWV}, {16*KVT}")
    a(f"s_add_u32 s{SRD_KVR+2}, s{SRD_KVR+2}, {WS_KV + 16*KVT}")
    a(f"v_lshlrev_b32 v{v16}, 4, v0")
    a(f"v_lshlrev_b32 v{v8}, 3, v0")
    a("s_waitcnt vmcnt(0)")
    for i in range(NQ * 16): a(f"v_mov_b32 v{OA+i}, 0")
    for i in range(16): a(f"v_mov_b32 v{SB+16+i}, 0")
    for i in range(16): a(f"v_mov_b32 v{KB+16+i}, 0")
    lds_wait(a, C_F1, OPT.get("f1wait", 2), 10, 8, sleep=8)
    a("s_setprio 3")
    stamp(a, 1)
    a(f"s_lshl_b32 s6, s{sWV}, 8")
    a(f"s_add_u32 s6, s6, {FL_KV}")
    a("v_lshlrev_b32 v4, 2, v0")
    flag_poll(a, 4, 6, 5, 7, sleep=OPT["kvsleep"])
    stamp(a, 2)
    a(f"s_mul_i32 s7, s{sWV}, {16*KVT}")
    a(f"s_add_u32 s7, s7, {WS_KV}")
    def kvload(b):
        kb = KB + 16 * b
        a(f"buffer_load_dwordx4 {vr(kb,4)}, v{v16}, {S4(SRD_KVR)}, s7 offen sc1")
        a(f"buffer_load_dwordx2 {vr(kb+12,2)}, v{v8}, {S4(SRD_KVR)}, s7 offen offset:3072 sc1")
        a(f"buffer_load_dwordx4 {vr(kb+4,4)}, v{v16}, {S4(SRD_KVR)}, s7 offen offset:1024 sc1")
        a(f"buffer_load_dwordx4 {vr(kb+8,4)}, v{v16}, {S4(SRD_KVR)}, s7 offen offset:2048 sc1")
        a(f"s_add_u32 s7, s7, {KVT}")
    kvload(0)
    if OPT["stamp"]: a("s_waitcnt vmcnt(0)")
    stamp(a, 3)
    a("v_and_b32 v6, 31, v0")
    a("v_lshlrev_b32 v6, 4, v6")
    a("v_lshrrev_b32 v7, 5, v0")
    a("v_lshl_add_u32 v7, v7, 9, v6")
    a(f"v_mov_b32 v8, {OOB}")
    a("v_cmp_gt_u32 vcc, 32, v0")
    a(f"s_mul_i32 s6, s{sJ}, 80")
    a("s_add_u32 s8, s6, 79")
    a("s_lshr_b32 s6, s6, 7")
    a("s_lshr_b32 s8, s8, 7")
    a("v_cndmask_b32 v6, v8, v6, vcc")
    a("v_mov_b32 v4, s6")
    a("v_mov_b32 v5, s8")
    a("v_cndmask_b32 v4, v4, v5, vcc")
    a("v_lshlrev_b32 v4, 2, v4")
    a(f"s_lshl_b32 s6, s{sG}, 3")
    a(f"s_add_u32 s6, s6, s{sJ}")
    a("s_lshl_b32 s6, s6, 2")
    a(f"s_add_u32 s6, s6, s{sWV}")
    a("s_lshl_b32 s6, s6, 7")
    a(f"s_add_u32 s6, s6, {MB_Q}")
    flag_poll(a, 4, 6, 5, 8, sleep=OPT.get("qsleep", 4))
    stamp(a, 5)
    for d in range(4):
        a(f"s_add_u32 s8, s{sWV}, {d}")
        a("s_and_b32 s8, s8, 3")
        a(f"s_lshl_b32 s6, s{sJ}, 2")
        a("s_add_u32 s8, s8, s6")
        a("s_and_b32 s9, s8, 1")
        a("s_mul_i32 s8, s8, 5")
        a("s_lshr_b32 s8, s8, 1")
        a("s_lshl_b32 s8, s8, 9")
        a(f"s_mul_i32 s6, s{sG}, 81920")
        a("s_add_u32 s8, s8, s6")
        a(f"s_add_u32 s8, s8, {WS_QGB}")
        a("s_lshl_b32 s10, s9, 3")
        a("s_add_u32 s10, s10, s8")
        a("s_mul_i32 s11, s9, 504")
        a("s_add_u32 s11, s11, s8")
        a("s_add_u32 s11, s11, 8")
        for rt in range(2):
            t = 2 * d + rt
            if rt:
                a("s_add_u32 s10, s10, 40960")
                a("s_add_u32 s11, s11, 40960")
            a(f"buffer_load_dwordx2 {vr(QF+4*t,2)}, v7, {S4(SRD_WS)}, s10 offen sc1")
            a(f"buffer_load_dwordx2 {vr(QF+4*t+2,2)}, v7, {S4(SRD_WS)}, s11 offen sc1")
            a(f"buffer_load_dwordx2 {vr(QF+32+2*t,2)}, v6, {S4(SRD_WS)}, s10 offen offset:1024 sc1")
    lds_signal(a, C_QR, 10)
    a(f"s_setprio {OPT['aprio']}")
    a("s_waitcnt vmcnt(0) lgkmcnt(0)")
    def qk0(n):
        b = (n // NQ) & 1; qt = n % NQ
        mfma32(a, SB + 16 * (n & 1), KB + 16 * b, QF + 4 * qt, "0")
    def qk1(n):
        b = (n // NQ) & 1; qt = n % NQ
        mfma32x8(a, SB + 16 * (n & 1), KB + 16 * b + 12, QF + 32 + 2 * qt)
    def pv(n, t):
        b = (n // NQ) & 1; qt = n % NQ
        mfma32(a, OA + 16 * qt, KB + 16 * b + 4 + 4 * t, SB + 16 * (n & 1) + 4 * t)
    stamp(a, 6)
    qk0(0); qk1(0)
    a("s_nop 7"); a("s_nop 3")
    a("s_mov_b32 s8, 8")
    a.lines.append(".p2align 6")
    a.label("att_loop")
    for n in range(2 * NQ):
        s = SB + 16 * (n & 1)
        def e(i): a(f"v_exp_f32 v{s+i}, v{s+i}")
        def c(i): a(f"v_cvt_pk_bf16_f32 v{s+i}, v{s+2*i}, v{s+2*i+1}")
        e(0); e(1)
        pv((n - 1) % (2 * NQ), 1)
        if n % NQ == 0 and not OPT.get("nokvload"):
            if OPT["ldprio"]: a(f"s_setprio {OPT['ldprio']}")
            kvload(((n // NQ) + 1) & 1)
            if OPT["ldprio"]: a(f"s_setprio {OPT['aprio']}")
        V = [("e",2),("e",3),("c",0),("c",1),("e",4),("e",5),("e",6),("e",7),("c",2),("c",3),("e",8),("e",9),("e",10),("e",11),("c",4),("c",5),("e",12),("e",13),("e",14),("e",15),("c",6),("c",7)]
        p1, p2, p3 = {0: (5, 11, 17), 1: (4, 7, 12), 2: (3, 7, 12), 3: (4, 8, 12)}[OPT.get("clus", 0)]
        for i, (k, r) in enumerate(V):
            if i == p1:
                if (n + 1) % NQ == 0 and not OPT.get("nokvwait"):
                    a("s_waitcnt vmcnt(0)")
                qk0(n + 1)
            if i == p2: qk1(n + 1)
            if i == p3: pv(n, 0)
            (e if k == "e" else c)(r)
    a("s_sub_u32 s8, s8, 1")
    a("s_cmp_lg_u32 s8, 0")
    a("s_cbranch_scc1 att_loop")
    pv(2 * NQ - 1, 1)
    stamp(a, 7)
    a("s_setprio 3")
    lds_wait(a, C_F2, 4, 4, 8)
    a(f"s_mul_i32 s9, s{sWV}, {6*3072}")
    a(f"v_add_u32 v4, s9, v{v16}")
    for t in range(2, 8):
        for q4 in range(3):
            a(f"ds_write_b128 v4, {vr(OA+16*t+4*q4,4)} offset:{(t-2)*3072+q4*1024}")
    lds_signal(a, C_A1, 6)
    stamp(a, 8)
    a(f"s_mul_i32 s10, s{sG}, 40")
    a(f"s_mul_i32 s11, s{sJ}, 5")
    a("s_add_u32 s10, s10, s11")
    a("s_add_u32 s11, s10, 4")
    a(f"s_add_u32 s10, s10, s{sWV}")
    a("s_lshl_b32 s10, s10, 11")
    a(f"s_add_u32 s10, s10, {WS_OF}")
    a("s_lshl_b32 s11, s11, 11")
    a(f"s_add_u32 s11, s11, {WS_OF}")
    a(f"s_lshr_b32 s12, s{sWV}, 1")
    a("s_lshl_b32 s12, s12, 9")
    a(f"s_and_b32 s13, s{sWV}, 1")
    a("s_lshl_b32 s13, s13, 3")
    a("s_add_u32 s12, s12, s13")
    a(f"v_add_u32 v10, s12, v{v16}")
    a(f"v_mov_b32 v11, {OOB}")
    a("v_cmp_gt_u32 vcc, 32, v0")
    for d in range(1, 4):
        a(f"s_sub_u32 s9, s{sWV}, {d}")
        a("s_and_b32 s9, s9, 3")
        a(f"s_mul_i32 s9, s9, {6*3072}")
        a(f"v_add_u32 v{11+d}, s9, v{v16}")
    a("v_cndmask_b32 v10, v11, v10, vcc")
    lds_wait(a, C_A1, 4, 4, 8)
    stamp(a, 9)
    R = 16
    for rt in range(2):
        for d in range(1, 4):
            for q4 in range(3):
                a(f"ds_read_b128 {vr(R+rt*36+(d-1)*12+q4*4,4)}, v{11+d} offset:{(2*(d-1)+rt)*3072+q4*1024}")
    for rt in range(2):
        a(f"s_waitcnt lgkmcnt({9 if rt == 0 else 0})")
        b = R + rt * 36; o = OA + 16 * rt
        for i in range(12):
            a(f"v_add_f32 v{o+i}, v{o+i}, v{b+i}")
            a(f"v_add_f32 v{b+12+i}, v{b+12+i}, v{b+24+i}")
        for i in range(12):
            a(f"v_add_f32 v{o+i}, v{o+i}, v{b+12+i}")
        a(f"v_mov_b32 v8, v{o+8}")
        a(f"v_mov_b32 v9, v{o+8}")
        a("s_nop 1")
        a("v_permlane32_swap_b32 v8, v9")
        a("s_nop 1")
        a("v_rcp_f32 v9, v9")
        a("s_nop 0")
        for i in range(12):
            a(f"v_mul_f32 v{o+i}, v9, v{o+i}")
        for i in range(6):
            a(f"v_cvt_pk_bf16_f32 v{b+i}, v{o+2*i}, v{o+2*i+1}")
        a(f"buffer_store_dwordx4 {vr(b,4)}, v{v16}, {S4(SRD_WS)}, s10 offen offset:{rt*1024} sc1")
        a(f"buffer_store_dwordx2 {vr(b+4,2)}, v10, {S4(SRD_WS)}, s11 offen offset:{rt*1024} sc1")
    a(f"s_lshl_b32 s12, s{sG}, 12")
    a(f"s_lshr_b32 s13, s{sJ}, 1")
    a("s_lshl_b32 s13, s13, 7")
    a("s_add_u32 s12, s12, s13")
    a(f"s_and_b32 s13, s{sJ}, 1")
    a("s_lshl_b32 s13, s13, 2")
    a(f"s_add_u32 s13, s13, s{sWV}")
    a("s_lshl_b32 s13, s13, 2")
    a("s_add_u32 s12, s12, s13")
    a(f"s_add_u32 s12, s12, {MB_O}")
    a("v_lshlrev_b32 v8, 9, v0")
    stamp(a, 10)
    flag_bcast(a, 8, 12, 8, 9)
    stamp(a, 11)
    a(f"s_or_b32 s12, s2, s{sWV}")
    a("s_cmp_lg_u32 s12, 0")
    a("s_cbranch_scc1 k_end")
    a(f"v_mov_b32 v8, {WS_EPOCH}")
    a(f"v_mov_b32 v9, s{sE}")
    a("s_mov_b64 exec, 1")
    a(f"buffer_store_dword v9, v8, {S4(SRD_WS)}, 0 offen sc1")
    a("s_mov_b64 exec, -1")
    a("s_branch k_end")

def emit_role_g(a, ln):
    a.label("pro_g")
    XA, TA = 2, 6
    vGO, vUO = 60, 61
    FB, ACC = 16, 64
    a("s_lshl_b32 s6, s9, 3")
    a(f"s_add_u32 s6, s6, s{sJ}")
    a("s_cmp_ge_u32 s6, 27")
    a("s_cselect_b32 s78, 1280, 0")
    a("s_cselect_b32 s79, 0, 3456")
    a("s_add_u32 s78, s78, s79")
    a("s_lshl_b32 s79, s78, 3")
    a("s_lshl_b32 s80, s78, 4")
    a("s_lshl_b32 s7, s6, 7")
    a("s_mov_b32 s8, 0")
    a("s_cmp_lt_u32 s6, 27")
    a("s_cbranch_scc1 pro_gf")
    for k in range(3):
        a(f"s_mov_b32 s{SRD_WG+k}, s{SRD_WQ+k}")
        a(f"s_mov_b32 s{SRD_WU+k}, s{SRD_WQ+k}")
    a("s_sub_u32 s7, s6, 27")
    a("s_lshl_b32 s7, s7, 8")
    a("s_mov_b32 s8, 128")
    a.label("pro_gf")
    a("v_lshrrev_b32 v8, 3, v0")
    a("v_mul_lo_u32 v9, v8, s78")
    a("v_bfe_u32 v62, v0, 1, 2")
    a("v_bfe_u32 v8, v0, 4, 1")
    a("v_xor_b32 v62, v62, v8")
    a("v_and_b32 v8, 1, v0")
    a("v_lshl_add_u32 v9, v8, 4, v9")
    a("v_add_u32 v9, s7, v9")
    a(f"v_lshl_add_u32 v{vGO}, v62, 5, v9")
    a("v_xor_b32 v62, 2, v62")
    a("v_add_u32 v9, s8, v9")
    a(f"v_lshl_add_u32 v{vUO}, v62, 5, v9")
    a("s_mov_b32 s13, 0")
    def f1slot(stage): return (stage & 3) * 4096
    def f1_dma_ops(stage, vG=None, vU=None):
        ops = []
        for gu in range(2):
            for i in range(2):
                def op(gu=gu, i=i):
                    a(f"s_add_u32 m0, s10, {f1slot(stage) + gu*2048 + i*1024}")
                    if i: a("s_add_u32 s11, s13, s79")
                    else: a("s_nop 0")
                    a(f"buffer_load_dwordx4 v{CUR[1] if gu else CUR[0]}, {S4(SRD_WU if gu else SRD_WG)}, {'s11' if i else 's13'} offen lds")
                    if gu == 1 and i == 1: a("s_add_u32 s13, s13, s80")
                ops.append(op)
        return ops
    CUR = [vGO, vUO]
    side = []
    for st in range(4): side += f1_dma_ops(st)
    e0 = OPT.get("early", 8)
    ln("G", side, {-1: e0, 9: 2}, dict(OPT_SCHED_G2))
    a(f"s_setprio {OPT['eprio']}")
    a(f"v_mov_b32 v10, v{vGO}")
    a(f"v_mov_b32 v11, v{vUO}")
    CUR[0], CUR[1] = 10, 11
    xn_read_addrs(a, XA, 7)
    a("v_lshrrev_b32 v12, 5, v0")
    a("v_bfe_u32 v13, v0, 2, 2")
    a("v_lshl_add_u32 v12, v12, 3, v13")
    a("v_lshlrev_b32 v12, 7, v12")
    a("v_bfe_u32 v13, v0, 1, 1")
    a("v_lshl_add_u32 v12, v13, 11, v12")
    a("v_and_b32 v14, 1, v0")
    a("v_lshl_add_u32 v12, v14, 4, v12")
    a("v_bfe_u32 v14, v0, 4, 1")
    a("v_lshl_add_u32 v12, v14, 3, v12")
    a("v_add_u32 v12, s10, v12")
    a("v_bfe_u32 v14, v0, 3, 1")
    a("v_lshl_or_b32 v14, v13, 1, v14")
    for t in range(4):
        a(f"v_xor_b32 v15, {t}, v14")
        a(f"v_lshl_add_u32 v{TA+t}, v15, 5, v12")
    for i in range(128): a(f"v_mov_b32 v{ACC+i}, 0")
    def f1_read_ops(u):
        fb = FB + (u & 1) * 24
        so = f1slot(u)
        ops = [lambda: a(f"ds_read_b128 {vr(fb+16,4)}, v{XA+(u&3)} offset:{L_XN+u*2048}"),
               lambda: a(f"ds_read_b128 {vr(fb+20,4)}, v{XA+(u&3)} offset:{L_XN+u*2048+1024}")]
        for t in range(4):
            ops.append(lambda t=t: a(f"ds_read_b64_tr_b16 {vr(fb+4*t,2)}, v{TA+t} offset:{so}"))
            ops.append(lambda t=t: a(f"ds_read_b64_tr_b16 {vr(fb+4*t+2,2)}, v{TA+t} offset:{so+512}"))
        return ops
    a("s_waitcnt vmcnt(12)")
    for op in f1_read_ops(0): op()
    a("s_mov_b32 s8, 10")
    stamp(a, 5)
    a(f"s_setprio {OPT['gprio']}")
    a("s_cmp_lt_u32 s6, 27")
    a("s_cbranch_scc1 f1_loop")
    a(f"s_setprio {OPT.get('qprio', 3)}")
    a.lines.append(".p2align 6")
    a.label("f1_loop")
    for u in range(4):
        a("s_waitcnt vmcnt(8) lgkmcnt(0)")
        if OPT["f1hi"]:
            a(f"s_setprio {2 if u < OPT['f1hi'] else OPT['gprio']}")
        fb = FB + (u & 1) * 24
        mm = [(lambda t=t, rt=rt: mfma32(a, ACC + (t * 2 + rt) * 16, fb + 4 * t, fb + 16 + 4 * rt)) for t in range(4) for rt in range(2)]
        side = f1_read_ops(u + 1) + f1_dma_ops(u)
        interleave(a, mm, side, [3, 3, 2, 2, 1, 1, 1, 1])
    for m in range(4): a(f"v_add_u32 v{XA+m}, 8192, v{XA+m}")
    a("s_sub_u32 s8, s8, 1")
    a("s_cmp_lg_u32 s8, 0")
    a("s_cbranch_scc1 f1_loop")
    a(f"s_setprio {OPT['eprio']}")
    stamp(a, 6)
    WOFF = 2
    TB = 6
    vBX, vBY = 9, 10
    a("s_waitcnt vmcnt(0) lgkmcnt(0)")
    lds_signal(a, C_F1, 12)
    a(f"s_and_b32 s76, s{sJ}, 1")
    a(f"s_lshr_b32 s77, s{sJ}, 1")
    a("s_mul_i32 s77, s77, 320")
    a("s_lshl_b32 s8, s76, 7")
    a("s_add_u32 s77, s77, s8")
    for i in range(4):
        a(f"v_add_u32 v12, {i*64}, v0")
        a("v_mul_u32_u24 v13, 0xaab, v12")
        a("v_lshrrev_b32 v13, 15, v13")
        a("v_mul_u32_u24 v14, 12, v13")
        a("v_sub_u32 v14, v12, v14")
        a("v_mul_u32_u24 v13, 1280, v13")
        a("v_lshl_add_u32 v13, v14, 4, v13")
        a(f"v_add_u32 v{WOFF+i}, s77, v13")
    a("v_cmp_lt_u32 vcc, 47, v0")
    a(f"v_mov_b32 v12, {OOB}")
    a("s_mul_i32 s78, s9, 28")
    a(f"v_cndmask_b32 v{WOFF+3}, v{WOFF+3}, v12, vcc")
    a(f"s_mul_i32 s11, s78, {16*1280}")
    a(f"s_add_u32 s7, s11, {28*16*1280}")
    a(f"s_min_u32 s{SRD_WD+2}, s7, {F*D*2}")
    def wd_dma_ops(slot):
        ops = []
        for i in range(3):
            def op(i=i):
                a(f"s_add_u32 m0, s10, {slot*4096 + i*1024}")
                a("s_nop 0")
                a(f"buffer_load_dwordx4 v{WOFF+i}, {S4(SRD_WD)}, s11 offen lds")
                if i == 2: a(f"s_add_u32 s11, s11, {16*1280}")
            ops.append(op)
        return ops
    a("s_cmp_lt_u32 s6, 27")
    a("s_cbranch_scc1 f1_epi")
    a("v_lshlrev_b32 v12, 4, v0")
    a(f"v_mov_b32 v13, {hex(f32bits(QSCALE))}")
    a("s_sub_u32 s8, s6, 27")
    a("s_lshl_b32 s7, s8, 13")
    a(f"s_mul_i32 s8, s{sG}, 81920")
    a("s_add_u32 s7, s7, s8")
    a(f"s_add_u32 s7, s7, {WS_QGB}")
    a("s_add_u32 s8, s7, 4096")
    a("s_add_u32 s82, s7, 40960")
    a("s_add_u32 s83, s8, 40960")
    for t in range(4):
        for rt in range(2):
            ac = ACC + (t * 2 + rt) * 16
            o = 16 + ((t * 2 + rt) & 3) * 8
            for i in range(16): a(f"v_mul_f32 v{ac+i}, v13, v{ac+i}")
            for up in range(2):
                for hi in range(2):
                    r = ac + 8 * hi + 4 * up
                    a(f"v_cvt_pk_bf16_f32 v{o+4*up+2*hi}, v{r}, v{r+1}")
                    a(f"v_cvt_pk_bf16_f32 v{o+4*up+2*hi+1}, v{r+2}, v{r+3}")
                so = [[7, 8], [82, 83]][rt][up]
                a(f"buffer_store_dwordx4 {vr(o+4*up,4)}, v12, {S4(SRD_WS)}, s{so} offen offset:{t*1024} sc1")
    a(f"s_lshl_b32 s7, s{sG}, 12")
    a("s_sub_u32 s8, s6, 27")
    a("s_lshl_b32 s8, s8, 2")
    a("s_add_u32 s7, s7, s8")
    a(f"s_add_u32 s7, s7, {MB_Q}")
    a("v_lshlrev_b32 v12, 7, v0")
    flag_bcast(a, 12, 7, 32, 13)
    a("s_branch f1_epi_skip")
    a.label("f1_epi")
    a("v_lshlrev_b32 v12, 4, v0")
    a(f"s_mul_i32 s7, s{sG}, {108*2048}")
    a("s_lshl_b32 s8, s6, 13")
    a("s_add_u32 s7, s7, s8")
    a(f"s_add_u32 s7, s7, {WS_HF}")
    T = 16
    idx = [(0, 4), (1, 5), (2, 6), (3, 7), (8, 12), (9, 13), (10, 14), (11, 15)]
    for t in range(4):
        for rt in range(2):
            ac = ACC + (t * 2 + rt) * 16
            for e, (gi, ui) in enumerate(idx): a(f"v_mul_f32 v{T+e}, {NL2E}, v{ac+gi}")
            for e in range(8): a(f"v_exp_f32 v{T+e}, v{T+e}")
            for e in range(8): a(f"v_add_f32 v{T+e}, 1.0, v{T+e}")
            for e in range(8): a(f"v_rcp_f32 v{T+e}, v{T+e}")
            for e, (gi, ui) in enumerate(idx): a(f"v_mul_f32 v{ac+gi}, v{ac+gi}, v{ac+ui}")
            for e, (gi, ui) in enumerate(idx): a(f"v_mul_f32 v{T+e}, v{T+e}, v{ac+gi}")
            for e in range(4): a(f"v_cvt_pk_bf16_f32 v{ac+e}, v{T+2*e}, v{T+2*e+1}")
    if OPT.get("hgate", 1):
        a("s_mov_b32 s82, s7")
        a("s_setprio 0")
        lds_wait(a, C_QR, 4, 14, 7, sleep=4)
        a(f"s_setprio {OPT['eprio']}")
        a("s_mov_b32 s7, s82")
        a("s_nop 1")
    for t in range(4):
        for rt in range(2):
            ac = ACC + (t * 2 + rt) * 16
            a(f"buffer_store_dwordx4 {vr(ac,4)}, v12, {S4(SRD_WS)}, s7 offen offset:{(t&1)*2048+rt*1024} sc1")
        if t == 1: a("s_add_u32 s7, s7, 4096")
    a("s_mul_i32 s8, s6, 37")
    a("s_lshr_b32 s8, s8, 8")
    a("s_mul_i32 s82, s8, 7")
    a("s_sub_u32 s82, s6, s82")
    a("s_lshl_b32 s8, s8, 7")
    a("s_lshl_b32 s82, s82, 2")
    a(f"s_lshl_b32 s7, s{sG}, 12")
    a("s_add_u32 s7, s7, s8")
    a("s_add_u32 s7, s7, s82")
    a(f"s_add_u32 s7, s7, {MB_H}")
    a("v_lshlrev_b32 v12, 9, v0")
    flag_bcast(a, 12, 7, 8, 13)
    a.label("f1_epi_skip")
    stamp(a, 7)
    if OPT.get("gate", 1):
        a("s_setprio 0")
        lds_wait(a, C_QR, 4, 12, 7, sleep=4)
        a(f"s_setprio {OPT['eprio']}")
    for n in range(4):
        for op in wd_dma_ops(n): op()
    lds_wait(a, C_F1, 5, 12, 7)
    a("s_lshl_b32 s84, s9, 14")
    def wo_stage(sl, sbase):
        for s in range(4):
            a(f"s_mul_i32 s7, s9, {160*1280}")
            a(f"s_add_u32 s7, s7, {(sl*80 + s*20)*1280}")
            for i in range(4):
                a(f"s_add_u32 m0, s{sbase}, {s*4096 + i*1024}")
                a("s_nop 0")
                a(f"buffer_load_dwordx4 v{WOFF+i}, {S4(SRD_WO)}, s7 offen lds")
    wo_stage(0, 84)
    FB2, BB, ACC2, WF = 16, 40, 80, 160
    a("s_lshl_b32 s79, s76, 6")
    a("s_add_u32 s80, s79, 64")
    a("s_cmp_eq_u32 s76, 0")
    a("s_cselect_b32 s81, 128, 0")
    a("v_bfe_u32 v12, v0, 2, 2")
    a("v_mul_u32_u24 v12, 192, v12")
    a("v_bfe_u32 v13, v0, 4, 1")
    a("v_bfe_u32 v14, v0, 1, 1")
    a("v_lshl_add_u32 v13, v13, 1, v14")
    a("v_add_u32 v13, s9, v13")
    a("v_and_b32 v13, 3, v13")
    a("v_lshl_add_u32 v12, v13, 4, v12")
    a("v_and_b32 v13, 1, v0")
    a("v_lshl_add_u32 v12, v13, 3, v12")
    a("v_add_u32 v11, s10, v12")
    a("v_lshrrev_b32 v13, 5, v0")
    a(f"v_mul_u32_u24 v14, {8*192}, v13")
    for t, sT in enumerate((79, 80, 81)):
        a(f"v_add3_u32 v{TB+t}, v11, v14, s{sT}")
    TC, TD = 250, 253
    a("v_add_u32 v11, s84, v12")
    a(f"v_mul_u32_u24 v14, {4*192}, v13")
    a("v_lshlrev_b32 v15, 13, v13")
    for t, sT in enumerate((79, 80, 81)):
        a(f"v_add3_u32 v{TC+t}, v11, v14, s{sT}")
        a(f"v_add3_u32 v{TD+t}, v11, v15, s{sT}")
    a("v_lshlrev_b32 v12, 4, v0")
    a("s_lshl_b32 s7, s76, 10")
    a(f"v_add_u32 v{vBX}, s7, v12")
    a("s_xor_b32 s7, s7, 1024")
    a(f"v_add_u32 v{vBY}, s7, v12")
    for i in range(80): a(f"v_mov_b32 v{ACC2+i}, 0")
    def wo_reads():
        for s5 in range(5):
            for t in range(3):
                f = WF + s5 * 12 + 4 * t
                if s5 < 4:
                    a(f"ds_read_b64_tr_b16 {vr(f,2)}, v{TC+t} offset:{s5*4096}")
                    a(f"ds_read_b64_tr_b16 {vr(f+2,2)}, v{TC+t} offset:{s5*4096+8*192}")
                else:
                    a(f"ds_read_b64_tr_b16 {vr(f,2)}, v{TD+t} offset:{16*192}")
                    a(f"ds_read_b64_tr_b16 {vr(f+2,2)}, v{TD+t} offset:{4096+16*192}")
    a("s_cmp_eq_u32 s9, 3")
    a("s_cselect_b32 s7, 5, 6")
    a("v_min_u32 v12, s7, v0")
    a("v_lshlrev_b32 v12, 2, v12")
    a(f"s_lshl_b32 s7, s{sG}, 3")
    a(f"s_add_u32 s7, s7, s{sJ}")
    a("s_lshl_b32 s7, s7, 2")
    a("s_add_u32 s7, s7, s9")
    a("s_lshl_b32 s7, s7, 7")
    a(f"s_add_u32 s7, s7, {MB_H}")
    a(f"s_mul_i32 s82, s{sG}, {108*2048}")
    a("s_lshl_b32 s8, s78, 11")
    a("s_add_u32 s82, s82, s8")
    a(f"s_add_u32 s82, s82, {WS_HF}")
    a(f"s_mov_b32 s{SRD_H}, s{P_WS}")
    a(f"s_mov_b32 s{SRD_H+1}, s{P_WS+1}")
    a("s_cmp_eq_u32 s9, 3")
    a("s_cselect_b32 s8, 24, 28")
    a("s_lshl_b32 s8, s8, 11")
    a(f"s_add_u32 s{SRD_H+2}, s82, s8")
    a("s_waitcnt vmcnt(0)")
    wo_reads()
    a("s_setprio 0")
    flag_poll(a, 12, 7, 13, 8, sleep=OPT.get("hsleep", 8))
    a(f"s_setprio {OPT['eprio']}")
    stamp(a, 8)
    def h_ops(slot):
        return [lambda: a(f"buffer_load_dwordx4 {vr(BB+slot*8,4)}, v{vBX}, {S4(SRD_H)}, s82 offen sc1"),
                lambda: (a(f"buffer_load_dwordx4 {vr(BB+slot*8+4,4)}, v{vBY}, {S4(SRD_H)}, s82 offen sc1"), a("s_add_u32 s82, s82, 2048"))]
    for n in range(4):
        for op in h_ops(n): op()
    def f2_read_ops(u):
        fb = FB2 + (u & 1) * 12
        slot = u % 4
        ops = []
        for t in range(3):
            ops.append(lambda t=t: a(f"ds_read_b64_tr_b16 {vr(fb+4*t,2)}, v{TB+t} offset:{slot*4096}"))
            ops.append(lambda t=t: a(f"ds_read_b64_tr_b16 {vr(fb+4*t+2,2)}, v{TB+t} offset:{slot*4096+4*192}"))
        return ops
    def mm5(fb, bx, by, acc, c=None):
        return [lambda: mfma32(a, acc + 0, fb + 0, bx, c), lambda: mfma32(a, acc + 16, fb + 0, by, c),
                lambda: mfma32(a, acc + 32, fb + 4, bx, c), lambda: mfma32(a, acc + 48, fb + 4, by, c),
                lambda: mfma32(a, acc + 64, fb + 8, bx, c)]
    for op in f2_read_ops(0): op()
    a("s_sub_u32 s7, s10, s84")
    a("s_waitcnt lgkmcnt(6)")
    for t in range(6): a(f"v_add_u32 v{TC+t}, s7, v{TC+t}")
    a("s_cmp_eq_u32 s9, 3")
    a("s_cselect_b32 s8, 6, 7")
    a("s_waitcnt vmcnt(0)")
    a(f"s_setprio {OPT['g2prio']}")
    a.lines.append(".p2align 6")
    a.label("f2_loop")
    for u in range(4):
        a("s_waitcnt vmcnt(10) lgkmcnt(0)")
        mm = mm5(FB2 + (u & 1) * 12, BB + u * 8, BB + u * 8 + 4, ACC2)
        interleave(a, mm, f2_read_ops(u + 1) + wd_dma_ops(u), [3, 3, 1, 1, 1])
        for op in h_ops(u): op()
    a("s_sub_u32 s8, s8, 1")
    a("s_cmp_lg_u32 s8, 0")
    a("s_cbranch_scc1 f2_loop")
    a(f"s_setprio {OPT['eprio']}")
    a("s_waitcnt vmcnt(0) lgkmcnt(0)")
    stamp(a, 9)
    wo_stage(1, 10)
    a("v_and_b32 v1, 31, v0")
    a("v_mul_u32_u24 v1, 1280, v1")
    a("v_lshrrev_b32 v12, 5, v0")
    a("v_lshl_add_u32 v1, v12, 3, v1")
    a("s_lshl_b32 s7, s9, 4")
    a("s_add_u32 s7, s7, s77")
    a(f"s_mul_i32 s8, s{sG}, {64*1280}")
    a("s_add_u32 s7, s7, s8")
    a(f"s_mul_i32 s8, s76, {32*1280}")
    a(f"s_sub_u32 s11, {32*1280}, s8")
    a("s_add_u32 s8, s8, s7")
    a("s_add_u32 s11, s11, s7")
    a("s_add_u32 s83, s79, s8")
    a("s_add_u32 s85, s79, s11")
    a("s_add_u32 s6, s80, s8")
    a("s_add_u32 s12, s80, s11")
    a("s_add_u32 s13, s81, s8")
    US = [83, 85, 6, 12, 13]
    XPR = [236, 238, 2, 4, 6]
    for u in range(5):
        a(f"buffer_load_dwordx2 {vr(XPR[u],2)}, v1, {S4(SRD_X)}, s{US[u]} offen")
    RA = 12
    def blk_off(u, d): return (u * 3 + (d - 1)) * 1024
    def red_write(acc, base, cnt, vt):
        a(f"v_lshlrev_b32 v{RA}, 4, v0")
        for d in range(1, 4):
            a(f"s_sub_u32 s7, s9, {d}")
            a("s_and_b32 s7, s7, 3")
            a("s_lshl_b32 s7, s7, 14")
            if base: a(f"s_add_u32 s7, s7, {base}")
            a(f"v_add_u32 v{RA+d}, s7, v{RA}")
        a(f"v_add_u32 v{RA}, s{10 if base else 84}, v{RA}")
        for u in range(5):
            for d in range(1, 4):
                a(f"ds_write_b128 v{RA}, {vr(acc+16*u+4*d,4)} offset:{blk_off(u,d)}")
        lds_signal(a, cnt, vt)
    def red_read(RR, cnt):
        lds_wait(a, cnt, 4, RR, 7)
        for u in range(5):
            for d in range(1, 4):
                a(f"ds_read_b128 {vr(RR+u*12+(d-1)*4,4)}, v{RA+d} offset:{blk_off(u,d)}")
    def red_sum(acc, RR, u):
        r = RR + u * 12
        for i in range(4):
            a(f"v_add_f32 v{r+i}, v{r+i}, v{r+4+i}")
            a(f"v_add_f32 v{r+8+i}, v{r+8+i}, v{acc+16*u+i}")
        for i in range(4):
            a(f"v_add_f32 v{r+i}, v{r+i}, v{r+8+i}")
    RR = 16
    red_write(ACC2, 0, C_G1, RR)
    red_read(RR, C_G1)
    lds_signal(a, C_F2, 76)
    GG = 240
    for u in range(5):
        red_sum(ACC2, RR, u)
        r = RR + u * 12
        for i in range(4): a(f"v_mul_f32 v{r+4+i}, {NL2E}, v{r+i}")
        for i in range(4): a(f"v_exp_f32 v{r+4+i}, v{r+4+i}")
        for i in range(4): a(f"v_add_f32 v{r+4+i}, 1.0, v{r+4+i}")
        for i in range(4): a(f"v_rcp_f32 v{r+4+i}, v{r+4+i}")
        a("s_nop 0")
        for i in range(4): a(f"v_mul_f32 v{r+i}, v{r+i}, v{r+4+i}")
        a(f"v_cvt_pk_bf16_f32 v{GG+2*u}, v{r}, v{r+1}")
        a(f"v_cvt_pk_bf16_f32 v{GG+2*u+1}, v{r+2}, v{r+3}")
    stamp(a, 10)
    ACC3 = 80
    def ob(k): return 16 + k * 8 if k < 8 else 220 + (k - 8) * 8
    a("v_min_u32 v12, 7, v0")
    a("v_lshlrev_b32 v12, 2, v12")
    a(f"s_lshl_b32 s7, s{sG}, 3")
    a(f"s_add_u32 s7, s7, s{sJ}")
    a("s_lshl_b32 s7, s7, 2")
    a("s_add_u32 s7, s7, s9")
    a("s_lshl_b32 s7, s7, 7")
    a(f"s_add_u32 s7, s7, {MB_O}")
    a(f"s_mul_i32 s82, s{sG}, {40*2048}")
    a(f"s_mul_i32 s8, s9, {10*2048}")
    a("s_add_u32 s82, s82, s8")
    a(f"s_add_u32 s82, s82, {WS_OF}")
    stamp(a, 11)
    a("s_setprio 0")
    flag_poll(a, 12, 7, 13, 8, sleep=OPT.get("osleep", 4))
    a("s_setprio 3")
    stamp(a, 12)
    for k in range(10):
        a(f"buffer_load_dwordx4 {vr(ob(k),4)}, v{vBX}, {S4(SRD_WS)}, s82 offen sc1")
        a(f"buffer_load_dwordx4 {vr(ob(k)+4,4)}, v{vBY}, {S4(SRD_WS)}, s82 offen sc1")
        a("s_add_u32 s82, s82, 2048")
    def wo_read_step(s5):
        for t in range(3):
            f = WF + s5 * 12 + 4 * t
            if s5 < 4:
                a(f"ds_read_b64_tr_b16 {vr(f,2)}, v{TC+t} offset:{s5*4096}")
                a(f"ds_read_b64_tr_b16 {vr(f+2,2)}, v{TC+t} offset:{s5*4096+8*192}")
            else:
                a(f"ds_read_b64_tr_b16 {vr(f,2)}, v{TD+t} offset:{16*192}")
                a(f"ds_read_b64_tr_b16 {vr(f+2,2)}, v{TD+t} offset:{4096+16*192}")
    for k in range(10):
        a(f"s_waitcnt vmcnt({18-2*k})" + (f" lgkmcnt({min(15, 24-6*(k-5))})" if k >= 5 else ""))
        for m in mm5(WF + (k % 5) * 12, ob(k), ob(k) + 4, ACC3, "0" if k == 0 else None): m()
        if k < 5: wo_read_step(k)
    RR = 160
    red_write(ACC3, L_RING, C_G2, 230)
    a("s_mov_b32 s78, 0xffff0000")
    for u in range(5):
        t = 16 + 8 * u
        x = XPR[u]
        a(f"v_lshlrev_b32 v{t}, 16, v{x}")
        a(f"v_and_b32 v{t+1}, s78, v{x}")
        a(f"v_lshlrev_b32 v{t+2}, 16, v{x+1}")
        a(f"v_and_b32 v{t+3}, s78, v{x+1}")
        a(f"v_lshlrev_b32 v{t+4}, 16, v{GG+2*u}")
        a(f"v_and_b32 v{t+5}, s78, v{GG+2*u}")
        a(f"v_lshlrev_b32 v{t+6}, 16, v{GG+2*u+1}")
        a(f"v_and_b32 v{t+7}, s78, v{GG+2*u+1}")
    red_read(RR, C_G2)
    for u in range(5):
        a(f"s_waitcnt lgkmcnt({12-3*u})")
        t = 16 + 8 * u
        r = RR + u * 12
        red_sum(ACC3, RR, u)
        for i in range(4):
            a(f"v_fmac_f32 v{t+i}, v{r+i}, v{t+4+i}")
        a(f"v_cvt_pk_bf16_f32 v{t+4}, v{t}, v{t+1}")
        a(f"v_cvt_pk_bf16_f32 v{t+5}, v{t+2}, v{t+3}")
        a(f"buffer_store_dwordx2 {vr(t+4,2)}, v1, {S4(SRD_OUT)}, s{US[u]} offen")

def build():
    a = Asm()
    hdr = open("cdna_kernels/" + NAME + ".s.ref").read().split("\n")
    head = [l for l in hdr if l.startswith(";") and "@launch" not in l]
    out = "\n".join(head) + "\n"
    out += f"; @launch grid=(256,1,1) block=(512,1,1) lds={LDS_TOTAL}\n"
    out += '.amdgcn_target "amdgcn-amd-amdhsa--gfx950"\n.text\n'
    a.lines += [f".globl {KNAME}", ".p2align 8", f".type {KNAME},@function"]
    a.label(KNAME)
    ln = emit_prologue(a)
    emit_role_a(a)
    emit_role_g(a, ln)
    a.label("k_end")
    stamp_flush(a)
    a.label("k_exit")
    a("s_endpgm")
    probs = check_hazards(a.lines)
    for p in probs: print(p, file=sys.stderr)
    out += a.text()
    out += f""".section .rodata,"a"
.p2align 6
.amdhsa_kernel {KNAME}
  .amdhsa_next_free_vgpr 256
  .amdhsa_next_free_sgpr 102
  .amdhsa_accum_offset 256
  .amdhsa_group_segment_fixed_size 0
  .amdhsa_kernarg_size 96
  .amdhsa_user_sgpr_count 2
  .amdhsa_user_sgpr_kernarg_segment_ptr 1
  .amdhsa_system_sgpr_workgroup_id_x 1
.end_amdhsa_kernel
"""
    return out

if __name__ == "__main__":
    path = sys.argv[1] if len(sys.argv) > 1 else "cdna_kernels/" + NAME + ".s"
    for kv in sys.argv[2:]:
        k, v = kv.split("=")
        OPT[k] = int(v)
    open(path, "w").write(build())
```

```python
import sys, struct, os
from asmlib import *

NAME = "recurrent_scan__grouped_kv_mqa__swiglu_ffn__prompt"
KNAME = NAME + "_kernel"
S, D, H, DH, F = 2048, 640, 32, 20, 1728
WS_EPOCH = 0
FL_KV = 0x1000
MB_H = 0x80000
MB_O = 0xA0000
MB_Q = 0xC0000
WS_QG = 0x60000
WS_QGB = 0xC00000
WS_KV = 0x10000
WS_OF = 0x800000
WS_STAMP = 0xB00000
WS_HF = 0x100000
WS_SIZE = 0xC00000 + 32 * 81920
KVT = 3584
OOB = 0x7f000000
POLL_CAP = 3000

OPT = dict(stamp=False, touch=True, aprio=1, gprio=2, eprio=2, mapping=3, codetouch=True, kvsleep=16, g2prio=0, kvprio=3, ldprio=3, f1hi=0, clus=1)

def f32bits(x): return struct.unpack("<I", struct.pack("<f", x))[0]
QSCALE = (DH ** -0.5) * 1.4426950408889634
NL2E = hex(f32bits(-1.4426950408889634))

sWV, sG, sJ = 3, 4, 5
sTAG = 15
sRB = 85
sIDX = 14
P_X, P_WQ, P_WK, P_WV, P_WO, P_BX, P_WG, P_WU, P_WD, P_OUT, P_DBG, P_WS = [16 + 2 * i for i in range(12)]
SRD_X, SRD_WQ, SRD_WKV, SRD_WO, SRD_WG, SRD_WU, SRD_WD, SRD_OUT, SRD_WS = 40, 44, 48, 52, 56, 60, 64, 68, 72
sE = 84
L_XN = 0
L_RING = 81920
L_WKV = 147456
L_CNT = 162816
L_H = 0
L_EXT = 32768
LDS_TOTAL = 163840
C_F1, C_A1, C_G1, C_G2, C_A2, C_BAD, C_KVD, C_QR, C_F2, C_WKV = 0, 4, 8, 12, 16, 20, 24, 28, 32, 36
SRD_KVR = SRD_WKV
SRD_H = SRD_WQ

def S4(b): return f"s[{b}:{b+3}]"
def srd(a, dst, ptr, nbytes):
    a(f"s_mov_b32 s{dst}, s{ptr}")
    a(f"s_mov_b32 s{dst+1}, s{ptr+1}")
    a(f"s_mov_b32 s{dst+2}, {nbytes}")
    a(f"s_mov_b32 s{dst+3}, 0x20000")

NST = 14
def stamp(a, i):
    if not OPT["stamp"]: return
    a("s_memtime s[98:99]")
    a("s_waitcnt lgkmcnt(0)")
    a(f"s_mov_b32 s{STR[i]}, s98")
STR = [86+i for i in range(10)] + [26, 27, 100, 101]
def stamp_head(a):
    if not OPT["stamp"]: return
    for i in range(NST): a(f"s_mov_b32 s{STR[i]}, 0")
    a("s_memrealtime s[96:97]")
    stamp(a, 0)
def stamp_flush(a):
    if not OPT["stamp"]: return
    stamp(a, NST-1)
    a("s_memrealtime s[98:99]")
    a("s_waitcnt lgkmcnt(0)")
    a("s_mov_b32 s97, s98")
    a("s_lshl_b32 s98, s2, 3")
    a(f"s_add_u32 s98, s98, s{sWV}")
    a("s_lshl_b32 s98, s98, 6")
    a(f"s_add_u32 s98, s98, {WS_STAMP}")
    a("s_mov_b64 exec, 1")
    a("v_mov_b32 v0, 0")
    for i, r in enumerate(STR + [96, 97]): a(f"v_mov_b32 v{4+i}, s{r}")
    for q in range(4):
        a(f"buffer_store_dwordx4 v[{4+4*q}:{7+4*q}], v0, {S4(SRD_WS)}, s98 offen offset:{16*q}")
    if OPT.get("dbgout"):
        srd(a, SRD_X, P_DBG, 256)
        a("v_not_b32 v20, v18")
        a(f"buffer_atomic_umax v19, v0, {S4(SRD_X)}, 0 offen")
        a(f"buffer_atomic_umax v20, v0, {S4(SRD_X)}, 0 offen offset:4")
        a(f"buffer_atomic_umax v18, v0, {S4(SRD_X)}, 0 offen offset:8")
        a(f"s_lshl_b32 s98, s2, 3")
        a(f"s_add_u32 s98, s98, s{sWV}")
        a(f"s_cmp_lg_u32 s98, {OPT['dbgout']}")
        a("s_cbranch_scc1 k_exit")
        for i in range(1, 14):
            a(f"v_sub_u32 v{4+i}, v{4+i}, v4")
            a(f"buffer_store_dword v{4+i}, v0, {S4(SRD_X)}, 0 offen offset:{8+4*i}")

def mfma32(a, d, A, B, c=None):
    a(f"v_mfma_f32_32x32x16_bf16 {vr(d,16)}, {vr(A,4)}, {vr(B,4)}, {vr(d,16) if c is None else c}")
def mfma32x8(a, d, A, B, c=None):
    a(f"v_mfma_f32_32x32x8_bf16 {vr(d,16)}, {vr(A,2)}, {vr(B,2)}, {vr(d,16) if c is None else c}")
def mfma16(a, d, A, B, c=None):
    a(f"v_mfma_f32_16x16x32_bf16 {vr(d,4)}, {vr(A,4)}, {vr(B,4)}, {vr(d,4) if c is None else c}")

def interleave(a, main, side, per):
    k = 0
    for i, m in enumerate(main):
        m()
        for _ in range(per[i]):
            if k < len(side):
                side[k](); k += 1
    while k < len(side):
        side[k](); k += 1

def lds_signal(a, cnt, vt):
    a("s_waitcnt lgkmcnt(0)")
    a(f"v_mov_b32 v{vt}, {L_CNT + cnt}")
    a(f"v_mov_b32 v{vt+1}, 1")
    a("s_mov_b64 exec, 1")
    a(f"ds_add_u32 v{vt}, v{vt+1}")
    a("s_mov_b64 exec, -1")
def lds_wait(a, cnt, target, vt, st, sleep=1):
    L = a.newlabel("lw"); Dn = a.newlabel("lwd")
    a(f"v_mov_b32 v{vt}, {L_CNT + cnt}")
    a(f"s_mov_b32 s{st+1}, 0x40000")
    a.label(L)
    a(f"ds_read_b32 v{vt+1}, v{vt}")
    a("s_waitcnt lgkmcnt(0)")
    a(f"v_readfirstlane_b32 s{st}, v{vt+1}")
    a(f"s_cmp_ge_u32 s{st}, {target}")
    a(f"s_cbranch_scc1 {Dn}")
    a(f"s_sleep {sleep}")
    a(f"s_sub_u32 s{st+1}, s{st+1}, 1")
    a(f"s_cmp_lg_u32 s{st+1}, 0")
    a(f"s_cbranch_scc1 {L}")
    a.label(Dn)

def flag_set(a, soff, vt):
    a(f"v_mov_b32 v{vt}, 0")
    a(f"v_mov_b32 v{vt+1}, s{sTAG}")
    a("s_waitcnt vmcnt(0)")
    a("s_mov_b64 exec, 1")
    a(f"buffer_store_dword v{vt+1}, v{vt}, {S4(SRD_WS)}, s{soff} offen sc1")
    a("s_mov_b64 exec, -1")
def flag_bcast(a, vaddr, soff, nl, vt):
    a(f"v_mov_b32 v{vt}, s{sTAG}")
    a("s_waitcnt vmcnt(0)")
    a(f"s_mov_b64 exec, {hex((1 << nl) - 1)}")
    a(f"buffer_store_dword v{vt}, v{vaddr}, {S4(SRD_WS)}, s{soff} offen sc1")
    a("s_mov_b64 exec, -1")
def flag_poll(a, vaddr, soff, vt, st, two=False, sleep=2):
    L = a.newlabel("fp"); Dn = a.newlabel("fpd")
    a(f"s_mov_b32 s{st}, {POLL_CAP}")
    a.label(L)
    if two:
        a(f"buffer_load_dwordx2 {vr(vt,2)}, v{vaddr}, {S4(SRD_WS)}, s{soff} offen sc1")
        a("s_waitcnt vmcnt(0)")
        a(f"v_xor_b32 v{vt}, s{sTAG}, v{vt}")
        a(f"v_xor_b32 v{vt+1}, s{sTAG}, v{vt+1}")
        a(f"v_or_b32 v{vt}, v{vt}, v{vt+1}")
        a(f"v_cmp_ne_u32 vcc, 0, v{vt}")
    else:
        a(f"buffer_load_dword v{vt}, v{vaddr}, {S4(SRD_WS)}, s{soff} offen sc1")
        a("s_waitcnt vmcnt(0)")
        a(f"v_cmp_ne_u32 vcc, s{sTAG}, v{vt}")
    a(f"s_cbranch_vccz {Dn}")
    a(f"s_sleep {sleep}")
    a(f"s_sub_u32 s{st}, s{st}, 1")
    a(f"s_cmp_lg_u32 s{st}, 0")
    a(f"s_cbranch_scc1 {L}")
    a.label(Dn)

def xn_read_addrs(a, XA, tmp):
    a(f"v_lshrrev_b32 v{tmp}, 5, v0")
    for m in range(4):
        a(f"v_or_b32 v{XA+m}, {2*m}, v{tmp}")
        a(f"v_xor_b32 v{XA+m}, v{XA+m}, v0")
        a(f"v_lshlrev_b32 v{XA+m}, 4, v{XA+m}")

NSQ = 12
OPT_SCHED_A1 = {7: 2, 8: 2, 9: 3}; OPT_SCHED_A2 = {}
OPT_SCHED_G1 = {9: 4}; OPT_SCHED_G2 = {i: 1 for i in range(10)}
QREG = 144
def qslot(n): return n * 1024
vQO = 15

def emit_prologue(a):
    a("s_cmp_ge_u32 s2, 256")
    a("s_cbranch_scc1 k_exit")
    a("s_load_dwordx16 s[16:31], s[0:1], 0")
    a("s_load_dwordx8 s[32:39], s[0:1], 64")
    a("v_lshrrev_b32 v1, 6, v0")
    a("v_and_b32 v0, 63, v0")
    a(f"v_readfirstlane_b32 s{sWV}, v1")
    if OPT["mapping"] == 3:
        a("s_bfe_u32 s6, s2, 0x20001")
        a("s_lshl_b32 s6, s6, 3")
        a(f"s_bfe_u32 s{sIDX}, s2, 0x30003")
        a(f"s_add_u32 s{sG}, s6, s{sIDX}")
        a("s_and_b32 s6, s2, 1")
        a("s_lshl_b32 s6, s6, 2")
        a("s_lshr_b32 s7, s2, 6")
        a(f"s_add_u32 s{sJ}, s6, s7")
    else:
        raise ValueError
    a("v_lshrrev_b32 v10, 3, v0")
    a("v_and_b32 v11, 7, v0")
    a("v_mul_u32_u24 v12, 1280, v10")
    a("v_lshl_add_u32 v13, v11, 4, v12")
    if OPT.get("rot", 1):
        a(f"s_add_u32 s{sRB}, s{sWV}, s{sJ}")
        a(f"s_and_b32 s{sRB}, s{sRB}, 7")
    else:
        a(f"s_mov_b32 s{sRB}, s{sWV}")
    a(f"s_lshl_b32 s6, s{sG}, 3")
    a(f"s_add_u32 s6, s6, s{sRB}")
    a(f"s_mul_i32 s6, s6, {8*1280}")
    if OPT["codetouch"]:
        a(f"s_cmp_lg_u32 s{sWV}, 1")
        a("s_cbranch_scc1 ct_skip")
        a("s_getpc_b64 s[76:77]")
        a("s_and_b32 s76, s76, 0xffffff00")
        a("s_lshr_b32 s7, s2, 3")
        a("s_lshl_b32 s7, s7, 10")
        a("v_min_u32 v8, 7, v0")
        a("v_lshl_add_u32 v8, v8, 7, s7")
        a(f"v_min_u32 v8, code_end-{KNAME}-4, v8")
        a("global_load_dword v59, v8, s[76:77]")
        a.label("ct_skip")
    a("s_waitcnt lgkmcnt(0)")
    srd(a, SRD_X, P_X, S * D * 2)
    XR, DD = 16, 64
    vP, vSum, vSq = 2, 4, 6
    a(f"buffer_load_ushort v{vP}, v12, {S4(SRD_X)}, s6 offen")
    for i in range(10):
        a(f"buffer_load_dwordx4 {vr(XR+4*i,4)}, v13, {S4(SRD_X)}, s6 offen offset:{i*128}")
    a(f"s_load_dword s{sE}, s[{P_WS}:{P_WS+1}], {WS_EPOCH}")
    stamp_head(a)
    srd(a, SRD_WQ, P_WQ, D * D * 2)
    srd(a, SRD_WS, P_WS, WS_SIZE)
    srd(a, SRD_WG, P_WG, D * F * 2)
    srd(a, SRD_WU, P_WU, D * F * 2)
    srd(a, SRD_WD, P_WD, F * D * 2)
    srd(a, SRD_WO, P_WO, D * D * 2)
    srd(a, SRD_OUT, P_OUT, S * D * 2)
    a(f"s_and_b32 s6, s{sJ}, 1")
    a("s_cmp_eq_u32 s6, 0")
    a(f"s_cselect_b32 s{SRD_WKV}, s{P_WK}, s{P_WV}")
    a(f"s_cselect_b32 s{SRD_WKV+1}, s{P_WK+1}, s{P_WV+1}")
    a(f"s_mov_b32 s{SRD_WKV+2}, {D*DH*2}")
    a(f"s_mov_b32 s{SRD_WKV+3}, 0x20000")
    a(f"v_mov_b32 v{vSum}, 0\nv_mov_b32 v{vSum+1}, 0\nv_mov_b32 v{vSq}, 0\nv_mov_b32 v{vSq+1}, 0")
    a("s_mov_b32 s12, 0xffff0000")
    a("v_lshlrev_b32 v14, 4, v0")
    a(f"s_and_b32 s9, s{sWV}, 3")
    a("s_lshl_b32 s10, s9, 14")
    a(f"s_add_u32 s10, s10, {L_RING}")
    a(f"s_cmp_ge_u32 s{sWV}, 4")
    a("s_cbranch_scc1 pro_g")

    def ln(role, side=None, sched1=None, sched2=None):
        if role == "A":
            side = []
            if OPT["touch"]:
                side.append(lambda: touch_lin(a, SRD_WG, 8640, 17, 9, 56))
                side.append(lambda: touch_lin(a, SRD_WU, 8640, 17, 9, 57))
                side.append(lambda: touch_lin(a, SRD_WQ, 3200, 7, 9, 58))
            sched1 = {OPT.get("tpos", 9): 3}; sched2 = {}
        issued = [0]
        def do_side(n):
            for _ in range(n):
                if issued[0] < len(side):
                    side[issued[0]](); issued[0] += 1
        do_side(sched1.get(-1, 0))
        a(f"s_waitcnt vmcnt({10 + issued[0]})")
        stamp(a, 1)
        a(f"v_lshlrev_b32 v{vP}, 16, v{vP}")
        for i in range(10):
            a(f"s_waitcnt vmcnt({9-i + issued[0]})")
            for e in range(4):
                d = DD + 8 * i + 2 * e
                a(f"v_lshlrev_b32 v{d}, 16, v{XR+4*i+e}")
                a(f"v_and_b32 v{d+1}, s12, v{XR+4*i+e}")
            for e in range(4):
                d = DD + 8 * i + 2 * e
                a(f"v_pk_add_f32 {vr(d,2)}, {vr(d,2)}, {vr(vP,2)} op_sel_hi:[1,0] neg_lo:[0,1] neg_hi:[0,1]")
            for e in range(4):
                d = DD + 8 * i + 2 * e
                a(f"v_pk_add_f32 {vr(vSum,2)}, {vr(vSum,2)}, {vr(d,2)}")
                a(f"v_pk_fma_f32 {vr(vSq,2)}, {vr(d,2)}, {vr(d,2)}, {vr(vSq,2)}")
            do_side(sched1.get(i, 0))
        stamp(a, 2)
        a(f"v_add_f32 v{vSum}, v{vSum}, v{vSum+1}")
        a(f"v_add_f32 v{vSq}, v{vSq}, v{vSq+1}")
        for ctl in ("quad_perm:[1,0,3,2]", "quad_perm:[2,3,0,1]", "row_half_mirror"):
            a("s_nop 1")
            a(f"v_add_f32_dpp v{vSum}, v{vSum}, v{vSum} {ctl} row_mask:0xf bank_mask:0xf")
            a(f"v_add_f32_dpp v{vSq}, v{vSq}, v{vSq} {ctl} row_mask:0xf bank_mask:0xf")
        inv = f32bits(1.0 / D)
        a(f"v_mul_f32 v{vSum}, {hex(inv)}, v{vSum}")
        a(f"v_mul_f32 v{vSq}, {hex(inv)}, v{vSq}")
        a(f"v_fma_f32 v{vSq}, -v{vSum}, v{vSum}, v{vSq}")
        a(f"v_max_f32 v{vSq}, 0, v{vSq}")
        a(f"v_add_f32 v{vSq}, {hex(f32bits(1e-5))}, v{vSq}")
        a(f"v_rsq_f32 v{vSq}, v{vSq}")
        a(f"s_and_b32 s7, s{sRB}, 3")
        a("s_lshl_b32 s7, s7, 3")
        a(f"v_mul_f32 v{vSum}, v{vSum}, v{vSq}")
        a("v_add_u32 v8, s7, v10")
        a("v_and_b32 v9, 1, v11")
        a("v_lshl_add_u32 v8, v9, 5, v8")
        a("v_xor_b32 v8, v8, v11")
        a("v_lshlrev_b32 v8, 4, v8")
        a("v_lshrrev_b32 v9, 1, v11")
        a("v_lshl_add_u32 v8, v9, 11, v8")
        a(f"s_lshr_b32 s7, s{sRB}, 2")
        a("s_lshl_b32 s7, s7, 10")
        a("v_add_u32 v8, s7, v8")
        a("v_add_u32 v9, 0x10000, v8")
        for i in range(10):
            for e in range(4):
                d = DD + 8 * i + 2 * e
                a(f"v_pk_fma_f32 {vr(d,2)}, {vr(d,2)}, {vr(vSq,2)}, {vr(vSum,2)} op_sel_hi:[1,0,0] neg_lo:[0,0,1] neg_hi:[0,0,1]")
            for e in range(4):
                d = DD + 8 * i + 2 * e
                a(f"v_cvt_pk_bf16_f32 v{XR+4*i+e}, v{d}, v{d+1}")
            off = i * 8192
            a(f"ds_write_b128 v{8 if off < 65536 else 9}, {vr(XR+4*i,4)} offset:{L_XN + off % 65536}")
            do_side(sched2.get(i, 0))
        if role == "A":
            a("v_lshlrev_b32 v8, 2, v0")
            a(f"v_add_u32 v8, {L_CNT}, v8")
            a("v_mov_b32 v9, 0")
            a("ds_write_b32 v8, v9")
            assert issued[0] == len(side)
        a("s_waitcnt lgkmcnt(0)")
        a(f"s_add_u32 s{sE}, s{sE}, 1")
        a(f"s_mul_i32 s{sTAG}, s{sE}, 0x9e3779b1")
        a(f"s_or_b32 s{sTAG}, s{sTAG}, 1")
        stamp(a, 3)
        a("s_barrier")
        do_side(99)
    ln("A")
    return ln

def emit_kv(a):
    vW0, vW1, vXE, vXO, vXE2, vXO2 = 1, 2, 3, 4, 5, 6
    ACC = 112
    FB = 16
    def wdma(first, n):
        for i in range(n):
            a(f"s_mov_b32 m0, {L_WKV + i*1024}")
            a(f"s_mov_b32 s7, {first + i*1024}")
            a(f"buffer_load_dwordx4 v14, {S4(SRD_WKV)}, s7 offen lds")
    wdma(0, 15)
    a("v_lshrrev_b32 v10, 4, v0")
    a("v_bfe_u32 v11, v0, 2, 2")
    a("v_lshl_add_u32 v11, v10, 3, v11")
    a("v_mul_u32_u24 v11, 40, v11")
    a("v_and_b32 v12, 3, v0")
    a("v_lshl_add_u32 v12, v12, 3, v11")
    a(f"v_add_u32 v{vW0}, {L_WKV}, v12")
    a(f"v_add_u32 v{vW1}, {L_WKV + 32}, v11")
    a(f"s_lshr_b32 s9, s{sJ}, 1")
    a("s_and_b32 s10, s9, 1")
    a("s_lshr_b32 s11, s9, 1")
    a("s_lshl_b32 s12, s10, 4")
    a("v_and_b32 v13, 15, v0")
    a("v_add_u32 v13, s12, v13")
    a("v_and_b32 v15, 1, v10")
    a("v_lshl_add_u32 v15, v15, 5, v13")
    a("v_xor_b32 v15, v15, v10")
    a("v_lshrrev_b32 v7, 1, v10")
    a("v_lshlrev_b32 v7, 11, v7")
    a("s_lshl_b32 s12, s11, 10")
    a("v_add_u32 v7, s12, v7")
    a(f"v_lshl_add_u32 v{vXE}, v15, 4, v7")
    a("v_xor_b32 v15, 4, v15")
    a(f"v_lshl_add_u32 v{vXO}, v15, 4, v7")
    a(f"v_add_u32 v{vXE2}, 0x10000, v{vXE}")
    a(f"v_add_u32 v{vXO2}, 0x10000, v{vXO}")
    def reads(b):
        for t in range(2):
            s = 2 * b + t
            fb = FB + (b & 1) * 24 + t * 12
            wo = (s if s < 12 else s - 12) * 1280
            a(f"ds_read_b64_tr_b16 {vr(fb,2)}, v{vW0} offset:{wo}")
            a(f"ds_read_b64_tr_b16 {vr(fb+2,2)}, v{vW0} offset:{wo+160}")
            a(f"ds_read_b64_tr_b16 {vr(fb+4,2)}, v{vW1} offset:{wo}")
            a(f"ds_read_b64_tr_b16 {vr(fb+6,2)}, v{vW1} offset:{wo+160}")
            off = L_XN + s * 4096
            reg = (vXO if s & 1 else vXE) if off < 65536 else (vXO2 if s & 1 else vXE2)
            a(f"ds_read_b128 {vr(fb+8,4)}, v{reg} offset:{off % 65536}")
    a(f"s_and_b32 s6, s{sJ}, 1")
    a("s_cmp_eq_u32 s6, 1")
    a("s_waitcnt vmcnt(0)")
    a("s_cbranch_scc1 kv_v")
    for kv in (0, 1):
        if kv: a.label("kv_v")
        reads(0)
        for b in range(10):
            if b == 5:
                a("s_waitcnt lgkmcnt(0)")
                wdma(12 * 1280, 10)
            elif b < 9:
                reads(b + 1)
                a("s_waitcnt lgkmcnt(10)")
            else:
                a("s_waitcnt lgkmcnt(0)")
            for t in range(2):
                fb = FB + (b & 1) * 24 + t * 12
                c = "0" if (b == 0 and t == 0) else None
                for ct in range(2):
                    if kv == 0: mfma16(a, ACC + 4 * ct, fb + 4 * ct, fb + 8, c)
                    else:       mfma16(a, ACC + 4 * ct, fb + 8, fb + 4 * ct, c)
            if b == 5:
                a("s_waitcnt vmcnt(0)")
                reads(6)
        a(f"s_lshl_b32 s12, s{sG}, 1")
        a("s_add_u32 s12, s12, s11")
        a(f"s_mul_i32 s12, s12, {KVT}")
        a(f"s_add_u32 s12, s12, {WS_KV}")
        if kv == 0:
            a("v_lshrrev_b32 v2, 1, v10")
            a("v_lshl_add_u32 v2, v2, 5, v13")
            a("v_lshlrev_b32 v2, 4, v2")
            a("v_and_b32 v3, 1, v10")
            a("v_lshl_add_u32 v2, v3, 3, v2")
            a("v_lshl_add_u32 v3, v10, 5, v13")
            a("v_lshlrev_b32 v3, 3, v3")
            a("v_add_u32 v3, 3072, v3")
            a(f"v_mov_b32 v4, {OOB}")
            a("v_cmp_lt_u32 vcc, 1, v10")
            a("s_nop 1")
            a("v_cndmask_b32 v3, v3, v4, vcc")
            a(f"v_cvt_pk_bf16_f32 v6, v{ACC}, v{ACC+1}")
            a(f"v_cvt_pk_bf16_f32 v7, v{ACC+2}, v{ACC+3}")
            a(f"v_cvt_pk_bf16_f32 v8, v{ACC+4}, v{ACC+5}")
            a(f"v_cvt_pk_bf16_f32 v9, v{ACC+6}, v{ACC+7}")
            a("v_cmp_eq_u32 vcc, 1, v10")
            a("v_mov_b32 v4, 0x3f803f80")
            a("v_mov_b32 v5, 0x00003f80")
            a("v_cndmask_b32 v8, v8, v4, vcc")
            a("v_cndmask_b32 v9, v9, v5, vcc")
            a("s_branch kv_store")
        else:
            a("v_and_b32 v1, 15, v0")
            a("v_and_b32 v4, 1, v10")
            a("v_lshl_add_u32 v2, v4, 5, v1")
            a("v_lshlrev_b32 v2, 4, v2")
            a("v_lshrrev_b32 v4, 1, v10")
            a("v_lshl_add_u32 v2, v4, 3, v2")
            a("s_lshl_b32 s13, s10, 10")
            a("s_add_u32 s13, s13, 1024")
            a("v_add_u32 v2, s13, v2")
            a("v_add_u32 v3, 256, v2")
            a(f"v_cvt_pk_bf16_f32 v6, v{ACC}, v{ACC+1}")
            a(f"v_cvt_pk_bf16_f32 v7, v{ACC+2}, v{ACC+3}")
            a(f"v_cvt_pk_bf16_f32 v8, v{ACC+4}, v{ACC+5}")
            a(f"v_cvt_pk_bf16_f32 v9, v{ACC+6}, v{ACC+7}")
            a("v_cmp_eq_u32 vcc, 4, v1")
            a("v_mov_b32 v4, 0x3f803f80")
            a("v_mov_b32 v5, 0")
            a("v_cndmask_b32 v4, v5, v4, vcc")
            a("v_cmp_lt_u32 vcc, 3, v1")
            a("s_nop 1")
            a("v_cndmask_b32 v8, v8, v4, vcc")
            a("v_cndmask_b32 v9, v9, v4, vcc")
    a.label("kv_store")
    a(f"buffer_store_dwordx2 v[6:7], v2, {S4(SRD_WS)}, s12 offen sc1")
    a(f"buffer_store_dwordx2 v[8:9], v3, {S4(SRD_WS)}, s12 offen sc1")
    lds_signal(a, C_F1, 10)
    a(f"s_lshl_b32 s12, s{sG}, 3")
    a(f"s_add_u32 s12, s12, s{sJ}")
    a("s_lshl_b32 s12, s12, 2")
    a(f"s_add_u32 s12, s12, {FL_KV}")
    flag_set(a, 12, 10)

def touch_lin(a, srd_, per_cu, nl, part, dst):
    a(f"v_min_u32 v8, {nl-1}, v0")
    a("v_lshlrev_b32 v8, 7, v8")
    a(f"s_mul_i32 s7, s2, {per_cu}")
    if part is not None:
        a(f"s_mul_i32 s8, s{part}, {nl*128}")
        a("s_add_u32 s7, s7, s8")
    a(f"buffer_load_dword v{dst}, v8, {S4(srd_)}, s7 offen")

def emit_late_touch(a):
    if not OPT["touch"]: return
    a(f"s_and_b32 s6, s{sWV}, 1")
    a("s_waitcnt vmcnt(0)")
    a(f"s_sleep {OPT.get('ltsleep', 32)}")
    touch_lin(a, SRD_WD, 8640, 34, 6, 57)
    touch_lin(a, SRD_WO, 3200, 13, 6, 58)

def emit_role_a(a):
    NQ = 8
    OA, QF, SB, KB = 128, 80, 48, 16
    v16, v8 = 2, 3
    a(f"s_cmp_ge_u32 s{sWV}, 2")
    a("s_cbranch_scc1 a_touch")
    a(f"s_cmp_eq_u32 s{sWV}, 1")
    a("s_cbranch_scc1 a_join")
    a(f"s_setprio {OPT['kvprio']}")
    emit_kv(a)
    a("s_setprio 0")
    a("s_branch a_join")
    a.label("a_touch")
    emit_late_touch(a)
    a.label("a_join")
    stamp(a, 4)
    a(f"s_mov_b32 s{SRD_KVR}, s{P_WS}")
    a(f"s_mov_b32 s{SRD_KVR+1}, s{P_WS+1}")
    a(f"s_mul_i32 s{SRD_KVR+2}, s{sWV}, {16*KVT}")
    a(f"s_add_u32 s{SRD_KVR+2}, s{SRD_KVR+2}, {WS_KV + 16*KVT}")
    a(f"v_lshlrev_b32 v{v16}, 4, v0")
    a(f"v_lshlrev_b32 v{v8}, 3, v0")
    a("s_waitcnt vmcnt(0)")
    for i in range(NQ * 16): a(f"v_mov_b32 v{OA+i}, 0")
    for i in range(16): a(f"v_mov_b32 v{SB+16+i}, 0")
    for i in range(16): a(f"v_mov_b32 v{KB+16+i}, 0")
    lds_wait(a, C_F1, OPT.get("f1wait", 2), 10, 8, sleep=8)
    a("s_setprio 3")
    stamp(a, 1)
    a(f"s_lshl_b32 s6, s{sWV}, 8")
    a(f"s_add_u32 s6, s6, {FL_KV}")
    a("v_lshlrev_b32 v4, 2, v0")
    flag_poll(a, 4, 6, 5, 7, sleep=OPT["kvsleep"])
    stamp(a, 2)
    a(f"s_mul_i32 s7, s{sWV}, {16*KVT}")
    a(f"s_add_u32 s7, s7, {WS_KV}")
    def kvload(b):
        kb = KB + 16 * b
        a(f"buffer_load_dwordx4 {vr(kb,4)}, v{v16}, {S4(SRD_KVR)}, s7 offen sc1")
        a(f"buffer_load_dwordx2 {vr(kb+12,2)}, v{v8}, {S4(SRD_KVR)}, s7 offen offset:3072 sc1")
        a(f"buffer_load_dwordx4 {vr(kb+4,4)}, v{v16}, {S4(SRD_KVR)}, s7 offen offset:1024 sc1")
        a(f"buffer_load_dwordx4 {vr(kb+8,4)}, v{v16}, {S4(SRD_KVR)}, s7 offen offset:2048 sc1")
        a(f"s_add_u32 s7, s7, {KVT}")
    kvload(0)
    if OPT["stamp"]: a("s_waitcnt vmcnt(0)")
    stamp(a, 3)
    a("v_and_b32 v6, 31, v0")
    a("v_lshlrev_b32 v6, 4, v6")
    a("v_lshrrev_b32 v7, 5, v0")
    a("v_lshl_add_u32 v7, v7, 9, v6")
    a(f"v_mov_b32 v8, {OOB}")
    a("v_cmp_gt_u32 vcc, 32, v0")
    a(f"s_mul_i32 s6, s{sJ}, 80")
    a("s_add_u32 s8, s6, 79")
    a("s_lshr_b32 s6, s6, 7")
    a("s_lshr_b32 s8, s8, 7")
    a("v_cndmask_b32 v6, v8, v6, vcc")
    a("v_mov_b32 v4, s6")
    a("v_mov_b32 v5, s8")
    a("v_cndmask_b32 v4, v4, v5, vcc")
    a("v_lshlrev_b32 v4, 2, v4")
    a(f"s_lshl_b32 s6, s{sG}, 3")
    a(f"s_add_u32 s6, s6, s{sJ}")
    a("s_lshl_b32 s6, s6, 2")
    a(f"s_add_u32 s6, s6, s{sWV}")
    a("s_lshl_b32 s6, s6, 7")
    a(f"s_add_u32 s6, s6, {MB_Q}")
    flag_poll(a, 4, 6, 5, 8, sleep=OPT.get("qsleep", 4))
    stamp(a, 5)
    for d in range(4):
        a(f"s_add_u32 s8, s{sWV}, {d}")
        a("s_and_b32 s8, s8, 3")
        a(f"s_lshl_b32 s6, s{sJ}, 2")
        a("s_add_u32 s8, s8, s6")
        a("s_and_b32 s9, s8, 1")
        a("s_mul_i32 s8, s8, 5")
        a("s_lshr_b32 s8, s8, 1")
        a("s_lshl_b32 s8, s8, 9")
        a(f"s_mul_i32 s6, s{sG}, 81920")
        a("s_add_u32 s8, s8, s6")
        a(f"s_add_u32 s8, s8, {WS_QGB}")
        a("s_lshl_b32 s10, s9, 3")
        a("s_add_u32 s10, s10, s8")
        a("s_mul_i32 s11, s9, 504")
        a("s_add_u32 s11, s11, s8")
        a("s_add_u32 s11, s11, 8")
        for rt in range(2):
            t = 2 * d + rt
            if rt:
                a("s_add_u32 s10, s10, 40960")
                a("s_add_u32 s11, s11, 40960")
            a(f"buffer_load_dwordx2 {vr(QF+4*t,2)}, v7, {S4(SRD_WS)}, s10 offen sc1")
            a(f"buffer_load_dwordx2 {vr(QF+4*t+2,2)}, v7, {S4(SRD_WS)}, s11 offen sc1")
            a(f"buffer_load_dwordx2 {vr(QF+32+2*t,2)}, v6, {S4(SRD_WS)}, s10 offen offset:1024 sc1")
    lds_signal(a, C_QR, 10)
    a(f"s_setprio {OPT['aprio']}")
    a("s_waitcnt vmcnt(0) lgkmcnt(0)")
    def qk0(n):
        b = (n // NQ) & 1; qt = n % NQ
        mfma32(a, SB + 16 * (n & 1), KB + 16 * b, QF + 4 * qt, "0")
    def qk1(n):
        b = (n // NQ) & 1; qt = n % NQ
        mfma32x8(a, SB + 16 * (n & 1), KB + 16 * b + 12, QF + 32 + 2 * qt)
    def pv(n, t):
        b = (n // NQ) & 1; qt = n % NQ
        mfma32(a, OA + 16 * qt, KB + 16 * b + 4 + 4 * t, SB + 16 * (n & 1) + 4 * t)
    stamp(a, 6)
    qk0(0); qk1(0)
    a("s_nop 7"); a("s_nop 3")
    a("s_mov_b32 s8, 8")
    a.lines.append(".p2align 6")
    a.label("att_loop")
    for n in range(2 * NQ):
        s = SB + 16 * (n & 1)
        def e(i): a(f"v_exp_f32 v{s+i}, v{s+i}")
        def c(i): a(f"v_cvt_pk_bf16_f32 v{s+i}, v{s+2*i}, v{s+2*i+1}")
        e(0); e(1)
        pv((n - 1) % (2 * NQ), 1)
        if n % NQ == 0 and not OPT.get("nokvload"):
            if OPT["ldprio"]: a(f"s_setprio {OPT['ldprio']}")
            kvload(((n // NQ) + 1) & 1)
            if OPT["ldprio"]: a(f"s_setprio {OPT['aprio']}")
        V = [("e",2),("e",3),("c",0),("c",1),("e",4),("e",5),("e",6),("e",7),("c",2),("c",3),("e",8),("e",9),("e",10),("e",11),("c",4),("c",5),("e",12),("e",13),("e",14),("e",15),("c",6),("c",7)]
        p1, p2, p3 = {0: (5, 11, 17), 1: (4, 7, 12), 2: (3, 7, 12), 3: (4, 8, 12)}[OPT.get("clus", 0)]
        for i, (k, r) in enumerate(V):
            if i == p1:
                if (n + 1) % NQ == 0 and not OPT.get("nokvwait"):
                    a("s_waitcnt vmcnt(0)")
                qk0(n + 1)
            if i == p2: qk1(n + 1)
            if i == p3: pv(n, 0)
            (e if k == "e" else c)(r)
    a("s_sub_u32 s8, s8, 1")
    a("s_cmp_lg_u32 s8, 0")
    a("s_cbranch_scc1 att_loop")
    pv(2 * NQ - 1, 1)
    stamp(a, 7)
    a("s_setprio 3")
    lds_wait(a, C_F2, 4, 4, 8)
    a(f"s_mul_i32 s9, s{sWV}, {6*3072}")
    a(f"v_add_u32 v4, s9, v{v16}")
    for t in range(2, 8):
        for q4 in range(3):
            a(f"ds_write_b128 v4, {vr(OA+16*t+4*q4,4)} offset:{(t-2)*3072+q4*1024}")
    lds_signal(a, C_A1, 6)
    stamp(a, 8)
    a(f"s_mul_i32 s10, s{sG}, 40")
    a(f"s_mul_i32 s11, s{sJ}, 5")
    a("s_add_u32 s10, s10, s11")
    a("s_add_u32 s11, s10, 4")
    a(f"s_add_u32 s10, s10, s{sWV}")
    a("s_lshl_b32 s10, s10, 11")
    a(f"s_add_u32 s10, s10, {WS_OF}")
    a("s_lshl_b32 s11, s11, 11")
    a(f"s_add_u32 s11, s11, {WS_OF}")
    a(f"s_lshr_b32 s12, s{sWV}, 1")
    a("s_lshl_b32 s12, s12, 9")
    a(f"s_and_b32 s13, s{sWV}, 1")
    a("s_lshl_b32 s13, s13, 3")
    a("s_add_u32 s12, s12, s13")
    a(f"v_add_u32 v10, s12, v{v16}")
    a(f"v_mov_b32 v11, {OOB}")
    a("v_cmp_gt_u32 vcc, 32, v0")
    for d in range(1, 4):
        a(f"s_sub_u32 s9, s{sWV}, {d}")
        a("s_and_b32 s9, s9, 3")
        a(f"s_mul_i32 s9, s9, {6*3072}")
        a(f"v_add_u32 v{11+d}, s9, v{v16}")
    a("v_cndmask_b32 v10, v11, v10, vcc")
    lds_wait(a, C_A1, 4, 4, 8)
    stamp(a, 9)
    R = 16
    for rt in range(2):
        for d in range(1, 4):
            for q4 in range(3):
                a(f"ds_read_b128 {vr(R+rt*36+(d-1)*12+q4*4,4)}, v{11+d} offset:{(2*(d-1)+rt)*3072+q4*1024}")
    for rt in range(2):
        a(f"s_waitcnt lgkmcnt({9 if rt == 0 else 0})")
        b = R + rt * 36; o = OA + 16 * rt
        for i in range(12):
            a(f"v_add_f32 v{o+i}, v{o+i}, v{b+i}")
            a(f"v_add_f32 v{b+12+i}, v{b+12+i}, v{b+24+i}")
        for i in range(12):
            a(f"v_add_f32 v{o+i}, v{o+i}, v{b+12+i}")
        a(f"v_mov_b32 v8, v{o+8}")
        a(f"v_mov_b32 v9, v{o+8}")
        a("s_nop 1")
        a("v_permlane32_swap_b32 v8, v9")
        a("s_nop 1")
        a("v_rcp_f32 v9, v9")
        a("s_nop 0")
        for i in range(12):
            a(f"v_mul_f32 v{o+i}, v9, v{o+i}")
        for i in range(6):
            a(f"v_cvt_pk_bf16_f32 v{b+i}, v{o+2*i}, v{o+2*i+1}")
        a(f"buffer_store_dwordx4 {vr(b,4)}, v{v16}, {S4(SRD_WS)}, s10 offen offset:{rt*1024} sc1")
        a(f"buffer_store_dwordx2 {vr(b+4,2)}, v10, {S4(SRD_WS)}, s11 offen offset:{rt*1024} sc1")
    a(f"s_lshl_b32 s12, s{sG}, 12")
    a(f"s_lshr_b32 s13, s{sJ}, 1")
    a("s_lshl_b32 s13, s13, 7")
    a("s_add_u32 s12, s12, s13")
    a(f"s_and_b32 s13, s{sJ}, 1")
    a("s_lshl_b32 s13, s13, 2")
    a(f"s_add_u32 s13, s13, s{sWV}")
    a("s_lshl_b32 s13, s13, 2")
    a("s_add_u32 s12, s12, s13")
    a(f"s_add_u32 s12, s12, {MB_O}")
    a("v_lshlrev_b32 v8, 9, v0")
    stamp(a, 10)
    flag_bcast(a, 8, 12, 8, 9)
    stamp(a, 11)
    a(f"s_or_b32 s12, s2, s{sWV}")
    a("s_cmp_lg_u32 s12, 0")
    a("s_cbranch_scc1 k_end")
    a(f"v_mov_b32 v8, {WS_EPOCH}")
    a(f"v_mov_b32 v9, s{sE}")
    a("s_mov_b64 exec, 1")
    a(f"buffer_store_dword v9, v8, {S4(SRD_WS)}, 0 offen sc1")
    a("s_mov_b64 exec, -1")
    a("s_branch k_end")

def emit_role_g(a, ln):
    a.label("pro_g")
    XA, TA = 2, 6
    vGO, vUO = 60, 61
    FB, ACC = 16, 64
    a("s_lshl_b32 s6, s9, 3")
    a(f"s_add_u32 s6, s6, s{sJ}")
    a("s_cmp_ge_u32 s6, 27")
    a("s_cselect_b32 s78, 1280, 0")
    a("s_cselect_b32 s79, 0, 3456")
    a("s_add_u32 s78, s78, s79")
    a("s_lshl_b32 s79, s78, 3")
    a("s_lshl_b32 s80, s78, 4")
    a("s_lshl_b32 s7, s6, 7")
    a("s_mov_b32 s8, 0")
    a("s_cmp_lt_u32 s6, 27")
    a("s_cbranch_scc1 pro_gf")
    for k in range(3):
        a(f"s_mov_b32 s{SRD_WG+k}, s{SRD_WQ+k}")
        a(f"s_mov_b32 s{SRD_WU+k}, s{SRD_WQ+k}")
    a("s_sub_u32 s7, s6, 27")
    a("s_lshl_b32 s7, s7, 8")
    a("s_mov_b32 s8, 128")
    a.label("pro_gf")
    a("v_lshrrev_b32 v8, 3, v0")
    a("v_mul_lo_u32 v9, v8, s78")
    a("v_bfe_u32 v62, v0, 1, 2")
    a("v_bfe_u32 v8, v0, 4, 1")
    a("v_xor_b32 v62, v62, v8")
    a("v_and_b32 v8, 1, v0")
    a("v_lshl_add_u32 v9, v8, 4, v9")
    a("v_add_u32 v9, s7, v9")
    a(f"v_lshl_add_u32 v{vGO}, v62, 5, v9")
    a("v_xor_b32 v62, 2, v62")
    a("v_add_u32 v9, s8, v9")
    a(f"v_lshl_add_u32 v{vUO}, v62, 5, v9")
    a("s_mov_b32 s13, 0")
    def f1slot(stage): return (stage & 3) * 4096
    def f1_dma_ops(stage, vG=None, vU=None):
        ops = []
        for gu in range(2):
            for i in range(2):
                def op(gu=gu, i=i):
                    a(f"s_add_u32 m0, s10, {f1slot(stage) + gu*2048 + i*1024}")
                    if i: a("s_add_u32 s11, s13, s79")
                    else: a("s_nop 0")
                    a(f"buffer_load_dwordx4 v{CUR[1] if gu else CUR[0]}, {S4(SRD_WU if gu else SRD_WG)}, {'s11' if i else 's13'} offen lds")
                    if gu == 1 and i == 1: a("s_add_u32 s13, s13, s80")
                ops.append(op)
        return ops
    CUR = [vGO, vUO]
    side = []
    for st in range(4): side += f1_dma_ops(st)
    e0 = OPT.get("early", 8)
    ln("G", side, {-1: e0, 9: 2}, dict(OPT_SCHED_G2))
    a(f"s_setprio {OPT['eprio']}")
    a(f"v_mov_b32 v10, v{vGO}")
    a(f"v_mov_b32 v11, v{vUO}")
    CUR[0], CUR[1] = 10, 11
    xn_read_addrs(a, XA, 7)
    a("v_lshrrev_b32 v12, 5, v0")
    a("v_bfe_u32 v13, v0, 2, 2")
    a("v_lshl_add_u32 v12, v12, 3, v13")
    a("v_lshlrev_b32 v12, 7, v12")
    a("v_bfe_u32 v13, v0, 1, 1")
    a("v_lshl_add_u32 v12, v13, 11, v12")
    a("v_and_b32 v14, 1, v0")
    a("v_lshl_add_u32 v12, v14, 4, v12")
    a("v_bfe_u32 v14, v0, 4, 1")
    a("v_lshl_add_u32 v12, v14, 3, v12")
    a("v_add_u32 v12, s10, v12")
    a("v_bfe_u32 v14, v0, 3, 1")
    a("v_lshl_or_b32 v14, v13, 1, v14")
    for t in range(4):
        a(f"v_xor_b32 v15, {t}, v14")
        a(f"v_lshl_add_u32 v{TA+t}, v15, 5, v12")
    for i in range(128): a(f"v_mov_b32 v{ACC+i}, 0")
    def f1_read_ops(u):
        fb = FB + (u & 1) * 24
        so = f1slot(u)
        ops = [lambda: a(f"ds_read_b128 {vr(fb+16,4)}, v{XA+(u&3)} offset:{L_XN+u*2048}"),
               lambda: a(f"ds_read_b128 {vr(fb+20,4)}, v{XA+(u&3)} offset:{L_XN+u*2048+1024}")]
        for t in range(4):
            ops.append(lambda t=t: a(f"ds_read_b64_tr_b16 {vr(fb+4*t,2)}, v{TA+t} offset:{so}"))
            ops.append(lambda t=t: a(f"ds_read_b64_tr_b16 {vr(fb+4*t+2,2)}, v{TA+t} offset:{so+512}"))
        return ops
    a("s_waitcnt vmcnt(12)")
    for op in f1_read_ops(0): op()
    a("s_mov_b32 s8, 10")
    stamp(a, 5)
    a(f"s_setprio {OPT['gprio']}")
    a("s_cmp_lt_u32 s6, 27")
    a("s_cbranch_scc1 f1_loop")
    a(f"s_setprio {OPT.get('qprio', 3)}")
    a.lines.append(".p2align 6")
    a.label("f1_loop")
    for u in range(4):
        a("s_waitcnt vmcnt(8) lgkmcnt(0)")
        if OPT["f1hi"]:
            a(f"s_setprio {2 if u < OPT['f1hi'] else OPT['gprio']}")
        fb = FB + (u & 1) * 24
        mm = [(lambda t=t, rt=rt: mfma32(a, ACC + (t * 2 + rt) * 16, fb + 4 * t, fb + 16 + 4 * rt)) for t in range(4) for rt in range(2)]
        side = f1_read_ops(u + 1) + f1_dma_ops(u)
        interleave(a, mm, side, [3, 3, 2, 2, 1, 1, 1, 1])
    for m in range(4): a(f"v_add_u32 v{XA+m}, 8192, v{XA+m}")
    a("s_sub_u32 s8, s8, 1")
    a("s_cmp_lg_u32 s8, 0")
    a("s_cbranch_scc1 f1_loop")
    a(f"s_setprio {OPT['eprio']}")
    stamp(a, 6)
    WOFF = 2
    TB = 6
    vBX, vBY = 9, 10
    a("s_waitcnt vmcnt(0) lgkmcnt(0)")
    lds_signal(a, C_F1, 12)
    a(f"s_and_b32 s76, s{sJ}, 1")
    a(f"s_lshr_b32 s77, s{sJ}, 1")
    a("s_mul_i32 s77, s77, 320")
    a("s_lshl_b32 s8, s76, 7")
    a("s_add_u32 s77, s77, s8")
    for i in range(4):
        a(f"v_add_u32 v12, {i*64}, v0")
        a("v_mul_u32_u24 v13, 0xaab, v12")
        a("v_lshrrev_b32 v13, 15, v13")
        a("v_mul_u32_u24 v14, 12, v13")
        a("v_sub_u32 v14, v12, v14")
        a("v_mul_u32_u24 v13, 1280, v13")
        a("v_lshl_add_u32 v13, v14, 4, v13")
        a(f"v_add_u32 v{WOFF+i}, s77, v13")
    a("v_cmp_lt_u32 vcc, 47, v0")
    a(f"v_mov_b32 v12, {OOB}")
    a("s_mul_i32 s78, s9, 28")
    a(f"v_cndmask_b32 v{WOFF+3}, v{WOFF+3}, v12, vcc")
    a(f"s_mul_i32 s11, s78, {16*1280}")
    a(f"s_add_u32 s7, s11, {28*16*1280}")
    a(f"s_min_u32 s{SRD_WD+2}, s7, {F*D*2}")
    def wd_dma_ops(slot):
        ops = []
        for i in range(3):
            def op(i=i):
                a(f"s_add_u32 m0, s10, {slot*4096 + i*1024}")
                a("s_nop 0")
                a(f"buffer_load_dwordx4 v{WOFF+i}, {S4(SRD_WD)}, s11 offen lds")
                if i == 2: a(f"s_add_u32 s11, s11, {16*1280}")
            ops.append(op)
        return ops
    a("s_cmp_lt_u32 s6, 27")
    a("s_cbranch_scc1 f1_epi")
    a("v_lshlrev_b32 v12, 4, v0")
    a(f"v_mov_b32 v13, {hex(f32bits(QSCALE))}")
    a("s_sub_u32 s8, s6, 27")
    a("s_lshl_b32 s7, s8, 13")
    a(f"s_mul_i32 s8, s{sG}, 81920")
    a("s_add_u32 s7, s7, s8")
    a(f"s_add_u32 s7, s7, {WS_QGB}")
    a("s_add_u32 s8, s7, 4096")
    a("s_add_u32 s82, s7, 40960")
    a("s_add_u32 s83, s8, 40960")
    for t in range(4):
        for rt in range(2):
            ac = ACC + (t * 2 + rt) * 16
            o = 16 + ((t * 2 + rt) & 3) * 8
            for i in range(16): a(f"v_mul_f32 v{ac+i}, v13, v{ac+i}")
            for up in range(2):
                for hi in range(2):
                    r = ac + 8 * hi + 4 * up
                    a(f"v_cvt_pk_bf16_f32 v{o+4*up+2*hi}, v{r}, v{r+1}")
                    a(f"v_cvt_pk_bf16_f32 v{o+4*up+2*hi+1}, v{r+2}, v{r+3}")
                so = [[7, 8], [82, 83]][rt][up]
                a(f"buffer_store_dwordx4 {vr(o+4*up,4)}, v12, {S4(SRD_WS)}, s{so} offen offset:{t*1024} sc1")
    a(f"s_lshl_b32 s7, s{sG}, 12")
    a("s_sub_u32 s8, s6, 27")
    a("s_lshl_b32 s8, s8, 2")
    a("s_add_u32 s7, s7, s8")
    a(f"s_add_u32 s7, s7, {MB_Q}")
    a("v_lshlrev_b32 v12, 7, v0")
    flag_bcast(a, 12, 7, 32, 13)
    a("s_branch f1_epi_skip")
    a.label("f1_epi")
    a("v_lshlrev_b32 v12, 4, v0")
    a(f"s_mul_i32 s7, s{sG}, {108*2048}")
    a("s_lshl_b32 s8, s6, 13")
    a("s_add_u32 s7, s7, s8")
    a(f"s_add_u32 s7, s7, {WS_HF}")
    T = 16
    idx = [(0, 4), (1, 5), (2, 6), (3, 7), (8, 12), (9, 13), (10, 14), (11, 15)]
    for t in range(4):
        for rt in range(2):
            ac = ACC + (t * 2 + rt) * 16
            for e, (gi, ui) in enumerate(idx): a(f"v_mul_f32 v{T+e}, {NL2E}, v{ac+gi}")
            for e in range(8): a(f"v_exp_f32 v{T+e}, v{T+e}")
            for e in range(8): a(f"v_add_f32 v{T+e}, 1.0, v{T+e}")
            for e in range(8): a(f"v_rcp_f32 v{T+e}, v{T+e}")
            for e, (gi, ui) in enumerate(idx): a(f"v_mul_f32 v{ac+gi}, v{ac+gi}, v{ac+ui}")
            for e, (gi, ui) in enumerate(idx): a(f"v_mul_f32 v{T+e}, v{T+e}, v{ac+gi}")
            for e in range(4): a(f"v_cvt_pk_bf16_f32 v{ac+e}, v{T+2*e}, v{T+2*e+1}")
    if OPT.get("hgate", 1):
        a("s_mov_b32 s82, s7")
        a("s_setprio 0")
        lds_wait(a, C_QR, 4, 14, 7, sleep=4)
        a(f"s_setprio {OPT['eprio']}")
        a("s_mov_b32 s7, s82")
        a("s_nop 1")
    for t in range(4):
        for rt in range(2):
            ac = ACC + (t * 2 + rt) * 16
            a(f"buffer_store_dwordx4 {vr(ac,4)}, v12, {S4(SRD_WS)}, s7 offen offset:{(t&1)*2048+rt*1024} sc1")
        if t == 1: a("s_add_u32 s7, s7, 4096")
    a("s_mul_i32 s8, s6, 37")
    a("s_lshr_b32 s8, s8, 8")
    a("s_mul_i32 s82, s8, 7")
    a("s_sub_u32 s82, s6, s82")
    a("s_lshl_b32 s8, s8, 7")
    a("s_lshl_b32 s82, s82, 2")
    a(f"s_lshl_b32 s7, s{sG}, 12")
    a("s_add_u32 s7, s7, s8")
    a("s_add_u32 s7, s7, s82")
    a(f"s_add_u32 s7, s7, {MB_H}")
    a("v_lshlrev_b32 v12, 9, v0")
    flag_bcast(a, 12, 7, 8, 13)
    a.label("f1_epi_skip")
    stamp(a, 7)
    if OPT.get("gate", 1):
        a("s_setprio 0")
        lds_wait(a, C_QR, 4, 12, 7, sleep=4)
        a(f"s_setprio {OPT['eprio']}")
    for n in range(4):
        for op in wd_dma_ops(n): op()
    lds_wait(a, C_F1, 5, 12, 7)
    a("s_lshl_b32 s84, s9, 14")
    def wo_stage(sl, sbase):
        for s in range(4):
            a(f"s_mul_i32 s7, s9, {160*1280}")
            a(f"s_add_u32 s7, s7, {(sl*80 + s*20)*1280}")
            for i in range(4):
                a(f"s_add_u32 m0, s{sbase}, {s*4096 + i*1024}")
                a("s_nop 0")
                a(f"buffer_load_dwordx4 v{WOFF+i}, {S4(SRD_WO)}, s7 offen lds")
    wo_stage(0, 84)
    FB2, BB, ACC2, WF = 16, 40, 80, 160
    a("s_lshl_b32 s79, s76, 6")
    a("s_add_u32 s80, s79, 64")
    a("s_cmp_eq_u32 s76, 0")
    a("s_cselect_b32 s81, 128, 0")
    a("v_bfe_u32 v12, v0, 2, 2")
    a("v_mul_u32_u24 v12, 192, v12")
    a("v_bfe_u32 v13, v0, 4, 1")
    a("v_bfe_u32 v14, v0, 1, 1")
    a("v_lshl_add_u32 v13, v13, 1, v14")
    a("v_add_u32 v13, s9, v13")
    a("v_and_b32 v13, 3, v13")
    a("v_lshl_add_u32 v12, v13, 4, v12")
    a("v_and_b32 v13, 1, v0")
    a("v_lshl_add_u32 v12, v13, 3, v12")
    a("v_add_u32 v11, s10, v12")
    a("v_lshrrev_b32 v13, 5, v0")
    a(f"v_mul_u32_u24 v14, {8*192}, v13")
    for t, sT in enumerate((79, 80, 81)):
        a(f"v_add3_u32 v{TB+t}, v11, v14, s{sT}")
    TC, TD = 250, 253
    a("v_add_u32 v11, s84, v12")
    a(f"v_mul_u32_u24 v14, {4*192}, v13")
    a("v_lshlrev_b32 v15, 13, v13")
    for t, sT in enumerate((79, 80, 81)):
        a(f"v_add3_u32 v{TC+t}, v11, v14, s{sT}")
        a(f"v_add3_u32 v{TD+t}, v11, v15, s{sT}")
    a("v_lshlrev_b32 v12, 4, v0")
    a("s_lshl_b32 s7, s76, 10")
    a(f"v_add_u32 v{vBX}, s7, v12")
    a("s_xor_b32 s7, s7, 1024")
    a(f"v_add_u32 v{vBY}, s7, v12")
    for i in range(80): a(f"v_mov_b32 v{ACC2+i}, 0")
    def wo_reads():
        for s5 in range(5):
            for t in range(3):
                f = WF + s5 * 12 + 4 * t
                if s5 < 4:
                    a(f"ds_read_b64_tr_b16 {vr(f,2)}, v{TC+t} offset:{s5*4096}")
                    a(f"ds_read_b64_tr_b16 {vr(f+2,2)}, v{TC+t} offset:{s5*4096+8*192}")
                else:
                    a(f"ds_read_b64_tr_b16 {vr(f,2)}, v{TD+t} offset:{16*192}")
                    a(f"ds_read_b64_tr_b16 {vr(f+2,2)}, v{TD+t} offset:{4096+16*192}")
    a("s_cmp_eq_u32 s9, 3")
    a("s_cselect_b32 s7, 5, 6")
    a("v_min_u32 v12, s7, v0")
    a("v_lshlrev_b32 v12, 2, v12")
    a(f"s_lshl_b32 s7, s{sG}, 3")
    a(f"s_add_u32 s7, s7, s{sJ}")
    a("s_lshl_b32 s7, s7, 2")
    a("s_add_u32 s7, s7, s9")
    a("s_lshl_b32 s7, s7, 7")
    a(f"s_add_u32 s7, s7, {MB_H}")
    a(f"s_mul_i32 s82, s{sG}, {108*2048}")
    a("s_lshl_b32 s8, s78, 11")
    a("s_add_u32 s82, s82, s8")
    a(f"s_add_u32 s82, s82, {WS_HF}")
    a(f"s_mov_b32 s{SRD_H}, s{P_WS}")
    a(f"s_mov_b32 s{SRD_H+1}, s{P_WS+1}")
    a("s_cmp_eq_u32 s9, 3")
    a("s_cselect_b32 s8, 24, 28")
    a("s_lshl_b32 s8, s8, 11")
    a(f"s_add_u32 s{SRD_H+2}, s82, s8")
    a("s_waitcnt vmcnt(0)")
    wo_reads()
    a("s_setprio 0")
    flag_poll(a, 12, 7, 13, 8, sleep=OPT.get("hsleep", 8))
    a(f"s_setprio {OPT['eprio']}")
    stamp(a, 8)
    def h_ops(slot):
        return [lambda: a(f"buffer_load_dwordx4 {vr(BB+slot*8,4)}, v{vBX}, {S4(SRD_H)}, s82 offen sc1"),
                lambda: (a(f"buffer_load_dwordx4 {vr(BB+slot*8+4,4)}, v{vBY}, {S4(SRD_H)}, s82 offen sc1"), a("s_add_u32 s82, s82, 2048"))]
    for n in range(4):
        for op in h_ops(n): op()
    def f2_read_ops(u):
        fb = FB2 + (u & 1) * 12
        slot = u % 4
        ops = []
        for t in range(3):
            ops.append(lambda t=t: a(f"ds_read_b64_tr_b16 {vr(fb+4*t,2)}, v{TB+t} offset:{slot*4096}"))
            ops.append(lambda t=t: a(f"ds_read_b64_tr_b16 {vr(fb+4*t+2,2)}, v{TB+t} offset:{slot*4096+4*192}"))
        return ops
    def mm5(fb, bx, by, acc, c=None):
        return [lambda: mfma32(a, acc + 0, fb + 0, bx, c), lambda: mfma32(a, acc + 16, fb + 0, by, c),
                lambda: mfma32(a, acc + 32, fb + 4, bx, c), lambda: mfma32(a, acc + 48, fb + 4, by, c),
                lambda: mfma32(a, acc + 64, fb + 8, bx, c)]
    for op in f2_read_ops(0): op()
    a("s_sub_u32 s7, s10, s84")
    a("s_waitcnt lgkmcnt(6)")
    for t in range(6): a(f"v_add_u32 v{TC+t}, s7, v{TC+t}")
    a("s_cmp_eq_u32 s9, 3")
    a("s_cselect_b32 s8, 6, 7")
    a("s_waitcnt vmcnt(0)")
    a(f"s_setprio {OPT['g2prio']}")
    a.lines.append(".p2align 6")
    a.label("f2_loop")
    for u in range(4):
        a("s_waitcnt vmcnt(10) lgkmcnt(0)")
        mm = mm5(FB2 + (u & 1) * 12, BB + u * 8, BB + u * 8 + 4, ACC2)
        interleave(a, mm, f2_read_ops(u + 1) + wd_dma_ops(u), [3, 3, 1, 1, 1])
        for op in h_ops(u): op()
    a("s_sub_u32 s8, s8, 1")
    a("s_cmp_lg_u32 s8, 0")
    a("s_cbranch_scc1 f2_loop")
    a(f"s_setprio {OPT['eprio']}")
    a("s_waitcnt vmcnt(0) lgkmcnt(0)")
    stamp(a, 9)
    wo_stage(1, 10)
    a("v_and_b32 v1, 31, v0")
    a("v_mul_u32_u24 v1, 1280, v1")
    a("v_lshrrev_b32 v12, 5, v0")
    a("v_lshl_add_u32 v1, v12, 3, v1")
    a("s_lshl_b32 s7, s9, 4")
    a("s_add_u32 s7, s7, s77")
    a(f"s_mul_i32 s8, s{sG}, {64*1280}")
    a("s_add_u32 s7, s7, s8")
    a(f"s_mul_i32 s8, s76, {32*1280}")
    a(f"s_sub_u32 s11, {32*1280}, s8")
    a("s_add_u32 s8, s8, s7")
    a("s_add_u32 s11, s11, s7")
    a("s_add_u32 s83, s79, s8")
    a("s_add_u32 s85, s79, s11")
    a("s_add_u32 s6, s80, s8")
    a("s_add_u32 s12, s80, s11")
    a("s_add_u32 s13, s81, s8")
    US = [83, 85, 6, 12, 13]
    XPR = [236, 238, 2, 4, 6]
    for u in range(5):
        a(f"buffer_load_dwordx2 {vr(XPR[u],2)}, v1, {S4(SRD_X)}, s{US[u]} offen")
    RA = 12
    def blk_off(u, d): return (u * 3 + (d - 1)) * 1024
    def red_write(acc, base, cnt, vt):
        a(f"v_lshlrev_b32 v{RA}, 4, v0")
        for d in range(1, 4):
            a(f"s_sub_u32 s7, s9, {d}")
            a("s_and_b32 s7, s7, 3")
            a("s_lshl_b32 s7, s7, 14")
            if base: a(f"s_add_u32 s7, s7, {base}")
            a(f"v_add_u32 v{RA+d}, s7, v{RA}")
        a(f"v_add_u32 v{RA}, s{10 if base else 84}, v{RA}")
        for u in range(5):
            for d in range(1, 4):
                a(f"ds_write_b128 v{RA}, {vr(acc+16*u+4*d,4)} offset:{blk_off(u,d)}")
        lds_signal(a, cnt, vt)
    def red_read(RR, cnt):
        lds_wait(a, cnt, 4, RR, 7)
        for u in range(5):
            for d in range(1, 4):
                a(f"ds_read_b128 {vr(RR+u*12+(d-1)*4,4)}, v{RA+d} offset:{blk_off(u,d)}")
    def red_sum(acc, RR, u):
        r = RR + u * 12
        for i in range(4):
            a(f"v_add_f32 v{r+i}, v{r+i}, v{r+4+i}")
            a(f"v_add_f32 v{r+8+i}, v{r+8+i}, v{acc+16*u+i}")
        for i in range(4):
            a(f"v_add_f32 v{r+i}, v{r+i}, v{r+8+i}")
    RR = 16
    red_write(ACC2, 0, C_G1, RR)
    red_read(RR, C_G1)
    lds_signal(a, C_F2, 76)
    GG = 240
    for u in range(5):
        red_sum(ACC2, RR, u)
        r = RR + u * 12
        for i in range(4): a(f"v_mul_f32 v{r+4+i}, {NL2E}, v{r+i}")
        for i in range(4): a(f"v_exp_f32 v{r+4+i}, v{r+4+i}")
        for i in range(4): a(f"v_add_f32 v{r+4+i}, 1.0, v{r+4+i}")
        for i in range(4): a(f"v_rcp_f32 v{r+4+i}, v{r+4+i}")
        a("s_nop 0")
        for i in range(4): a(f"v_mul_f32 v{r+i}, v{r+i}, v{r+4+i}")
        a(f"v_cvt_pk_bf16_f32 v{GG+2*u}, v{r}, v{r+1}")
        a(f"v_cvt_pk_bf16_f32 v{GG+2*u+1}, v{r+2}, v{r+3}")
    stamp(a, 10)
    ACC3 = 80
    def ob(k): return 16 + k * 8 if k < 8 else 220 + (k - 8) * 8
    a("v_min_u32 v12, 7, v0")
    a("v_lshlrev_b32 v12, 2, v12")
    a(f"s_lshl_b32 s7, s{sG}, 3")
    a(f"s_add_u32 s7, s7, s{sJ}")
    a("s_lshl_b32 s7, s7, 2")
    a("s_add_u32 s7, s7, s9")
    a("s_lshl_b32 s7, s7, 7")
    a(f"s_add_u32 s7, s7, {MB_O}")
    a(f"s_mul_i32 s82, s{sG}, {40*2048}")
    a(f"s_mul_i32 s8, s9, {10*2048}")
    a("s_add_u32 s82, s82, s8")
    a(f"s_add_u32 s82, s82, {WS_OF}")
    stamp(a, 11)
    a("s_setprio 0")
    flag_poll(a, 12, 7, 13, 8, sleep=OPT.get("osleep", 4))
    a("s_setprio 3")
    stamp(a, 12)
    for k in range(10):
        a(f"buffer_load_dwordx4 {vr(ob(k),4)}, v{vBX}, {S4(SRD_WS)}, s82 offen sc1")
        a(f"buffer_load_dwordx4 {vr(ob(k)+4,4)}, v{vBY}, {S4(SRD_WS)}, s82 offen sc1")
        a("s_add_u32 s82, s82, 2048")
    def wo_read_step(s5):
        for t in range(3):
            f = WF + s5 * 12 + 4 * t
            if s5 < 4:
                a(f"ds_read_b64_tr_b16 {vr(f,2)}, v{TC+t} offset:{s5*4096}")
                a(f"ds_read_b64_tr_b16 {vr(f+2,2)}, v{TC+t} offset:{s5*4096+8*192}")
            else:
                a(f"ds_read_b64_tr_b16 {vr(f,2)}, v{TD+t} offset:{16*192}")
                a(f"ds_read_b64_tr_b16 {vr(f+2,2)}, v{TD+t} offset:{4096+16*192}")
    for k in range(10):
        a(f"s_waitcnt vmcnt({18-2*k})" + (f" lgkmcnt({min(15, 24-6*(k-5))})" if k >= 5 else ""))
        for m in mm5(WF + (k % 5) * 12, ob(k), ob(k) + 4, ACC3, "0" if k == 0 else None): m()
        if k < 5: wo_read_step(k)
    RR = 160
    red_write(ACC3, L_RING, C_G2, 230)
    a("s_mov_b32 s78, 0xffff0000")
    for u in range(5):
        t = 16 + 8 * u
        x = XPR[u]
        a(f"v_lshlrev_b32 v{t}, 16, v{x}")
        a(f"v_and_b32 v{t+1}, s78, v{x}")
        a(f"v_lshlrev_b32 v{t+2}, 16, v{x+1}")
        a(f"v_and_b32 v{t+3}, s78, v{x+1}")
        a(f"v_lshlrev_b32 v{t+4}, 16, v{GG+2*u}")
        a(f"v_and_b32 v{t+5}, s78, v{GG+2*u}")
        a(f"v_lshlrev_b32 v{t+6}, 16, v{GG+2*u+1}")
        a(f"v_and_b32 v{t+7}, s78, v{GG+2*u+1}")
    red_read(RR, C_G2)
    for u in range(5):
        a(f"s_waitcnt lgkmcnt({12-3*u})")
        t = 16 + 8 * u
        r = RR + u * 12
        red_sum(ACC3, RR, u)
        for i in range(4):
            a(f"v_fmac_f32 v{t+i}, v{r+i}, v{t+4+i}")
        a(f"v_cvt_pk_bf16_f32 v{t+4}, v{t}, v{t+1}")
        a(f"v_cvt_pk_bf16_f32 v{t+5}, v{t+2}, v{t+3}")
        a(f"buffer_store_dwordx2 {vr(t+4,2)}, v1, {S4(SRD_OUT)}, s{US[u]} offen")

def build():
    a = Asm()
    hdr = open("cdna_kernels/" + NAME + ".s.ref").read().split("\n")
    head = [l for l in hdr if l.startswith(";") and "@launch" not in l]
    out = "\n".join(head) + "\n"
    out += f"; @launch grid=(256,1,1) block=(512,1,1) lds={LDS_TOTAL}\n"
    out += '.amdgcn_target "amdgcn-amd-amdhsa--gfx950"\n.text\n'
    a.lines += [f".globl {KNAME}", ".p2align 8", f".type {KNAME},@function"]
    a.label(KNAME)
    ln = emit_prologue(a)
    emit_role_a(a)
    emit_role_g(a, ln)
    a.label("k_end")
    stamp_flush(a)
    a.label("k_exit")
    a("s_endpgm")
    a.label("code_end")
    probs = check_hazards(a.lines)
    for p in probs: print(p, file=sys.stderr)
    out += a.text()
    out += f""".section .rodata,"a"
.p2align 6
.amdhsa_kernel {KNAME}
  .amdhsa_next_free_vgpr 256
  .amdhsa_next_free_sgpr 102
  .amdhsa_accum_offset 256
  .amdhsa_group_segment_fixed_size 0
  .amdhsa_kernarg_size 96
  .amdhsa_user_sgpr_count 2
  .amdhsa_user_sgpr_kernarg_segment_ptr 1
  .amdhsa_system_sgpr_workgroup_id_x 1
.end_amdhsa_kernel
"""
    return out

if __name__ == "__main__":
    path = sys.argv[1] if len(sys.argv) > 1 else "cdna_kernels/" + NAME + ".s"
    for kv in sys.argv[2:]:
        k, v = kv.split("=")
        OPT[k] = int(v)
    open(path, "w").write(build())
```

```python
import sys, struct, os
from asmlib import *

NAME = "recurrent_scan__grouped_kv_mqa__swiglu_ffn__prompt"
KNAME = NAME + "_kernel"
S, D, H, DH, F = 2048, 640, 32, 20, 1728
WS_EPOCH = 0
FL_KV = 0x1000
MB_H = 0xF00000
MB_O = 0x1000000
MB_Q = 0x1100000
WS_QG = 0x60000
WS_QGB = 0xC00000
WS_KV = 0x10000
WS_OF = 0x800000
WS_STAMP = 0xB00000
WS_HF = 0x100000
WS_SIZE = 0x1200000
KVT = 3584
OOB = 0x7f000000
POLL_CAP = 3000

OPT = dict(stamp=False, touch=True, aprio=1, gprio=2, eprio=2, mapping=3, codetouch=True, kvsleep=16, g2prio=0, kvprio=3, ldprio=3, f1hi=0, clus=1)

def f32bits(x): return struct.unpack("<I", struct.pack("<f", x))[0]
QSCALE = (DH ** -0.5) * 1.4426950408889634
NL2E = hex(f32bits(-1.4426950408889634))

sWV, sG, sJ = 3, 4, 5
sTAG = 15
sRB = 85
sIDX = 14
P_X, P_WQ, P_WK, P_WV, P_WO, P_BX, P_WG, P_WU, P_WD, P_OUT, P_DBG, P_WS = [16 + 2 * i for i in range(12)]
SRD_X, SRD_WQ, SRD_WKV, SRD_WO, SRD_WG, SRD_WU, SRD_WD, SRD_OUT, SRD_WS = 40, 44, 48, 52, 56, 60, 64, 68, 72
sE = 84
L_XN = 0
L_RING = 81920
L_WKV = 147456
L_CNT = 162816
L_H = 0
L_EXT = 32768
LDS_TOTAL = 163840
C_F1, C_A1, C_G1, C_G2, C_A2, C_BAD, C_KVD, C_QR, C_F2, C_WKV = 0, 4, 8, 12, 16, 20, 24, 28, 32, 36
SRD_KVR = SRD_WKV
SRD_H = SRD_WQ

def FS(): return OPT.get('fs', 2)
def MS(): return max(7, FS() + 3)
def S4(b): return f"s[{b}:{b+3}]"
def srd(a, dst, ptr, nbytes):
    a(f"s_mov_b32 s{dst}, s{ptr}")
    a(f"s_mov_b32 s{dst+1}, s{ptr+1}")
    a(f"s_mov_b32 s{dst+2}, {nbytes}")
    a(f"s_mov_b32 s{dst+3}, 0x20000")

NST = 14
def stamp(a, i):
    if not OPT["stamp"]: return
    a("s_memtime s[98:99]")
    a("s_waitcnt lgkmcnt(0)")
    a(f"s_mov_b32 s{STR[i]}, s98")
STR = [86+i for i in range(10)] + [26, 27, 100, 101]
def stamp_head(a):
    if not OPT["stamp"]: return
    for i in range(NST): a(f"s_mov_b32 s{STR[i]}, 0")
    a("s_memrealtime s[96:97]")
    stamp(a, 0)
def stamp_flush(a):
    if not OPT["stamp"]: return
    stamp(a, NST-1)
    a("s_memrealtime s[98:99]")
    a("s_waitcnt lgkmcnt(0)")
    a("s_mov_b32 s97, s98")
    a("s_lshl_b32 s98, s2, 3")
    a(f"s_add_u32 s98, s98, s{sWV}")
    a("s_lshl_b32 s98, s98, 6")
    a(f"s_add_u32 s98, s98, {WS_STAMP}")
    a("s_mov_b64 exec, 1")
    a("v_mov_b32 v0, 0")
    for i, r in enumerate(STR + [96, 97]): a(f"v_mov_b32 v{4+i}, s{r}")
    for q in range(4):
        a(f"buffer_store_dwordx4 v[{4+4*q}:{7+4*q}], v0, {S4(SRD_WS)}, s98 offen offset:{16*q}")
    if OPT.get("dbgout"):
        srd(a, SRD_X, P_DBG, 256)
        a("v_not_b32 v20, v18")
        a(f"buffer_atomic_umax v19, v0, {S4(SRD_X)}, 0 offen")
        a(f"buffer_atomic_umax v20, v0, {S4(SRD_X)}, 0 offen offset:4")
        a(f"buffer_atomic_umax v18, v0, {S4(SRD_X)}, 0 offen offset:8")
        a(f"s_lshl_b32 s98, s2, 3")
        a(f"s_add_u32 s98, s98, s{sWV}")
        a(f"s_cmp_lg_u32 s98, {OPT['dbgout']}")
        a("s_cbranch_scc1 k_exit")
        for i in range(1, 14):
            a(f"v_sub_u32 v{4+i}, v{4+i}, v4")
            a(f"buffer_store_dword v{4+i}, v0, {S4(SRD_X)}, 0 offen offset:{8+4*i}")

def mfma32(a, d, A, B, c=None):
    a(f"v_mfma_f32_32x32x16_bf16 {vr(d,16)}, {vr(A,4)}, {vr(B,4)}, {vr(d,16) if c is None else c}")
def mfma32x8(a, d, A, B, c=None):
    a(f"v_mfma_f32_32x32x8_bf16 {vr(d,16)}, {vr(A,2)}, {vr(B,2)}, {vr(d,16) if c is None else c}")
def mfma16(a, d, A, B, c=None):
    a(f"v_mfma_f32_16x16x32_bf16 {vr(d,4)}, {vr(A,4)}, {vr(B,4)}, {vr(d,4) if c is None else c}")

def interleave(a, main, side, per):
    k = 0
    for i, m in enumerate(main):
        m()
        for _ in range(per[i]):
            if k < len(side):
                side[k](); k += 1
    while k < len(side):
        side[k](); k += 1

def lds_signal(a, cnt, vt):
    a("s_waitcnt lgkmcnt(0)")
    a(f"v_mov_b32 v{vt}, {L_CNT + cnt}")
    a(f"v_mov_b32 v{vt+1}, 1")
    a("s_mov_b64 exec, 1")
    a(f"ds_add_u32 v{vt}, v{vt+1}")
    a("s_mov_b64 exec, -1")
def lds_wait(a, cnt, target, vt, st, sleep=1):
    L = a.newlabel("lw"); Dn = a.newlabel("lwd")
    a(f"v_mov_b32 v{vt}, {L_CNT + cnt}")
    a(f"s_mov_b32 s{st+1}, 0x40000")
    a.label(L)
    a(f"ds_read_b32 v{vt+1}, v{vt}")
    a("s_waitcnt lgkmcnt(0)")
    a(f"v_readfirstlane_b32 s{st}, v{vt+1}")
    a(f"s_cmp_ge_u32 s{st}, {target}")
    a(f"s_cbranch_scc1 {Dn}")
    a(f"s_sleep {sleep}")
    a(f"s_sub_u32 s{st+1}, s{st+1}, 1")
    a(f"s_cmp_lg_u32 s{st+1}, 0")
    a(f"s_cbranch_scc1 {L}")
    a.label(Dn)

def flag_set(a, soff, vt):
    a(f"v_mov_b32 v{vt}, 0")
    a(f"v_mov_b32 v{vt+1}, s{sTAG}")
    a("s_waitcnt vmcnt(0)")
    a("s_mov_b64 exec, 1")
    a(f"buffer_store_dword v{vt+1}, v{vt}, {S4(SRD_WS)}, s{soff} offen sc1")
    a("s_mov_b64 exec, -1")
def flag_bcast(a, vaddr, soff, nl, vt):
    a(f"v_mov_b32 v{vt}, s{sTAG}")
    a("s_waitcnt vmcnt(0)")
    a(f"s_mov_b64 exec, {hex((1 << nl) - 1)}")
    a(f"buffer_store_dword v{vt}, v{vaddr}, {S4(SRD_WS)}, s{soff} offen sc1")
    a("s_mov_b64 exec, -1")
def flag_poll(a, vaddr, soff, vt, st, two=False, sleep=2):
    L = a.newlabel("fp"); Dn = a.newlabel("fpd")
    a(f"s_mov_b32 s{st}, {POLL_CAP}")
    a.label(L)
    if two:
        a(f"buffer_load_dwordx2 {vr(vt,2)}, v{vaddr}, {S4(SRD_WS)}, s{soff} offen sc1")
        a("s_waitcnt vmcnt(0)")
        a(f"v_xor_b32 v{vt}, s{sTAG}, v{vt}")
        a(f"v_xor_b32 v{vt+1}, s{sTAG}, v{vt+1}")
        a(f"v_or_b32 v{vt}, v{vt}, v{vt+1}")
        a(f"v_cmp_ne_u32 vcc, 0, v{vt}")
    else:
        a(f"buffer_load_dword v{vt}, v{vaddr}, {S4(SRD_WS)}, s{soff} offen sc1")
        a("s_waitcnt vmcnt(0)")
        a(f"v_cmp_ne_u32 vcc, s{sTAG}, v{vt}")
    a(f"s_cbranch_vccz {Dn}")
    a(f"s_sleep {sleep}")
    a(f"s_sub_u32 s{st}, s{st}, 1")
    a(f"s_cmp_lg_u32 s{st}, 0")
    a(f"s_cbranch_scc1 {L}")
    a.label(Dn)

def xn_read_addrs(a, XA, tmp):
    a(f"v_lshrrev_b32 v{tmp}, 5, v0")
    for m in range(4):
        a(f"v_or_b32 v{XA+m}, {2*m}, v{tmp}")
        a(f"v_xor_b32 v{XA+m}, v{XA+m}, v0")
        a(f"v_lshlrev_b32 v{XA+m}, 4, v{XA+m}")

NSQ = 12
OPT_SCHED_A1 = {7: 2, 8: 2, 9: 3}; OPT_SCHED_A2 = {}
OPT_SCHED_G1 = {9: 4}; OPT_SCHED_G2 = {i: 1 for i in range(10)}
QREG = 144
def qslot(n): return n * 1024
vQO = 15

def emit_prologue(a):
    a("s_cmp_ge_u32 s2, 256")
    a("s_cbranch_scc1 k_exit")
    a("s_load_dwordx16 s[16:31], s[0:1], 0")
    a("s_load_dwordx8 s[32:39], s[0:1], 64")
    a("v_lshrrev_b32 v1, 6, v0")
    a("v_and_b32 v0, 63, v0")
    a(f"v_readfirstlane_b32 s{sWV}, v1")
    if OPT["mapping"] == 3:
        a("s_bfe_u32 s6, s2, 0x20001")
        a("s_lshl_b32 s6, s6, 3")
        a(f"s_bfe_u32 s{sIDX}, s2, 0x30003")
        a(f"s_add_u32 s{sG}, s6, s{sIDX}")
        a("s_and_b32 s6, s2, 1")
        a("s_lshl_b32 s6, s6, 2")
        a("s_lshr_b32 s7, s2, 6")
        a(f"s_add_u32 s{sJ}, s6, s7")
    else:
        raise ValueError
    a("v_lshrrev_b32 v10, 3, v0")
    a("v_and_b32 v11, 7, v0")
    a("v_mul_u32_u24 v12, 1280, v10")
    a("v_lshl_add_u32 v13, v11, 4, v12")
    if OPT.get("rot", 1):
        a(f"s_add_u32 s{sRB}, s{sWV}, s{sJ}")
        a(f"s_and_b32 s{sRB}, s{sRB}, 7")
    else:
        a(f"s_mov_b32 s{sRB}, s{sWV}")
    a(f"s_lshl_b32 s6, s{sG}, 3")
    a(f"s_add_u32 s6, s6, s{sRB}")
    a(f"s_mul_i32 s6, s6, {8*1280}")
    if OPT["codetouch"]:
        a(f"s_cmp_lg_u32 s{sWV}, 1")
        a("s_cbranch_scc1 ct_skip")
        a("s_getpc_b64 s[76:77]")
        a("s_and_b32 s76, s76, 0xffffff00")
        a("s_lshr_b32 s7, s2, 3")
        a("s_lshl_b32 s7, s7, 10")
        a("v_min_u32 v8, 7, v0")
        a("v_lshl_add_u32 v8, v8, 7, s7")
        a(f"v_min_u32 v8, code_end-{KNAME}-4, v8")
        a("global_load_dword v59, v8, s[76:77]")
        a.label("ct_skip")
    a("s_waitcnt lgkmcnt(0)")
    srd(a, SRD_X, P_X, S * D * 2)
    XR, DD = 16, 64
    vP, vSum, vSq = 2, 4, 6
    a(f"buffer_load_ushort v{vP}, v12, {S4(SRD_X)}, s6 offen")
    for i in range(10):
        a(f"buffer_load_dwordx4 {vr(XR+4*i,4)}, v13, {S4(SRD_X)}, s6 offen offset:{i*128}")
    a(f"s_load_dword s{sE}, s[{P_WS}:{P_WS+1}], {WS_EPOCH}")
    stamp_head(a)
    srd(a, SRD_WQ, P_WQ, D * D * 2)
    srd(a, SRD_WS, P_WS, WS_SIZE)
    srd(a, SRD_WG, P_WG, D * F * 2)
    srd(a, SRD_WU, P_WU, D * F * 2)
    srd(a, SRD_WD, P_WD, F * D * 2)
    srd(a, SRD_WO, P_WO, D * D * 2)
    srd(a, SRD_OUT, P_OUT, S * D * 2)
    a(f"s_and_b32 s6, s{sJ}, 1")
    a("s_cmp_eq_u32 s6, 0")
    a(f"s_cselect_b32 s{SRD_WKV}, s{P_WK}, s{P_WV}")
    a(f"s_cselect_b32 s{SRD_WKV+1}, s{P_WK+1}, s{P_WV+1}")
    a(f"s_mov_b32 s{SRD_WKV+2}, {D*DH*2}")
    a(f"s_mov_b32 s{SRD_WKV+3}, 0x20000")
    a(f"v_mov_b32 v{vSum}, 0\nv_mov_b32 v{vSum+1}, 0\nv_mov_b32 v{vSq}, 0\nv_mov_b32 v{vSq+1}, 0")
    a("s_mov_b32 s12, 0xffff0000")
    a("v_lshlrev_b32 v14, 4, v0")
    a(f"s_and_b32 s9, s{sWV}, 3")
    a("s_lshl_b32 s10, s9, 14")
    a(f"s_add_u32 s10, s10, {L_RING}")
    a(f"s_cmp_ge_u32 s{sWV}, 4")
    a("s_cbranch_scc1 pro_g")

    def ln(role, side=None, sched1=None, sched2=None, pre_bar=None):
        if role == "A":
            side = []
            if OPT["touch"]:
                side.append(lambda: touch_lin(a, SRD_WG, 8640, 17, 9, 56))
                side.append(lambda: touch_lin(a, SRD_WU, 8640, 17, 9, 57))
                side.append(lambda: touch_lin(a, SRD_WQ, 3200, 7, 9, 58))
            sched1 = {OPT.get("tpos", 9): 3}; sched2 = {}
        issued = [0]
        def do_side(n):
            for _ in range(n):
                if issued[0] < len(side):
                    side[issued[0]](); issued[0] += 1
        do_side(sched1.get(-1, 0))
        a(f"s_waitcnt vmcnt({10 + issued[0]})")
        stamp(a, 1)
        a(f"v_lshlrev_b32 v{vP}, 16, v{vP}")
        for i in range(10):
            a(f"s_waitcnt vmcnt({9-i + issued[0]})")
            for e in range(4):
                d = DD + 8 * i + 2 * e
                a(f"v_lshlrev_b32 v{d}, 16, v{XR+4*i+e}")
                a(f"v_and_b32 v{d+1}, s12, v{XR+4*i+e}")
            for e in range(4):
                d = DD + 8 * i + 2 * e
                a(f"v_pk_add_f32 {vr(d,2)}, {vr(d,2)}, {vr(vP,2)} op_sel_hi:[1,0] neg_lo:[0,1] neg_hi:[0,1]")
            for e in range(4):
                d = DD + 8 * i + 2 * e
                a(f"v_pk_add_f32 {vr(vSum,2)}, {vr(vSum,2)}, {vr(d,2)}")
                a(f"v_pk_fma_f32 {vr(vSq,2)}, {vr(d,2)}, {vr(d,2)}, {vr(vSq,2)}")
            do_side(sched1.get(i, 0))
        stamp(a, 2)
        a(f"v_add_f32 v{vSum}, v{vSum}, v{vSum+1}")
        a(f"v_add_f32 v{vSq}, v{vSq}, v{vSq+1}")
        for ctl in ("quad_perm:[1,0,3,2]", "quad_perm:[2,3,0,1]", "row_half_mirror"):
            a("s_nop 1")
            a(f"v_add_f32_dpp v{vSum}, v{vSum}, v{vSum} {ctl} row_mask:0xf bank_mask:0xf")
            a(f"v_add_f32_dpp v{vSq}, v{vSq}, v{vSq} {ctl} row_mask:0xf bank_mask:0xf")
        inv = f32bits(1.0 / D)
        a(f"v_mul_f32 v{vSum}, {hex(inv)}, v{vSum}")
        a(f"v_mul_f32 v{vSq}, {hex(inv)}, v{vSq}")
        a(f"v_fma_f32 v{vSq}, -v{vSum}, v{vSum}, v{vSq}")
        a(f"v_max_f32 v{vSq}, 0, v{vSq}")
        a(f"v_add_f32 v{vSq}, {hex(f32bits(1e-5))}, v{vSq}")
        a(f"v_rsq_f32 v{vSq}, v{vSq}")
        a(f"s_and_b32 s7, s{sRB}, 3")
        a("s_lshl_b32 s7, s7, 3")
        a(f"v_mul_f32 v{vSum}, v{vSum}, v{vSq}")
        a("v_add_u32 v8, s7, v10")
        a("v_and_b32 v9, 1, v11")
        a("v_lshl_add_u32 v8, v9, 5, v8")
        a("v_xor_b32 v8, v8, v11")
        a("v_lshlrev_b32 v8, 4, v8")
        a("v_lshrrev_b32 v9, 1, v11")
        a("v_lshl_add_u32 v8, v9, 11, v8")
        a(f"s_lshr_b32 s7, s{sRB}, 2")
        a("s_lshl_b32 s7, s7, 10")
        a("v_add_u32 v8, s7, v8")
        a("v_add_u32 v9, 0x10000, v8")
        for i in range(10):
            for e in range(4):
                d = DD + 8 * i + 2 * e
                a(f"v_pk_fma_f32 {vr(d,2)}, {vr(d,2)}, {vr(vSq,2)}, {vr(vSum,2)} op_sel_hi:[1,0,0] neg_lo:[0,0,1] neg_hi:[0,0,1]")
            for e in range(4):
                d = DD + 8 * i + 2 * e
                a(f"v_cvt_pk_bf16_f32 v{XR+4*i+e}, v{d}, v{d+1}")
            off = i * 8192
            a(f"ds_write_b128 v{8 if off < 65536 else 9}, {vr(XR+4*i,4)} offset:{L_XN + off % 65536}")
            do_side(sched2.get(i, 0))
        if role == "A":
            a("v_lshlrev_b32 v8, 2, v0")
            a(f"v_add_u32 v8, {L_CNT}, v8")
            a("v_mov_b32 v9, 0")
            a("ds_write_b32 v8, v9")
            assert issued[0] == len(side)
        if pre_bar: pre_bar()
        a("s_waitcnt lgkmcnt(0)")
        a(f"s_add_u32 s{sE}, s{sE}, 1")
        a(f"s_mul_i32 s{sTAG}, s{sE}, 0x9e3779b1")
        a(f"s_or_b32 s{sTAG}, s{sTAG}, 1")
        stamp(a, 3)
        a("s_barrier")
        do_side(99)
    ln("A")
    return ln

def emit_kv(a):
    vW0, vW1, vXE, vXO, vXE2, vXO2 = 1, 2, 3, 4, 5, 6
    ACC = 112
    FB = 16
    def wdma(first, n):
        for i in range(n):
            a(f"s_mov_b32 m0, {L_WKV + i*1024}")
            a(f"s_mov_b32 s7, {first + i*1024}")
            a(f"buffer_load_dwordx4 v14, {S4(SRD_WKV)}, s7 offen lds")
    wdma(0, 15)
    a("v_lshrrev_b32 v10, 4, v0")
    a("v_bfe_u32 v11, v0, 2, 2")
    a("v_lshl_add_u32 v11, v10, 3, v11")
    a("v_mul_u32_u24 v11, 40, v11")
    a("v_and_b32 v12, 3, v0")
    a("v_lshl_add_u32 v12, v12, 3, v11")
    a(f"v_add_u32 v{vW0}, {L_WKV}, v12")
    a(f"v_add_u32 v{vW1}, {L_WKV + 32}, v11")
    a(f"s_lshr_b32 s9, s{sJ}, 1")
    a("s_and_b32 s10, s9, 1")
    a("s_lshr_b32 s11, s9, 1")
    a("s_lshl_b32 s12, s10, 4")
    a("v_and_b32 v13, 15, v0")
    a("v_add_u32 v13, s12, v13")
    a("v_and_b32 v15, 1, v10")
    a("v_lshl_add_u32 v15, v15, 5, v13")
    a("v_xor_b32 v15, v15, v10")
    a("v_lshrrev_b32 v7, 1, v10")
    a("v_lshlrev_b32 v7, 11, v7")
    a("s_lshl_b32 s12, s11, 10")
    a("v_add_u32 v7, s12, v7")
    a(f"v_lshl_add_u32 v{vXE}, v15, 4, v7")
    a("v_xor_b32 v15, 4, v15")
    a(f"v_lshl_add_u32 v{vXO}, v15, 4, v7")
    a(f"v_add_u32 v{vXE2}, 0x10000, v{vXE}")
    a(f"v_add_u32 v{vXO2}, 0x10000, v{vXO}")
    def reads(b):
        for t in range(2):
            s = 2 * b + t
            fb = FB + (b & 1) * 24 + t * 12
            wo = (s if s < 12 else s - 12) * 1280
            a(f"ds_read_b64_tr_b16 {vr(fb,2)}, v{vW0} offset:{wo}")
            a(f"ds_read_b64_tr_b16 {vr(fb+2,2)}, v{vW0} offset:{wo+160}")
            a(f"ds_read_b64_tr_b16 {vr(fb+4,2)}, v{vW1} offset:{wo}")
            a(f"ds_read_b64_tr_b16 {vr(fb+6,2)}, v{vW1} offset:{wo+160}")
            off = L_XN + s * 4096
            reg = (vXO if s & 1 else vXE) if off < 65536 else (vXO2 if s & 1 else vXE2)
            a(f"ds_read_b128 {vr(fb+8,4)}, v{reg} offset:{off % 65536}")
    a(f"s_and_b32 s6, s{sJ}, 1")
    a("s_cmp_eq_u32 s6, 1")
    a("s_waitcnt vmcnt(0)")
    a("s_cbranch_scc1 kv_v")
    for kv in (0, 1):
        if kv: a.label("kv_v")
        reads(0)
        for b in range(10):
            if b == 5:
                a("s_waitcnt lgkmcnt(0)")
                wdma(12 * 1280, 10)
            elif b < 9:
                reads(b + 1)
                a("s_waitcnt lgkmcnt(10)")
            else:
                a("s_waitcnt lgkmcnt(0)")
            for t in range(2):
                fb = FB + (b & 1) * 24 + t * 12
                c = "0" if (b == 0 and t == 0) else None
                for ct in range(2):
                    if kv == 0: mfma16(a, ACC + 4 * ct, fb + 4 * ct, fb + 8, c)
                    else:       mfma16(a, ACC + 4 * ct, fb + 8, fb + 4 * ct, c)
            if b == 5:
                a("s_waitcnt vmcnt(0)")
                reads(6)
        a(f"s_lshl_b32 s12, s{sG}, 1")
        a("s_add_u32 s12, s12, s11")
        a(f"s_mul_i32 s12, s12, {KVT}")
        a(f"s_add_u32 s12, s12, {WS_KV}")
        if kv == 0:
            a("v_lshrrev_b32 v2, 1, v10")
            a("v_lshl_add_u32 v2, v2, 5, v13")
            a("v_lshlrev_b32 v2, 4, v2")
            a("v_and_b32 v3, 1, v10")
            a("v_lshl_add_u32 v2, v3, 3, v2")
            a("v_lshl_add_u32 v3, v10, 5, v13")
            a("v_lshlrev_b32 v3, 3, v3")
            a("v_add_u32 v3, 3072, v3")
            a(f"v_mov_b32 v4, {OOB}")
            a("v_cmp_lt_u32 vcc, 1, v10")
            a("s_nop 1")
            a("v_cndmask_b32 v3, v3, v4, vcc")
            for i in range(8): a(f"v_mul_f32 v{ACC+i}, {hex(f32bits(QSCALE))}, v{ACC+i}")
            a(f"v_cvt_pk_bf16_f32 v6, v{ACC}, v{ACC+1}")
            a(f"v_cvt_pk_bf16_f32 v7, v{ACC+2}, v{ACC+3}")
            a(f"v_cvt_pk_bf16_f32 v8, v{ACC+4}, v{ACC+5}")
            a(f"v_cvt_pk_bf16_f32 v9, v{ACC+6}, v{ACC+7}")
            a("v_cmp_eq_u32 vcc, 1, v10")
            a("v_mov_b32 v4, 0x3f803f80")
            a("v_mov_b32 v5, 0x00003f80")
            a("v_cndmask_b32 v8, v8, v4, vcc")
            a("v_cndmask_b32 v9, v9, v5, vcc")
            a("s_branch kv_store")
        else:
            a("v_and_b32 v1, 15, v0")
            a("v_and_b32 v4, 1, v10")
            a("v_lshl_add_u32 v2, v4, 5, v1")
            a("v_lshlrev_b32 v2, 4, v2")
            a("v_lshrrev_b32 v4, 1, v10")
            a("v_lshl_add_u32 v2, v4, 3, v2")
            a("s_lshl_b32 s13, s10, 10")
            a("s_add_u32 s13, s13, 1024")
            a("v_add_u32 v2, s13, v2")
            a("v_add_u32 v3, 256, v2")
            a(f"v_cvt_pk_bf16_f32 v6, v{ACC}, v{ACC+1}")
            a(f"v_cvt_pk_bf16_f32 v7, v{ACC+2}, v{ACC+3}")
            a(f"v_cvt_pk_bf16_f32 v8, v{ACC+4}, v{ACC+5}")
            a(f"v_cvt_pk_bf16_f32 v9, v{ACC+6}, v{ACC+7}")
            a("v_cmp_eq_u32 vcc, 4, v1")
            a("v_mov_b32 v4, 0x3f803f80")
            a("v_mov_b32 v5, 0")
            a("v_cndmask_b32 v4, v5, v4, vcc")
            a("v_cmp_lt_u32 vcc, 3, v1")
            a("s_nop 1")
            a("v_cndmask_b32 v8, v8, v4, vcc")
            a("v_cndmask_b32 v9, v9, v4, vcc")
    a.label("kv_store")
    a(f"buffer_store_dwordx2 v[6:7], v2, {S4(SRD_WS)}, s12 offen sc1")
    a(f"buffer_store_dwordx2 v[8:9], v3, {S4(SRD_WS)}, s12 offen sc1")
    lds_signal(a, C_F1, 10)
    lds_signal(a, C_KVD, 10)
    a(f"s_lshl_b32 s12, s{sG}, 3")
    a(f"s_add_u32 s12, s12, s{sJ}")
    a("s_lshl_b32 s12, s12, 2")
    a(f"s_add_u32 s12, s12, {FL_KV}")
    flag_set(a, 12, 10)

def touch_lin(a, srd_, per_cu, nl, part, dst):
    a(f"v_min_u32 v8, {nl-1}, v0")
    a("v_lshlrev_b32 v8, 7, v8")
    a(f"s_mul_i32 s7, s2, {per_cu}")
    if part is not None:
        a(f"s_mul_i32 s8, s{part}, {nl*128}")
        a("s_add_u32 s7, s7, s8")
    a(f"buffer_load_dword v{dst}, v8, {S4(srd_)}, s7 offen")

def emit_late_touch(a):
    if not OPT["touch"]: return
    a(f"s_and_b32 s6, s{sWV}, 1")
    a("s_waitcnt vmcnt(0)")
    a(f"s_sleep {OPT.get('ltsleep', 32)}")
    touch_lin(a, SRD_WD, 8640, 34, 6, 57)
    touch_lin(a, SRD_WO, 3200, 13, 6, 58)

def emit_role_a(a):
    NQ = 8
    OA, QF, SB, KB = 128, 80, 48, 16
    v16, v8 = 2, 3
    a(f"s_cmp_ge_u32 s{sWV}, 2")
    a("s_cbranch_scc1 a_touch")
    a(f"s_cmp_eq_u32 s{sWV}, 1")
    a("s_cbranch_scc1 a_join")
    a(f"s_setprio {OPT['kvprio']}")
    emit_kv(a)
    a("s_setprio 0")
    a("s_branch a_join")
    a.label("a_touch")
    emit_late_touch(a)
    a.label("a_join")
    stamp(a, 4)
    a(f"s_mov_b32 s{SRD_KVR}, s{P_WS}")
    a(f"s_mov_b32 s{SRD_KVR+1}, s{P_WS+1}")
    a(f"s_mul_i32 s{SRD_KVR+2}, s{sWV}, {16*KVT}")
    a(f"s_add_u32 s{SRD_KVR+2}, s{SRD_KVR+2}, {WS_KV + 16*KVT}")
    a(f"v_lshlrev_b32 v{v16}, 4, v0")
    a(f"v_lshlrev_b32 v{v8}, 3, v0")
    a("s_waitcnt vmcnt(0)")
    for i in range(NQ * 16): a(f"v_mov_b32 v{OA+i}, 0")
    for i in range(16): a(f"v_mov_b32 v{SB+16+i}, 0")
    for i in range(16): a(f"v_mov_b32 v{KB+16+i}, 0")
    a("v_and_b32 v6, 31, v0")
    a("v_lshlrev_b32 v6, 4, v6")
    a("v_lshrrev_b32 v7, 5, v0")
    a("v_lshl_add_u32 v7, v7, 9, v6")
    a(f"v_mov_b32 v8, {OOB}")
    a("v_cmp_gt_u32 vcc, 32, v0")
    a(f"s_lshl_b32 s8, s{sJ}, 2")
    a(f"s_add_u32 s8, s8, s{sWV}")
    a("s_mul_i32 s6, s8, 20")
    a("s_add_u32 s9, s6, 19")
    a("s_lshr_b32 s6, s6, 7")
    a("s_lshr_b32 s9, s9, 7")
    a("v_cndmask_b32 v6, v8, v6, vcc")
    a("v_mov_b32 v12, s6")
    a("v_mov_b32 v13, s9")
    a("v_cndmask_b32 v12, v12, v13, vcc")
    a(f"v_lshlrev_b32 v12, {FS()}, v12")
    a(f"s_lshl_b32 s13, s{sG}, 5")
    a("s_add_u32 s13, s13, s8")
    a(f"s_lshl_b32 s13, s13, {MS()}")
    a(f"s_add_u32 s13, s13, {MB_Q}")
    a("s_and_b32 s9, s8, 1")
    a("s_mul_i32 s8, s8, 5")
    a("s_lshr_b32 s8, s8, 1")
    a("s_lshl_b32 s8, s8, 9")
    a(f"s_mul_i32 s6, s{sG}, 81920")
    a("s_add_u32 s8, s8, s6")
    a(f"s_add_u32 s8, s8, {WS_QGB}")
    a("s_lshl_b32 s10, s9, 3")
    a("s_add_u32 s10, s10, s8")
    a("s_mul_i32 s11, s9, 504")
    a("s_add_u32 s11, s11, s8")
    a("s_add_u32 s11, s11, 8")
    for d in range(4):
        a(f"s_add_u32 s8, s{sWV}, {d}")
        a("s_and_b32 s8, s8, 3")
        a("s_mul_i32 s8, s8, 3072")
        a(f"s_add_u32 s8, s8, {L_WKV}")
        a(f"v_add_u32 v{8+d}, s8, v{v16}")
    lds_wait(a, C_KVD, 1, 14, 8, sleep=8)
    lds_wait(a, C_F1, OPT.get("f1wait", 2), 14, 8, sleep=8)
    a("s_setprio 3")
    stamp(a, 1)
    a(f"s_lshl_b32 s6, s{sWV}, 8")
    a(f"s_add_u32 s6, s6, {FL_KV}")
    a("v_lshlrev_b32 v4, 2, v0")
    flag_poll(a, 4, 6, 5, 7, sleep=OPT["kvsleep"])
    stamp(a, 2)
    a(f"s_mul_i32 s7, s{sWV}, {16*KVT}")
    a(f"s_add_u32 s7, s7, {WS_KV}")
    def kvload(b):
        kb = KB + 16 * b
        a(f"buffer_load_dwordx4 {vr(kb,4)}, v{v16}, {S4(SRD_KVR)}, s7 offen sc1")
        a(f"buffer_load_dwordx2 {vr(kb+12,2)}, v{v8}, {S4(SRD_KVR)}, s7 offen offset:3072 sc1")
        a(f"buffer_load_dwordx4 {vr(kb+4,4)}, v{v16}, {S4(SRD_KVR)}, s7 offen offset:1024 sc1")
        a(f"buffer_load_dwordx4 {vr(kb+8,4)}, v{v16}, {S4(SRD_KVR)}, s7 offen offset:2048 sc1")
        a(f"s_add_u32 s7, s7, {KVT}")
    kvload(0)
    if OPT["stamp"]: a("s_waitcnt vmcnt(0)")
    stamp(a, 3)
    flag_poll(a, 12, 13, 5, 8, sleep=OPT.get("qsleep", 4))
    stamp(a, 5)
    for rt in range(2):
        if rt:
            a("s_add_u32 s10, s10, 40960")
            a("s_add_u32 s11, s11, 40960")
        a(f"buffer_load_dwordx2 {vr(QF+4*rt,2)}, v7, {S4(SRD_WS)}, s10 offen sc1")
        a(f"buffer_load_dwordx2 {vr(QF+4*rt+2,2)}, v7, {S4(SRD_WS)}, s11 offen sc1")
        a(f"buffer_load_dwordx2 {vr(QF+32+2*rt,2)}, v6, {S4(SRD_WS)}, s10 offen offset:1024 sc1")
    a("s_waitcnt vmcnt(0)")
    a(f"ds_write_b128 v8, {vr(QF,4)}")
    a(f"ds_write_b128 v8, {vr(QF+4,4)} offset:1024")
    a(f"ds_write_b128 v8, {vr(QF+32,4)} offset:2048")
    lds_signal(a, C_QR, 14)
    lds_wait(a, C_QR, 4, 14, 8)
    for d in range(1, 4):
        a(f"ds_read_b128 {vr(QF+8*d,4)}, v{8+d}")
        a(f"ds_read_b128 {vr(QF+8*d+4,4)}, v{8+d} offset:1024")
        a(f"ds_read_b128 {vr(QF+32+4*d,4)}, v{8+d} offset:2048")
    a(f"s_setprio {OPT['aprio']}")
    def qk0(n):
        b = (n // NQ) & 1; qt = n % NQ
        mfma32(a, SB + 16 * (n & 1), KB + 16 * b, QF + 4 * qt, "0")
    def qk1(n):
        b = (n // NQ) & 1; qt = n % NQ
        mfma32x8(a, SB + 16 * (n & 1), KB + 16 * b + 12, QF + 32 + 2 * qt)
    def pv(n, t):
        b = (n // NQ) & 1; qt = n % NQ
        mfma32(a, OA + 16 * qt, KB + 16 * b + 4 + 4 * t, SB + 16 * (n & 1) + 4 * t)
    qk0(0); qk1(0)
    a("s_nop 7"); a("s_nop 2")
    a("s_waitcnt lgkmcnt(0)")
    stamp(a, 6)
    a("s_mov_b32 s8, 8")
    a.lines.append(".p2align 6")
    a.label("att_loop")
    for n in range(2 * NQ):
        s = SB + 16 * (n & 1)
        def e(i): a(f"v_exp_f32 v{s+i}, v{s+i}")
        def c(i): a(f"v_cvt_pk_bf16_f32 v{s+i}, v{s+2*i}, v{s+2*i+1}")
        e(0); e(1)
        pv((n - 1) % (2 * NQ), 1)
        if n % NQ == 0 and not OPT.get("nokvload"):
            if OPT["ldprio"]: a(f"s_setprio {OPT['ldprio']}")
            kvload(((n // NQ) + 1) & 1)
            if OPT["ldprio"]: a(f"s_setprio {OPT['aprio']}")
        V = [("e",2),("e",3),("c",0),("c",1),("e",4),("e",5),("e",6),("e",7),("c",2),("c",3),("e",8),("e",9),("e",10),("e",11),("c",4),("c",5),("e",12),("e",13),("e",14),("e",15),("c",6),("c",7)]
        p1, p2, p3 = {0: (5, 11, 17), 1: (4, 7, 12), 2: (3, 7, 12), 3: (4, 8, 12)}[OPT.get("clus", 0)]
        for i, (k, r) in enumerate(V):
            if i == p1:
                if (n + 1) % NQ == 0 and not OPT.get("nokvwait"):
                    a("s_waitcnt vmcnt(0)")
                qk0(n + 1)
            if i == p2: qk1(n + 1)
            if i == p3: pv(n, 0)
            (e if k == "e" else c)(r)
    a("s_sub_u32 s8, s8, 1")
    a("s_cmp_lg_u32 s8, 0")
    a("s_cbranch_scc1 att_loop")
    pv(2 * NQ - 1, 1)
    stamp(a, 7)
    a("s_setprio 3")
    lds_wait(a, C_F2, 4, 4, 8)
    a(f"s_mul_i32 s9, s{sWV}, {6*3072}")
    a(f"v_add_u32 v4, s9, v{v16}")
    for t in range(2, 8):
        for q4 in range(3):
            a(f"ds_write_b128 v4, {vr(OA+16*t+4*q4,4)} offset:{(t-2)*3072+q4*1024}")
    lds_signal(a, C_A1, 6)
    stamp(a, 8)
    a(f"s_mul_i32 s10, s{sG}, 40")
    a(f"s_mul_i32 s11, s{sJ}, 5")
    a("s_add_u32 s10, s10, s11")
    a("s_add_u32 s11, s10, 4")
    a(f"s_add_u32 s10, s10, s{sWV}")
    a("s_lshl_b32 s10, s10, 11")
    a(f"s_add_u32 s10, s10, {WS_OF}")
    a("s_lshl_b32 s11, s11, 11")
    a(f"s_add_u32 s11, s11, {WS_OF}")
    a(f"s_lshr_b32 s12, s{sWV}, 1")
    a("s_lshl_b32 s12, s12, 9")
    a(f"s_and_b32 s13, s{sWV}, 1")
    a("s_lshl_b32 s13, s13, 3")
    a("s_add_u32 s12, s12, s13")
    a(f"v_add_u32 v10, s12, v{v16}")
    a(f"v_mov_b32 v11, {OOB}")
    a("v_cmp_gt_u32 vcc, 32, v0")
    for d in range(1, 4):
        a(f"s_sub_u32 s9, s{sWV}, {d}")
        a("s_and_b32 s9, s9, 3")
        a(f"s_mul_i32 s9, s9, {6*3072}")
        a(f"v_add_u32 v{11+d}, s9, v{v16}")
    a("v_cndmask_b32 v10, v11, v10, vcc")
    lds_wait(a, C_A1, 4, 4, 8)
    stamp(a, 9)
    R = 16
    for rt in range(2):
        for d in range(1, 4):
            for q4 in range(3):
                a(f"ds_read_b128 {vr(R+rt*36+(d-1)*12+q4*4,4)}, v{11+d} offset:{(2*(d-1)+rt)*3072+q4*1024}")
    for rt in range(2):
        a(f"s_waitcnt lgkmcnt({9 if rt == 0 else 0})")
        b = R + rt * 36; o = OA + 16 * rt
        for i in range(12):
            a(f"v_add_f32 v{o+i}, v{o+i}, v{b+i}")
            a(f"v_add_f32 v{b+12+i}, v{b+12+i}, v{b+24+i}")
        for i in range(12):
            a(f"v_add_f32 v{o+i}, v{o+i}, v{b+12+i}")
        a(f"v_mov_b32 v8, v{o+8}")
        a(f"v_mov_b32 v9, v{o+8}")
        a("s_nop 1")
        a("v_permlane32_swap_b32 v8, v9")
        a("s_nop 1")
        a("v_rcp_f32 v9, v9")
        a("s_nop 0")
        for i in range(12):
            a(f"v_mul_f32 v{o+i}, v9, v{o+i}")
        for i in range(6):
            a(f"v_cvt_pk_bf16_f32 v{b+i}, v{o+2*i}, v{o+2*i+1}")
        a(f"buffer_store_dwordx4 {vr(b,4)}, v{v16}, {S4(SRD_WS)}, s10 offen offset:{rt*1024} sc1")
        a(f"buffer_store_dwordx2 {vr(b+4,2)}, v10, {S4(SRD_WS)}, s11 offen offset:{rt*1024} sc1")
    a(f"s_lshl_b32 s12, s{sG}, {MS()+5}")
    a(f"s_and_b32 s13, s{sJ}, 3")
    a(f"s_lshl_b32 s13, s13, {MS()}")
    a("s_add_u32 s12, s12, s13")
    a(f"s_and_b32 s13, s{sJ}, 4")
    a(f"s_add_u32 s13, s13, s{sWV}")
    a(f"s_lshl_b32 s13, s13, {FS()}")
    a("s_add_u32 s12, s12, s13")
    a(f"s_add_u32 s12, s12, {MB_O}")
    a(f"v_lshlrev_b32 v8, {MS()+2}, v0")
    stamp(a, 10)
    flag_bcast(a, 8, 12, 8, 9)
    stamp(a, 11)
    a(f"s_or_b32 s12, s2, s{sWV}")
    a("s_cmp_lg_u32 s12, 0")
    a("s_cbranch_scc1 k_end")
    a(f"v_mov_b32 v8, {WS_EPOCH}")
    a(f"v_mov_b32 v9, s{sE}")
    a("s_mov_b64 exec, 1")
    a(f"buffer_store_dword v9, v8, {S4(SRD_WS)}, 0 offen sc1")
    a("s_mov_b64 exec, -1")
    a("s_branch k_end")

def emit_role_g(a, ln):
    a.label("pro_g")
    XA, TA = 56, 60
    vGO, vUO = 1, 15
    FB, ACC = 64, 128
    a("s_lshl_b32 s6, s9, 3")
    a(f"s_add_u32 s6, s6, s{sJ}")
    a("s_cmp_ge_u32 s6, 27")
    a("s_cselect_b32 s78, 1280, 0")
    a("s_cselect_b32 s79, 0, 3456")
    a("s_add_u32 s78, s78, s79")
    a("s_lshl_b32 s79, s78, 3")
    a("s_lshl_b32 s80, s78, 4")
    a("s_lshl_b32 s7, s6, 7")
    a("s_mov_b32 s8, 0")
    a("s_cmp_lt_u32 s6, 27")
    a("s_cbranch_scc1 pro_gf")
    for k in range(3):
        a(f"s_mov_b32 s{SRD_WG+k}, s{SRD_WQ+k}")
        a(f"s_mov_b32 s{SRD_WU+k}, s{SRD_WQ+k}")
    a("s_sub_u32 s7, s6, 27")
    a("s_lshl_b32 s7, s7, 8")
    a("s_mov_b32 s8, 128")
    a.label("pro_gf")
    a("v_lshrrev_b32 v8, 3, v0")
    a("v_mul_lo_u32 v9, v8, s78")
    a("v_bfe_u32 v12, v0, 1, 2")
    a("v_bfe_u32 v8, v0, 4, 1")
    a("v_xor_b32 v12, v12, v8")
    a("v_and_b32 v8, 1, v0")
    a("v_lshl_add_u32 v9, v8, 4, v9")
    a("v_add_u32 v9, s7, v9")
    a(f"v_lshl_add_u32 v{vGO}, v12, 5, v9")
    a("v_xor_b32 v12, 2, v12")
    a("v_add_u32 v9, s8, v9")
    a(f"v_lshl_add_u32 v{vUO}, v12, 5, v9")
    a("s_mov_b32 s13, 0")
    def f1slot(stage): return (stage & 3) * 4096
    def f1_dma_ops(stage):
        ops = []
        for gu in range(2):
            for i in range(2):
                def op(gu=gu, i=i):
                    a(f"s_add_u32 m0, s10, {f1slot(stage) + gu*2048 + i*1024}")
                    if i: a("s_add_u32 s11, s13, s79")
                    else: a("s_nop 0")
                    a(f"buffer_load_dwordx4 v{vUO if gu else vGO}, {S4(SRD_WU if gu else SRD_WG)}, {'s11' if i else 's13'} offen lds")
                    if gu == 1 and i == 1: a("s_add_u32 s13, s13, s80")
                ops.append(op)
        return ops
    xn_read_addrs(a, XA, 8)
    a("v_lshrrev_b32 v12, 5, v0")
    a("v_bfe_u32 v13, v0, 2, 2")
    a("v_lshl_add_u32 v12, v12, 3, v13")
    a("v_lshlrev_b32 v12, 7, v12")
    a("v_bfe_u32 v13, v0, 1, 1")
    a("v_lshl_add_u32 v12, v13, 11, v12")
    a("v_and_b32 v14, 1, v0")
    a("v_lshl_add_u32 v12, v14, 4, v12")
    a("v_bfe_u32 v14, v0, 4, 1")
    a("v_lshl_add_u32 v12, v14, 3, v12")
    a("v_add_u32 v12, s10, v12")
    a("v_bfe_u32 v14, v0, 3, 1")
    a("v_lshl_or_b32 v14, v13, 1, v14")
    for t in range(4):
        a(f"v_xor_b32 v8, {t}, v14")
        a(f"v_lshl_add_u32 v{TA+t}, v8, 5, v12")
    for i in range(16, 128): a(f"v_mov_b32 v{ACC+i}, 0")
    side = []
    for st in range(4): side += f1_dma_ops(st)
    e0 = OPT.get("early", 4)
    def pre_bar():
        for i in range(16): a(f"v_mov_b32 v{ACC+i}, 0")
    ln("G", side, {-1: e0, 9: OPT.get("mid", 2)}, {i: OPT.get("late", 1) for i in range(10)}, pre_bar)
    a(f"s_setprio {OPT['eprio']}")
    def f1_read_ops(u):
        fb = FB + (u & 1) * 24
        so = f1slot(u)
        ops = [lambda: a(f"ds_read_b128 {vr(fb+16,4)}, v{XA+(u&3)} offset:{L_XN+u*2048}"),
               lambda: a(f"ds_read_b128 {vr(fb+20,4)}, v{XA+(u&3)} offset:{L_XN+u*2048+1024}")]
        for t in range(4):
            ops.append(lambda t=t: a(f"ds_read_b64_tr_b16 {vr(fb+4*t,2)}, v{TA+t} offset:{so}"))
            ops.append(lambda t=t: a(f"ds_read_b64_tr_b16 {vr(fb+4*t+2,2)}, v{TA+t} offset:{so+512}"))
        return ops
    a("s_waitcnt vmcnt(12)")
    for op in f1_read_ops(0): op()
    a("s_mov_b32 s8, 10")
    stamp(a, 5)
    a(f"s_setprio {OPT['gprio']}")
    a("s_cmp_lt_u32 s6, 27")
    a("s_cbranch_scc1 f1_loop")
    a(f"s_setprio {OPT.get('qprio', 3)}")
    a.lines.append(".p2align 6")
    a.label("f1_loop")
    for u in range(4):
        a("s_waitcnt vmcnt(8) lgkmcnt(0)")
        if OPT["f1hi"]:
            a(f"s_setprio {2 if u < OPT['f1hi'] else OPT['gprio']}")
        fb = FB + (u & 1) * 24
        mm = [(lambda t=t, rt=rt: mfma32(a, ACC + (t * 2 + rt) * 16, fb + 4 * t, fb + 16 + 4 * rt)) for t in range(4) for rt in range(2)]
        side = f1_read_ops(u + 1) + f1_dma_ops(u)
        interleave(a, mm, side, [3, 3, 2, 2, 1, 1, 1, 1])
    for m in range(4): a(f"v_add_u32 v{XA+m}, 8192, v{XA+m}")
    a("s_sub_u32 s8, s8, 1")
    a("s_cmp_lg_u32 s8, 0")
    a("s_cbranch_scc1 f1_loop")
    a(f"s_setprio {OPT['eprio']}")
    stamp(a, 6)
    WOFF = 2
    TB = 6
    vBX, vBY = 9, 10
    HP = 24
    lds_signal(a, C_F1, 12)
    a("s_cmp_lt_u32 s6, 27")
    a("s_cbranch_scc1 f1_epi")
    a("s_setprio 3")
    a("v_lshlrev_b32 v12, 4, v0")
    a("s_sub_u32 s8, s6, 27")
    a("s_lshl_b32 s7, s8, 13")
    a(f"s_mul_i32 s8, s{sG}, 81920")
    a("s_add_u32 s7, s7, s8")
    a(f"s_add_u32 s7, s7, {WS_QGB}")
    a("s_add_u32 s8, s7, 4096")
    a("s_add_u32 s82, s7, 40960")
    a("s_add_u32 s83, s8, 40960")
    for t in range(4):
        for rt in range(2):
            ac = ACC + (t * 2 + rt) * 16
            o = 16 + ((t * 2 + rt) & 3) * 8
            for up in range(2):
                for hi in range(2):
                    r = ac + 8 * hi + 4 * up
                    a(f"v_cvt_pk_bf16_f32 v{o+4*up+2*hi}, v{r}, v{r+1}")
                    a(f"v_cvt_pk_bf16_f32 v{o+4*up+2*hi+1}, v{r+2}, v{r+3}")
                so = [[7, 8], [82, 83]][rt][up]
                a(f"buffer_store_dwordx4 {vr(o+4*up,4)}, v12, {S4(SRD_WS)}, s{so} offen offset:{t*1024} sc1")
    a(f"s_lshl_b32 s7, s{sG}, {MS()+5}")
    a("s_sub_u32 s8, s6, 27")
    a("s_mul_i32 s82, s8, 32")
    a("s_mul_i32 s82, s82, 0x3334")
    a("s_lshr_b32 s82, s82, 16")
    a(f"s_lshl_b32 s8, s8, {FS()}")
    a("s_add_u32 s7, s7, s8")
    a(f"s_add_u32 s7, s7, {MB_Q}")
    a("v_add_u32 v12, s82, v0")
    a("v_min_u32 v12, 31, v12")
    a(f"v_lshlrev_b32 v12, {MS()}, v12")
    flag_bcast(a, 12, 7, 8, 13)
    a(f"s_setprio {OPT['eprio']}")
    a("s_branch f1_epi_skip")
    a.label("f1_epi")
    T = 16
    idx = [(0, 4), (1, 5), (2, 6), (3, 7), (8, 12), (9, 13), (10, 14), (11, 15)]
    a("s_nop 3")
    for t in range(4):
        for rt in range(2):
            ac = ACC + (t * 2 + rt) * 16
            hp = HP + (t * 2 + rt) * 4
            for e, (gi, ui) in enumerate(idx): a(f"v_mul_f32 v{T+e}, {NL2E}, v{ac+gi}")
            for e in range(8): a(f"v_exp_f32 v{T+e}, v{T+e}")
            for e in range(8): a(f"v_add_f32 v{T+e}, 1.0, v{T+e}")
            for e in range(8): a(f"v_rcp_f32 v{T+e}, v{T+e}")
            for e, (gi, ui) in enumerate(idx): a(f"v_mul_f32 v{ac+gi}, v{ac+gi}, v{ac+ui}")
            for e, (gi, ui) in enumerate(idx): a(f"v_mul_f32 v{T+e}, v{T+e}, v{ac+gi}")
            for e in range(4): a(f"v_cvt_pk_bf16_f32 v{hp+e}, v{T+2*e}, v{T+2*e+1}")
    a.label("f1_epi_skip")
    stamp(a, 7)
    FB2, BB, ACC2, WF = 16, 40, 80, 160
    TC, TD = 250, 253
    a(f"s_and_b32 s76, s{sJ}, 1")
    a(f"s_lshr_b32 s77, s{sJ}, 1")
    a("s_mul_i32 s77, s77, 320")
    a("s_lshl_b32 s8, s76, 7")
    a("s_add_u32 s77, s77, s8")
    for i in range(4):
        a(f"v_add_u32 v12, {i*64}, v0")
        a("v_mul_u32_u24 v13, 0xaab, v12")
        a("v_lshrrev_b32 v13, 15, v13")
        a("v_mul_u32_u24 v14, 12, v13")
        a("v_sub_u32 v14, v12, v14")
        a("v_mul_u32_u24 v13, 1280, v13")
        a("v_lshl_add_u32 v13, v14, 4, v13")
        a(f"v_add_u32 v{WOFF+i}, s77, v13")
    a("v_cmp_lt_u32 vcc, 47, v0")
    a(f"v_mov_b32 v12, {OOB}")
    a("s_mul_i32 s78, s9, 28")
    a(f"v_cndmask_b32 v{WOFF+3}, v{WOFF+3}, v12, vcc")
    a(f"s_mul_i32 s11, s78, {16*1280}")
    a(f"s_add_u32 s7, s11, {28*16*1280}")
    a(f"s_min_u32 s{SRD_WD+2}, s7, {F*D*2}")
    a("s_lshl_b32 s84, s9, 14")
    a("s_lshl_b32 s79, s76, 6")
    a("s_add_u32 s80, s79, 64")
    a("s_cmp_eq_u32 s76, 0")
    a("s_cselect_b32 s81, 128, 0")
    a("v_bfe_u32 v12, v0, 2, 2")
    a("v_mul_u32_u24 v12, 192, v12")
    a("v_bfe_u32 v13, v0, 4, 1")
    a("v_bfe_u32 v14, v0, 1, 1")
    a("v_lshl_add_u32 v13, v13, 1, v14")
    a("v_add_u32 v13, s9, v13")
    a("v_and_b32 v13, 3, v13")
    a("v_lshl_add_u32 v12, v13, 4, v12")
    a("v_and_b32 v13, 1, v0")
    a("v_lshl_add_u32 v12, v13, 3, v12")
    a("v_add_u32 v11, s10, v12")
    a("v_lshrrev_b32 v13, 5, v0")
    a(f"v_mul_u32_u24 v14, {8*192}, v13")
    for t, sT in enumerate((79, 80, 81)):
        a(f"v_add3_u32 v{TB+t}, v11, v14, s{sT}")
    a("v_add_u32 v11, s84, v12")
    a(f"v_mul_u32_u24 v14, {4*192}, v13")
    a("v_lshlrev_b32 v15, 13, v13")
    for t, sT in enumerate((79, 80, 81)):
        a(f"v_add3_u32 v{TC+t}, v11, v14, s{sT}")
        a(f"v_add3_u32 v{TD+t}, v11, v15, s{sT}")
    a("v_lshlrev_b32 v11, 4, v0")
    a("s_lshl_b32 s7, s76, 10")
    a(f"v_add_u32 v{vBX}, s7, v11")
    a("s_xor_b32 s7, s7, 1024")
    a(f"v_add_u32 v{vBY}, s7, v11")
    for i in range(80): a(f"v_mov_b32 v{ACC2+i}, 0")
    a("s_cmp_eq_u32 s9, 3")
    a("s_cselect_b32 s7, 5, 6")
    a("v_min_u32 v15, s7, v0")
    a(f"v_lshlrev_b32 v15, {FS()}, v15")
    a(f"s_lshl_b32 s83, s{sG}, 3")
    a(f"s_add_u32 s83, s83, s{sJ}")
    a("s_lshl_b32 s83, s83, 2")
    a("s_add_u32 s83, s83, s9")
    a(f"s_lshl_b32 s83, s83, {MS()}")
    a(f"s_add_u32 s83, s83, {MB_H}")
    a(f"s_mul_i32 s12, s{sG}, {108*2048}")
    a(f"s_add_u32 s12, s12, {WS_HF}")
    a("s_lshl_b32 s8, s78, 11")
    a("s_add_u32 s82, s12, s8")
    a("s_lshl_b32 s8, s6, 13")
    a("s_add_u32 s12, s12, s8")
    a(f"s_mov_b32 s{SRD_H}, s{P_WS}")
    a(f"s_mov_b32 s{SRD_H+1}, s{P_WS+1}")
    a("s_cmp_eq_u32 s9, 3")
    a("s_cselect_b32 s8, 24, 28")
    a("s_lshl_b32 s8, s8, 11")
    a(f"s_add_u32 s{SRD_H+2}, s82, s8")
    a("s_mul_i32 s8, s6, 37")
    a("s_lshr_b32 s8, s8, 8")
    a("s_mul_i32 s7, s8, 7")
    a("s_sub_u32 s7, s6, s7")
    a(f"s_lshl_b32 s8, s8, {MS()}")
    a(f"s_lshl_b32 s7, s7, {FS()}")
    a(f"s_lshl_b32 s13, s{sG}, {MS()+5}")
    a("s_add_u32 s13, s13, s8")
    a("s_add_u32 s13, s13, s7")
    a(f"s_add_u32 s13, s13, {MB_H}")
    a(f"v_lshlrev_b32 v1, {MS()+2}, v0")
    a(f"v_mov_b32 v14, s{sTAG}")
    def wd_dma_ops(slot):
        ops = []
        for i in range(3):
            def op(i=i):
                a(f"s_add_u32 m0, s10, {slot*4096 + i*1024}")
                a("s_nop 0")
                a(f"buffer_load_dwordx4 v{WOFF+i}, {S4(SRD_WD)}, s11 offen lds")
                if i == 2: a(f"s_add_u32 s11, s11, {16*1280}")
            ops.append(op)
        return ops
    def wo_stage(sl, sbase):
        for s in range(4):
            a(f"s_mul_i32 s7, s9, {80*1280}")
            a(f"s_add_u32 s7, s7, {(sl*320 + s*20)*1280}")
            for i in range(4):
                a(f"s_add_u32 m0, s{sbase}, {s*4096 + i*1024}")
                a("s_nop 0")
                a(f"buffer_load_dwordx4 v{WOFF+i}, {S4(SRD_WO)}, s7 offen lds")
    def wo_reads():
        for s5 in range(5):
            for t in range(3):
                f = WF + s5 * 12 + 4 * t
                if s5 < 4:
                    a(f"ds_read_b64_tr_b16 {vr(f,2)}, v{TC+t} offset:{s5*4096}")
                    a(f"ds_read_b64_tr_b16 {vr(f+2,2)}, v{TC+t} offset:{s5*4096+8*192}")
                else:
                    a(f"ds_read_b64_tr_b16 {vr(f,2)}, v{TD+t} offset:{16*192}")
                    a(f"ds_read_b64_tr_b16 {vr(f+2,2)}, v{TD+t} offset:{4096+16*192}")
    a("s_setprio 0")
    lds_wait(a, C_F1, 5, 12, 7, sleep=4)
    lds_wait(a, C_QR, 4, 12, 7, sleep=4)
    a("s_waitcnt vmcnt(0)")
    a("s_cmp_ge_u32 s6, 27")
    a("s_cbranch_scc1 h_st_skip")
    for t in range(4):
        for rt in range(2):
            a(f"buffer_store_dwordx4 {vr(HP+(t*2+rt)*4,4)}, v11, {S4(SRD_WS)}, s12 offen offset:{(t&1)*2048+rt*1024} sc1")
        if t == 1: a("s_add_u32 s12, s12, 4096")
    a.label("h_st_skip")
    for n in range(4):
        for op in wd_dma_ops(n): op()
    a("s_cmp_ge_u32 s6, 27")
    a("s_cbranch_scc1 h_fl_skip")
    a("s_waitcnt vmcnt(12)")
    a("s_mov_b64 exec, 0xff")
    a(f"buffer_store_dword v14, v1, {S4(SRD_WS)}, s13 offen sc1")
    a("s_mov_b64 exec, -1")
    a.label("h_fl_skip")
    wo_stage(0, 84)
    a("s_waitcnt vmcnt(0)")
    wo_reads()
    flag_poll(a, 15, 83, 13, 8, sleep=OPT.get("hsleep", 8))
    stamp(a, 8)
    def h_ops(slot):
        return [lambda: a(f"buffer_load_dwordx4 {vr(BB+slot*8,4)}, v{vBX}, {S4(SRD_H)}, s82 offen sc1"),
                lambda: (a(f"buffer_load_dwordx4 {vr(BB+slot*8+4,4)}, v{vBY}, {S4(SRD_H)}, s82 offen sc1"), a("s_add_u32 s82, s82, 2048"))]
    for n in range(4):
        for op in h_ops(n): op()
    def f2_read_ops(u):
        fb = FB2 + (u & 1) * 12
        slot = u % 4
        ops = []
        for t in range(3):
            ops.append(lambda t=t: a(f"ds_read_b64_tr_b16 {vr(fb+4*t,2)}, v{TB+t} offset:{slot*4096}"))
            ops.append(lambda t=t: a(f"ds_read_b64_tr_b16 {vr(fb+4*t+2,2)}, v{TB+t} offset:{slot*4096+4*192}"))
        return ops
    def mm5(fb, bx, by, acc, c=None):
        return [lambda: mfma32(a, acc + 0, fb + 0, bx, c), lambda: mfma32(a, acc + 16, fb + 0, by, c),
                lambda: mfma32(a, acc + 32, fb + 4, bx, c), lambda: mfma32(a, acc + 48, fb + 4, by, c),
                lambda: mfma32(a, acc + 64, fb + 8, bx, c)]
    for op in f2_read_ops(0): op()
    a("s_sub_u32 s7, s10, s84")
    a("s_waitcnt lgkmcnt(6)")
    for t in range(6): a(f"v_add_u32 v{TC+t}, s7, v{TC+t}")
    a("s_cmp_eq_u32 s9, 3")
    a("s_cselect_b32 s8, 6, 7")
    a("s_waitcnt vmcnt(0)")
    a(f"s_setprio {OPT['g2prio']}")
    a.lines.append(".p2align 6")
    a.label("f2_loop")
    for u in range(4):
        a("s_waitcnt vmcnt(10) lgkmcnt(0)")
        mm = mm5(FB2 + (u & 1) * 12, BB + u * 8, BB + u * 8 + 4, ACC2)
        interleave(a, mm, f2_read_ops(u + 1) + wd_dma_ops(u), [3, 3, 1, 1, 1])
        for op in h_ops(u): op()
    a("s_sub_u32 s8, s8, 1")
    a("s_cmp_lg_u32 s8, 0")
    a("s_cbranch_scc1 f2_loop")
    a(f"s_setprio {OPT['eprio']}")
    a("s_waitcnt vmcnt(0) lgkmcnt(0)")
    stamp(a, 9)
    wo_stage(1, 10)
    a("v_and_b32 v1, 31, v0")
    a("v_mul_u32_u24 v1, 1280, v1")
    a("v_lshrrev_b32 v12, 5, v0")
    a("v_lshl_add_u32 v1, v12, 3, v1")
    a("s_lshl_b32 s7, s9, 4")
    a("s_add_u32 s7, s7, s77")
    a(f"s_mul_i32 s8, s{sG}, {64*1280}")
    a("s_add_u32 s7, s7, s8")
    a(f"s_mul_i32 s8, s76, {32*1280}")
    a(f"s_sub_u32 s11, {32*1280}, s8")
    a("s_add_u32 s8, s8, s7")
    a("s_add_u32 s11, s11, s7")
    a("s_add_u32 s83, s79, s8")
    a("s_add_u32 s85, s79, s11")
    a("s_add_u32 s6, s80, s8")
    a("s_add_u32 s12, s80, s11")
    a("s_add_u32 s13, s81, s8")
    US = [83, 85, 6, 12, 13]
    XPR = [236, 238, 2, 4, 6]
    for u in range(5):
        a(f"buffer_load_dwordx2 {vr(XPR[u],2)}, v1, {S4(SRD_X)}, s{US[u]} offen")
    RA = 12
    def blk_off(u, d): return (u * 3 + (d - 1)) * 1024
    def red_write(acc, base, cnt, vt):
        a(f"v_lshlrev_b32 v{RA}, 4, v0")
        for d in range(1, 4):
            a(f"s_sub_u32 s7, s9, {d}")
            a("s_and_b32 s7, s7, 3")
            a("s_lshl_b32 s7, s7, 14")
            if base: a(f"s_add_u32 s7, s7, {base}")
            a(f"v_add_u32 v{RA+d}, s7, v{RA}")
        a(f"v_add_u32 v{RA}, s{10 if base else 84}, v{RA}")
        for u in range(5):
            for d in range(1, 4):
                a(f"ds_write_b128 v{RA}, {vr(acc+16*u+4*d,4)} offset:{blk_off(u,d)}")
        lds_signal(a, cnt, vt)
    def red_read(RR, cnt):
        lds_wait(a, cnt, 4, RR, 7)
        for u in range(5):
            for d in range(1, 4):
                a(f"ds_read_b128 {vr(RR+u*12+(d-1)*4,4)}, v{RA+d} offset:{blk_off(u,d)}")
    def red_sum(acc, RR, u):
        r = RR + u * 12
        for i in range(4):
            a(f"v_add_f32 v{r+i}, v{r+i}, v{r+4+i}")
            a(f"v_add_f32 v{r+8+i}, v{r+8+i}, v{acc+16*u+i}")
        for i in range(4):
            a(f"v_add_f32 v{r+i}, v{r+i}, v{r+8+i}")
    RR = 16
    red_write(ACC2, 0, C_G1, RR)
    red_read(RR, C_G1)
    lds_signal(a, C_F2, 76)
    GG = 240
    for u in range(5):
        red_sum(ACC2, RR, u)
        r = RR + u * 12
        for i in range(4): a(f"v_mul_f32 v{r+4+i}, {NL2E}, v{r+i}")
        for i in range(4): a(f"v_exp_f32 v{r+4+i}, v{r+4+i}")
        for i in range(4): a(f"v_add_f32 v{r+4+i}, 1.0, v{r+4+i}")
        for i in range(4): a(f"v_rcp_f32 v{r+4+i}, v{r+4+i}")
        a("s_nop 0")
        for i in range(4): a(f"v_mul_f32 v{r+i}, v{r+i}, v{r+4+i}")
        a(f"v_cvt_pk_bf16_f32 v{GG+2*u}, v{r}, v{r+1}")
        a(f"v_cvt_pk_bf16_f32 v{GG+2*u+1}, v{r+2}, v{r+3}")
    stamp(a, 10)
    ACC3 = 80
    def ob(k): return 16 + k * 8
    a("v_min_u32 v12, 3, v0")
    a(f"v_lshlrev_b32 v12, {FS()}, v12")
    a(f"s_lshl_b32 s7, s{sG}, 3")
    a(f"s_add_u32 s7, s7, s{sJ}")
    a("s_lshl_b32 s7, s7, 2")
    a("s_add_u32 s7, s7, s9")
    a(f"s_lshl_b32 s7, s7, {MS()}")
    a(f"s_add_u32 s7, s7, {MB_O}")
    a(f"s_mul_i32 s82, s{sG}, {40*2048}")
    a(f"s_mul_i32 s8, s9, {5*2048}")
    a("s_add_u32 s82, s82, s8")
    a(f"s_add_u32 s82, s82, {WS_OF}")
    def wo_read_step(s5):
        for t in range(3):
            f = WF + s5 * 12 + 4 * t
            if s5 < 4:
                a(f"ds_read_b64_tr_b16 {vr(f,2)}, v{TC+t} offset:{s5*4096}")
                a(f"ds_read_b64_tr_b16 {vr(f+2,2)}, v{TC+t} offset:{s5*4096+8*192}")
            else:
                a(f"ds_read_b64_tr_b16 {vr(f,2)}, v{TD+t} offset:{16*192}")
                a(f"ds_read_b64_tr_b16 {vr(f+2,2)}, v{TD+t} offset:{4096+16*192}")
    stamp(a, 11)
    for sl in range(2):
        a(f"s_setprio {0 if sl == 0 else 3}")
        flag_poll(a, 12, 7, 13, 8, sleep=OPT.get("osleep", 4) if sl == 0 else OPT.get("osleep2", 2))
        a("s_setprio 3")
        stamp(a, 12 if sl == 0 else 1)
        for k in range(5):
            a(f"buffer_load_dwordx4 {vr(ob(k),4)}, v{vBX}, {S4(SRD_WS)}, s82 offen sc1")
            a(f"buffer_load_dwordx4 {vr(ob(k)+4,4)}, v{vBY}, {S4(SRD_WS)}, s82 offen sc1")
            a("s_add_u32 s82, s82, 2048")
        a(f"s_add_u32 s82, s82, {15*2048}")
        a(f"s_add_u32 s7, s7, {4 << FS()}")
        for k in range(5):
            a(f"s_waitcnt vmcnt({8-2*k})" + (" lgkmcnt(0)" if sl and k == 0 else ""))
            if sl and k == 0: stamp(a, 2)
            for m in mm5(WF + k * 12, ob(k), ob(k) + 4, ACC3, "0" if (k == 0 and sl == 0) else None): m()
            if sl == 0: wo_read_step(k)
    RR = 160
    stamp(a, 3)
    red_write(ACC3, L_RING, C_G2, 230)
    stamp(a, 4)
    a("s_mov_b32 s78, 0xffff0000")
    for u in range(5):
        t = 16 + 8 * u
        x = XPR[u]
        a(f"v_lshlrev_b32 v{t}, 16, v{x}")
        a(f"v_and_b32 v{t+1}, s78, v{x}")
        a(f"v_lshlrev_b32 v{t+2}, 16, v{x+1}")
        a(f"v_and_b32 v{t+3}, s78, v{x+1}")
        a(f"v_lshlrev_b32 v{t+4}, 16, v{GG+2*u}")
        a(f"v_and_b32 v{t+5}, s78, v{GG+2*u}")
        a(f"v_lshlrev_b32 v{t+6}, 16, v{GG+2*u+1}")
        a(f"v_and_b32 v{t+7}, s78, v{GG+2*u+1}")
    red_read(RR, C_G2)
    stamp(a, 5)
    for u in range(5):
        a(f"s_waitcnt lgkmcnt({12-3*u})")
        t = 16 + 8 * u
        r = RR + u * 12
        red_sum(ACC3, RR, u)
        for i in range(4):
            a(f"v_fmac_f32 v{t+i}, v{r+i}, v{t+4+i}")
        a(f"v_cvt_pk_bf16_f32 v{t+4}, v{t}, v{t+1}")
        a(f"v_cvt_pk_bf16_f32 v{t+5}, v{t+2}, v{t+3}")
        a(f"buffer_store_dwordx2 {vr(t+4,2)}, v1, {S4(SRD_OUT)}, s{US[u]} offen")

def build():
    a = Asm()
    hdr = open("cdna_kernels/" + NAME + ".s.ref").read().split("\n")
    head = [l for l in hdr if l.startswith(";") and "@launch" not in l]
    out = "\n".join(head) + "\n"
    out += f"; @launch grid=(256,1,1) block=(512,1,1) lds={LDS_TOTAL}\n"
    out += '.amdgcn_target "amdgcn-amd-amdhsa--gfx950"\n.text\n'
    a.lines += [f".globl {KNAME}", ".p2align 8", f".type {KNAME},@function"]
    a.label(KNAME)
    ln = emit_prologue(a)
    emit_role_a(a)
    emit_role_g(a, ln)
    a.label("k_end")
    stamp_flush(a)
    a.label("k_exit")
    a("s_endpgm")
    a.label("code_end")
    probs = check_hazards(a.lines)
    for p in probs: print(p, file=sys.stderr)
    out += a.text()
    out += f""".section .rodata,"a"
.p2align 6
.amdhsa_kernel {KNAME}
  .amdhsa_next_free_vgpr 256
  .amdhsa_next_free_sgpr 102
  .amdhsa_accum_offset 256
  .amdhsa_group_segment_fixed_size 0
  .amdhsa_kernarg_size 96
  .amdhsa_user_sgpr_count 2
  .amdhsa_user_sgpr_kernarg_segment_ptr 1
  .amdhsa_system_sgpr_workgroup_id_x 1
.end_amdhsa_kernel
"""
    return out

if __name__ == "__main__":
    path = sys.argv[1] if len(sys.argv) > 1 else "cdna_kernels/" + NAME + ".s"
    for kv in sys.argv[2:]:
        k, v = kv.split("=")
        OPT[k] = int(v)
    open(path, "w").write(build())
```

```python
import sys, struct, os
from asmlib import *

NAME = "recurrent_scan__grouped_kv_mqa__swiglu_ffn__prompt"
KNAME = NAME + "_kernel"
S, D, H, DH, F = 2048, 640, 32, 20, 1728
WS_EPOCH = 0
FL_KV = 0x1000
MB_H = 0xF00000
MB_O = 0x1000000
MB_Q = 0x1100000
WS_QG = 0x60000
WS_QGB = 0xC00000
WS_KV = 0x10000
WS_OF = 0x800000
WS_STAMP = 0xB00000
WS_HF = 0x100000
WS_SIZE = 0x1200000
KVT = 3584
OOB = 0x7f000000
POLL_CAP = 3000

OPT = dict(stamp=False, touch=True, aprio=1, gprio=2, eprio=2, mapping=3, codetouch=True, kvsleep=16, g2prio=0, kvprio=3, ldprio=3, f1hi=0, clus=1)

def f32bits(x): return struct.unpack("<I", struct.pack("<f", x))[0]
QSCALE = (DH ** -0.5) * 1.4426950408889634
NL2E = hex(f32bits(-1.4426950408889634))

sWV, sG, sJ = 3, 4, 5
sTAG = 15
sRB = 85
sIDX = 14
P_X, P_WQ, P_WK, P_WV, P_WO, P_BX, P_WG, P_WU, P_WD, P_OUT, P_DBG, P_WS = [16 + 2 * i for i in range(12)]
SRD_X, SRD_WQ, SRD_WKV, SRD_WO, SRD_WG, SRD_WU, SRD_WD, SRD_OUT, SRD_WS = 40, 44, 48, 52, 56, 60, 64, 68, 72
sE = 84
L_XN = 0
L_RING = 81920
L_WKV = 147456
L_CNT = 162816
L_H = 0
L_EXT = 32768
LDS_TOTAL = 163840
C_F1, C_A1, C_G1, C_G2, C_A2, C_BAD, C_KVD, C_QR, C_F2, C_MX = 0, 4, 8, 12, 16, 20, 24, 28, 32, 36
SRD_KVR = SRD_WKV
SRD_H = SRD_WQ

def CS(): return OPT.get('cs', 0)
def PF(): return ['sc1', 'sc0 sc1', 'sc1 nt', 'sc0 sc1 nt'][OPT.get('pf', 0)]
def SF(): return ['sc1', 'sc0 sc1'][OPT.get('sf', 0)]
def FS(): return OPT.get('fs', 7)
def MS(): return max(7, FS() + 3)
def S4(b): return f"s[{b}:{b+3}]"
def srd(a, dst, ptr, nbytes):
    a(f"s_mov_b32 s{dst}, s{ptr}")
    a(f"s_mov_b32 s{dst+1}, s{ptr+1}")
    a(f"s_mov_b32 s{dst+2}, {nbytes}")
    a(f"s_mov_b32 s{dst+3}, 0x20000")

NST = 14
def stamp(a, i):
    if not OPT["stamp"]: return
    a("s_memtime s[98:99]" if OPT["stamp"] == 1 else "s_memrealtime s[98:99]")
    a("s_waitcnt lgkmcnt(0)")
    if OPT["stamp"] == 2: a("s_mul_i32 s98, s98, 10")
    a(f"s_mov_b32 s{STR[i]}, s98")
STR = [86+i for i in range(10)] + [26, 27, 100, 101]
def tstamp(a, i):
    if OPT.get("tail") or i >= 12: stamp(a, i)
def stamp_head(a):
    if not OPT["stamp"]: return
    for i in range(NST): a(f"s_mov_b32 s{STR[i]}, 0")
    a("s_memrealtime s[96:97]")
    stamp(a, 12)
    if OPT["stamp"] == 2: a("s_mul_i32 s78, s78, 10")
    a(f"s_mov_b32 s{STR[0]}, s78")
def stamp_flush(a):
    if not OPT["stamp"]: return
    stamp(a, NST-1)
    a("s_memrealtime s[98:99]")
    a("s_waitcnt lgkmcnt(0)")
    a("s_mov_b32 s97, s98")
    a("s_lshl_b32 s98, s2, 3")
    a(f"s_add_u32 s98, s98, s{sWV}")
    a("s_lshl_b32 s98, s98, 6")
    a(f"s_add_u32 s98, s98, {WS_STAMP}")
    a("s_mov_b64 exec, 1")
    a("v_mov_b32 v0, 0")
    for i, r in enumerate(STR + [96, 97]): a(f"v_mov_b32 v{4+i}, s{r}")
    for q in range(4):
        a(f"buffer_store_dwordx4 v[{4+4*q}:{7+4*q}], v0, {S4(SRD_WS)}, s98 offen offset:{16*q}")
    if OPT.get("dbgout"):
        srd(a, SRD_X, P_DBG, 256)
        a("v_not_b32 v20, v18")
        a(f"buffer_atomic_umax v19, v0, {S4(SRD_X)}, 0 offen")
        a(f"buffer_atomic_umax v20, v0, {S4(SRD_X)}, 0 offen offset:4")
        a(f"buffer_atomic_umax v18, v0, {S4(SRD_X)}, 0 offen offset:8")
        a(f"s_lshl_b32 s98, s2, 3")
        a(f"s_add_u32 s98, s98, s{sWV}")
        a(f"s_cmp_lg_u32 s98, {OPT['dbgout']}")
        a("s_cbranch_scc1 k_exit")
        for i in range(1, 14):
            a(f"v_sub_u32 v{4+i}, v{4+i}, v4")
            a(f"buffer_store_dword v{4+i}, v0, {S4(SRD_X)}, 0 offen offset:{8+4*i}")

def mfma32(a, d, A, B, c=None):
    a(f"v_mfma_f32_32x32x16_bf16 {vr(d,16)}, {vr(A,4)}, {vr(B,4)}, {vr(d,16) if c is None else c}")
def mfma32x8(a, d, A, B, c=None):
    a(f"v_mfma_f32_32x32x8_bf16 {vr(d,16)}, {vr(A,2)}, {vr(B,2)}, {vr(d,16) if c is None else c}")
def mfma16(a, d, A, B, c=None):
    a(f"v_mfma_f32_16x16x32_bf16 {vr(d,4)}, {vr(A,4)}, {vr(B,4)}, {vr(d,4) if c is None else c}")

def interleave(a, main, side, per):
    k = 0
    for i, m in enumerate(main):
        m()
        for _ in range(per[i]):
            if k < len(side):
                side[k](); k += 1
    while k < len(side):
        side[k](); k += 1

def lds_signal(a, cnt, vt):
    a("s_waitcnt lgkmcnt(0)")
    a(f"v_mov_b32 v{vt}, {L_CNT + cnt}")
    a(f"v_mov_b32 v{vt+1}, 1")
    a("s_mov_b64 exec, 1")
    a(f"ds_add_u32 v{vt}, v{vt+1}")
    a("s_mov_b64 exec, -1")
def lds_wait(a, cnt, target, vt, st, sleep=1):
    L = a.newlabel("lw"); Dn = a.newlabel("lwd")
    a(f"v_mov_b32 v{vt}, {L_CNT + cnt}")
    a(f"s_mov_b32 s{st+1}, 0x40000")
    a.label(L)
    a(f"ds_read_b32 v{vt+1}, v{vt}")
    a("s_waitcnt lgkmcnt(0)")
    a(f"v_readfirstlane_b32 s{st}, v{vt+1}")
    a(f"s_cmp_ge_u32 s{st}, {target}")
    a(f"s_cbranch_scc1 {Dn}")
    if sleep: a(f"s_sleep {sleep}")
    a(f"s_sub_u32 s{st+1}, s{st+1}, 1")
    a(f"s_cmp_lg_u32 s{st+1}, 0")
    a(f"s_cbranch_scc1 {L}")
    a.label(Dn)

def flag_set(a, soff, vt):
    a(f"v_mov_b32 v{vt}, 0")
    a(f"v_mov_b32 v{vt+1}, s{sTAG}")
    a("s_waitcnt vmcnt(0)")
    a("s_mov_b64 exec, 1")
    a(f"buffer_store_dword v{vt+1}, v{vt}, {S4(SRD_WS)}, s{soff} offen sc1")
    a("s_mov_b64 exec, -1")
def flag_bcast(a, vaddr, soff, nl, vt):
    a(f"v_mov_b32 v{vt}, s{sTAG}")
    a("s_waitcnt vmcnt(0)")
    a(f"s_mov_b64 exec, {hex((1 << nl) - 1)}")
    a(f"buffer_store_dword v{vt}, v{vaddr}, {S4(SRD_WS)}, s{soff} offen {SF()}")
    a("s_mov_b64 exec, -1")
def flag_poll(a, vaddr, soff, vt, st, two=False, sleep=2):
    L = a.newlabel("fp"); Dn = a.newlabel("fpd")
    a(f"s_mov_b32 s{st}, {POLL_CAP}")
    a.label(L)
    if two:
        a(f"buffer_load_dwordx2 {vr(vt,2)}, v{vaddr}, {S4(SRD_WS)}, s{soff} offen sc1")
        a("s_waitcnt vmcnt(0)")
        a(f"v_xor_b32 v{vt}, s{sTAG}, v{vt}")
        a(f"v_xor_b32 v{vt+1}, s{sTAG}, v{vt+1}")
        a(f"v_or_b32 v{vt}, v{vt}, v{vt+1}")
        a(f"v_cmp_ne_u32 vcc, 0, v{vt}")
    else:
        a(f"buffer_load_dword v{vt}, v{vaddr}, {S4(SRD_WS)}, s{soff} offen {PF()}")
        a("s_waitcnt vmcnt(0)")
        a(f"v_cmp_ne_u32 vcc, s{sTAG}, v{vt}")
    a(f"s_cbranch_vccz {Dn}")
    a(f"s_sleep {sleep}")
    a(f"s_sub_u32 s{st}, s{st}, 1")
    a(f"s_cmp_lg_u32 s{st}, 0")
    a(f"s_cbranch_scc1 {L}")
    a.label(Dn)

def flag_poll_pipe(a, vaddr, soff, regs, st, gap):
    n = len(regs)
    L = a.newlabel("pp"); Dn = a.newlabel("ppd")
    a(f"s_mov_b32 s{st}, {POLL_CAP}")
    a("s_waitcnt vmcnt(0)")
    for r in regs[:-1]:
        a(f"buffer_load_dword v{r}, v{vaddr}, {S4(SRD_WS)}, s{soff} offen sc1")
        a(f"s_sleep {gap}")
    a.label(L)
    for i in range(n):
        a(f"buffer_load_dword v{regs[(i-1) % n]}, v{vaddr}, {S4(SRD_WS)}, s{soff} offen sc1")
        a(f"s_waitcnt vmcnt({n-1})")
        a(f"v_cmp_ne_u32 vcc, s{sTAG}, v{regs[i]}")
        a(f"s_cbranch_vccz {Dn}")
        a(f"s_sleep {gap}")
    a(f"s_sub_u32 s{st}, s{st}, 1")
    a(f"s_cmp_lg_u32 s{st}, 0")
    a(f"s_cbranch_scc1 {L}")
    a.label(Dn)

def xn_read_addrs(a, XA, tmp):
    a(f"v_lshrrev_b32 v{tmp}, 5, v0")
    for m in range(4):
        a(f"v_or_b32 v{XA+m}, {2*m}, v{tmp}")
        a(f"v_xor_b32 v{XA+m}, v{XA+m}, v0")
        a(f"v_lshlrev_b32 v{XA+m}, 4, v{XA+m}")

NSQ = 12
OPT_SCHED_A1 = {7: 2, 8: 2, 9: 3}; OPT_SCHED_A2 = {}
OPT_SCHED_G1 = {9: 4}; OPT_SCHED_G2 = {i: 1 for i in range(10)}
QREG = 144
def qslot(n): return n * 1024
vQO = 15

def emit_prologue(a):
    a("s_cmp_ge_u32 s2, 256")
    a("s_cbranch_scc1 k_exit")
    if OPT["stamp"]: a("s_memtime s[78:79]" if OPT["stamp"] == 1 else "s_memrealtime s[78:79]")
    a("s_load_dwordx16 s[16:31], s[0:1], 0")
    a("s_load_dwordx8 s[32:39], s[0:1], 64")
    a("v_lshrrev_b32 v1, 6, v0")
    a("v_and_b32 v0, 63, v0")
    a(f"v_readfirstlane_b32 s{sWV}, v1")
    if OPT["mapping"] == 3:
        a("s_bfe_u32 s6, s2, 0x20001")
        a("s_lshl_b32 s6, s6, 3")
        a(f"s_bfe_u32 s{sIDX}, s2, 0x30003")
        a(f"s_add_u32 s{sG}, s6, s{sIDX}")
        a("s_and_b32 s6, s2, 1")
        a("s_lshl_b32 s6, s6, 2")
        a("s_lshr_b32 s7, s2, 6")
        a(f"s_add_u32 s{sJ}, s6, s7")
    else:
        raise ValueError
    a("v_lshrrev_b32 v10, 3, v0")
    a("v_and_b32 v11, 7, v0")
    a("v_mul_u32_u24 v12, 1280, v10")
    a("v_lshl_add_u32 v13, v11, 4, v12")
    if OPT.get("rot", 1):
        a(f"s_add_u32 s{sRB}, s{sWV}, s{sJ}")
        a(f"s_and_b32 s{sRB}, s{sRB}, 7")
    else:
        a(f"s_mov_b32 s{sRB}, s{sWV}")
    a(f"s_lshl_b32 s6, s{sG}, 3")
    a(f"s_add_u32 s6, s6, s{sRB}")
    a(f"s_mul_i32 s6, s6, {8*1280}")
    if OPT["codetouch"]:
        a(f"s_cmp_lg_u32 s{sWV}, 1")
        a("s_cbranch_scc1 ct_skip")
        a("s_getpc_b64 s[76:77]")
        a("s_and_b32 s76, s76, 0xffffff00")
        a("s_lshr_b32 s7, s2, 3")
        a("s_lshl_b32 s7, s7, 10")
        a("v_min_u32 v8, 7, v0")
        a("v_lshl_add_u32 v8, v8, 7, s7")
        a(f"v_min_u32 v8, code_end-{KNAME}-4, v8")
        a("global_load_dword v59, v8, s[76:77]")
        a.label("ct_skip")
    a("s_waitcnt lgkmcnt(0)")
    srd(a, SRD_X, P_X, S * D * 2)
    XR, DD = 16, 64
    vP, vSum, vSq = 2, 4, 6
    a(f"buffer_load_ushort v{vP}, v12, {S4(SRD_X)}, s6 offen")
    for i in range(10):
        a(f"buffer_load_dwordx4 {vr(XR+4*i,4)}, v13, {S4(SRD_X)}, s6 offen offset:{i*128}")
    a(f"s_load_dword s{sE}, s[{P_WS}:{P_WS+1}], {WS_EPOCH}")
    stamp_head(a)
    srd(a, SRD_WQ, P_WQ, D * D * 2)
    srd(a, SRD_WS, P_WS, WS_SIZE)
    srd(a, SRD_WG, P_WG, D * F * 2)
    srd(a, SRD_WU, P_WU, D * F * 2)
    srd(a, SRD_WD, P_WD, F * D * 2)
    srd(a, SRD_WO, P_WO, D * D * 2)
    srd(a, SRD_OUT, P_OUT, S * D * 2)
    a(f"s_and_b32 s6, s{sJ}, 1")
    a("s_cmp_eq_u32 s6, 0")
    a(f"s_cselect_b32 s{SRD_WKV}, s{P_WK}, s{P_WV}")
    a(f"s_cselect_b32 s{SRD_WKV+1}, s{P_WK+1}, s{P_WV+1}")
    a(f"s_mov_b32 s{SRD_WKV+2}, {D*DH*2}")
    a(f"s_mov_b32 s{SRD_WKV+3}, 0x20000")
    a(f"v_mov_b32 v{vSum}, 0\nv_mov_b32 v{vSum+1}, 0\nv_mov_b32 v{vSq}, 0\nv_mov_b32 v{vSq+1}, 0")
    a("s_mov_b32 s12, 0xffff0000")
    a("v_lshlrev_b32 v14, 4, v0")
    a(f"s_and_b32 s9, s{sWV}, 3")
    a("s_lshl_b32 s10, s9, 14")
    a(f"s_add_u32 s10, s10, {L_RING}")
    a(f"s_cmp_ge_u32 s{sWV}, 4")
    a("s_cbranch_scc1 pro_g")

    def ln(role, side=None, sched1=None, sched2=None, pre_bar=None):
        if role == "A":
            side = []
            if OPT["touch"]:
                side.append(lambda: touch_lin(a, SRD_WG, 8640, 17, 9, 56))
                side.append(lambda: touch_lin(a, SRD_WU, 8640, 17, 9, 57))
                side.append(lambda: touch_lin(a, SRD_WQ, 3200, 7, 9, 58))
            sched1 = {OPT.get("tpos", 9): 3}; sched2 = {}
        issued = [0]
        def do_side(n):
            for _ in range(n):
                if issued[0] < len(side):
                    side[issued[0]](); issued[0] += 1
        do_side(sched1.get(-1, 0))
        a(f"s_waitcnt vmcnt({10 + issued[0]})")
        stamp(a, 1)
        a(f"v_lshlrev_b32 v{vP}, 16, v{vP}")
        for i in range(10):
            a(f"s_waitcnt vmcnt({9-i + issued[0]})")
            for e in range(4):
                d = DD + 8 * i + 2 * e
                a(f"v_lshlrev_b32 v{d}, 16, v{XR+4*i+e}")
                a(f"v_and_b32 v{d+1}, s12, v{XR+4*i+e}")
            for e in range(4):
                d = DD + 8 * i + 2 * e
                a(f"v_pk_add_f32 {vr(d,2)}, {vr(d,2)}, {vr(vP,2)} op_sel_hi:[1,0] neg_lo:[0,1] neg_hi:[0,1]")
            for e in range(4):
                d = DD + 8 * i + 2 * e
                a(f"v_pk_add_f32 {vr(vSum,2)}, {vr(vSum,2)}, {vr(d,2)}")
                a(f"v_pk_fma_f32 {vr(vSq,2)}, {vr(d,2)}, {vr(d,2)}, {vr(vSq,2)}")
            do_side(sched1.get(i, 0))
        stamp(a, 2)
        a(f"v_add_f32 v{vSum}, v{vSum}, v{vSum+1}")
        a(f"v_add_f32 v{vSq}, v{vSq}, v{vSq+1}")
        for ctl in ("quad_perm:[1,0,3,2]", "quad_perm:[2,3,0,1]", "row_half_mirror"):
            a("s_nop 1")
            a(f"v_add_f32_dpp v{vSum}, v{vSum}, v{vSum} {ctl} row_mask:0xf bank_mask:0xf")
            a(f"v_add_f32_dpp v{vSq}, v{vSq}, v{vSq} {ctl} row_mask:0xf bank_mask:0xf")
        inv = f32bits(1.0 / D)
        a(f"v_mul_f32 v{vSum}, {hex(inv)}, v{vSum}")
        a(f"v_mul_f32 v{vSq}, {hex(inv)}, v{vSq}")
        a(f"v_fma_f32 v{vSq}, -v{vSum}, v{vSum}, v{vSq}")
        a(f"v_max_f32 v{vSq}, 0, v{vSq}")
        a(f"v_add_f32 v{vSq}, {hex(f32bits(1e-5))}, v{vSq}")
        a(f"v_rsq_f32 v{vSq}, v{vSq}")
        a(f"s_and_b32 s7, s{sRB}, 3")
        a("s_lshl_b32 s7, s7, 3")
        a(f"v_mul_f32 v{vSum}, v{vSum}, v{vSq}")
        a("v_add_u32 v8, s7, v10")
        a("v_and_b32 v9, 1, v11")
        a("v_lshl_add_u32 v8, v9, 5, v8")
        a("v_xor_b32 v8, v8, v11")
        a("v_lshlrev_b32 v8, 4, v8")
        a("v_lshrrev_b32 v9, 1, v11")
        a("v_lshl_add_u32 v8, v9, 11, v8")
        a(f"s_lshr_b32 s7, s{sRB}, 2")
        a("s_lshl_b32 s7, s7, 10")
        a("v_add_u32 v8, s7, v8")
        a("v_add_u32 v9, 0x10000, v8")
        for i in range(10):
            for e in range(4):
                d = DD + 8 * i + 2 * e
                a(f"v_pk_fma_f32 {vr(d,2)}, {vr(d,2)}, {vr(vSq,2)}, {vr(vSum,2)} op_sel_hi:[1,0,0] neg_lo:[0,0,1] neg_hi:[0,0,1]")
            for e in range(4):
                d = DD + 8 * i + 2 * e
                a(f"v_cvt_pk_bf16_f32 v{XR+4*i+e}, v{d}, v{d+1}")
            off = i * 8192
            a(f"ds_write_b128 v{8 if off < 65536 else 9}, {vr(XR+4*i,4)} offset:{L_XN + off % 65536}")
            do_side(sched2.get(i, 0))
        if role == "A":
            a("v_lshlrev_b32 v8, 2, v0")
            a(f"v_add_u32 v8, {L_CNT}, v8")
            a("v_mov_b32 v9, 0")
            a("ds_write_b32 v8, v9")
            assert issued[0] == len(side)
        if pre_bar: pre_bar()
        a("s_waitcnt lgkmcnt(0)")
        a(f"s_add_u32 s{sE}, s{sE}, 1")
        a(f"s_mul_i32 s{sTAG}, s{sE}, 0x9e3779b1")
        a(f"s_or_b32 s{sTAG}, s{sTAG}, 1")
        stamp(a, 3)
        a("s_barrier")
        if role == "G": stamp(a, 4)
        do_side(99)
    ln("A")
    return ln

def emit_kv(a):
    vW0, vW1, vXE, vXO, vXE2, vXO2 = 1, 2, 3, 4, 5, 6
    ACC = 112
    FB = 16
    def wdma(first, n):
        for i in range(n):
            a(f"s_mov_b32 m0, {L_WKV + i*1024}")
            a(f"s_mov_b32 s7, {first + i*1024}")
            a(f"buffer_load_dwordx4 v14, {S4(SRD_WKV)}, s7 offen lds")
    wdma(0, 15)
    a("v_lshrrev_b32 v10, 4, v0")
    a("v_bfe_u32 v11, v0, 2, 2")
    a("v_lshl_add_u32 v11, v10, 3, v11")
    a("v_mul_u32_u24 v11, 40, v11")
    a("v_and_b32 v12, 3, v0")
    a("v_lshl_add_u32 v12, v12, 3, v11")
    a(f"v_add_u32 v{vW0}, {L_WKV}, v12")
    a(f"v_add_u32 v{vW1}, {L_WKV + 32}, v11")
    a(f"s_lshr_b32 s9, s{sJ}, 1")
    a("s_and_b32 s10, s9, 1")
    a("s_lshr_b32 s11, s9, 1")
    a("s_lshl_b32 s12, s10, 4")
    a("v_and_b32 v13, 15, v0")
    a("v_add_u32 v13, s12, v13")
    a("v_and_b32 v15, 1, v10")
    a("v_lshl_add_u32 v15, v15, 5, v13")
    a("v_xor_b32 v15, v15, v10")
    a("v_lshrrev_b32 v7, 1, v10")
    a("v_lshlrev_b32 v7, 11, v7")
    a("s_lshl_b32 s12, s11, 10")
    a("v_add_u32 v7, s12, v7")
    a(f"v_lshl_add_u32 v{vXE}, v15, 4, v7")
    a("v_xor_b32 v15, 4, v15")
    a(f"v_lshl_add_u32 v{vXO}, v15, 4, v7")
    a(f"v_add_u32 v{vXE2}, 0x10000, v{vXE}")
    a(f"v_add_u32 v{vXO2}, 0x10000, v{vXO}")
    def reads(b):
        for t in range(2):
            s = 2 * b + t
            fb = FB + (b & 1) * 24 + t * 12
            wo = (s if s < 12 else s - 12) * 1280
            a(f"ds_read_b64_tr_b16 {vr(fb,2)}, v{vW0} offset:{wo}")
            a(f"ds_read_b64_tr_b16 {vr(fb+2,2)}, v{vW0} offset:{wo+160}")
            a(f"ds_read_b64_tr_b16 {vr(fb+4,2)}, v{vW1} offset:{wo}")
            a(f"ds_read_b64_tr_b16 {vr(fb+6,2)}, v{vW1} offset:{wo+160}")
            off = L_XN + s * 4096
            reg = (vXO if s & 1 else vXE) if off < 65536 else (vXO2 if s & 1 else vXE2)
            a(f"ds_read_b128 {vr(fb+8,4)}, v{reg} offset:{off % 65536}")
    a(f"s_and_b32 s6, s{sJ}, 1")
    a("s_cmp_eq_u32 s6, 1")
    a("s_waitcnt vmcnt(0)")
    a("s_cbranch_scc1 kv_v")
    for kv in (0, 1):
        if kv: a.label("kv_v")
        reads(0)
        for b in range(10):
            if b == 5:
                a("s_waitcnt lgkmcnt(0)")
                wdma(12 * 1280, 10)
            elif b < 9:
                reads(b + 1)
                a("s_waitcnt lgkmcnt(10)")
            else:
                a("s_waitcnt lgkmcnt(0)")
            for t in range(2):
                fb = FB + (b & 1) * 24 + t * 12
                c = "0" if (b == 0 and t == 0) else None
                for ct in range(2):
                    if kv == 0: mfma16(a, ACC + 4 * ct, fb + 4 * ct, fb + 8, c)
                    else:       mfma16(a, ACC + 4 * ct, fb + 8, fb + 4 * ct, c)
            if b == 5:
                a("s_waitcnt vmcnt(0)")
                reads(6)
        a(f"s_lshl_b32 s12, s{sG}, 1")
        a("s_add_u32 s12, s12, s11")
        a(f"s_mul_i32 s12, s12, {KVT}")
        a(f"s_add_u32 s12, s12, {WS_KV}")
        if kv == 0:
            a("v_lshrrev_b32 v2, 1, v10")
            a("v_lshl_add_u32 v2, v2, 5, v13")
            a("v_lshlrev_b32 v2, 4, v2")
            a("v_and_b32 v3, 1, v10")
            a("v_lshl_add_u32 v2, v3, 3, v2")
            a("v_lshl_add_u32 v3, v10, 5, v13")
            a("v_lshlrev_b32 v3, 3, v3")
            a("v_add_u32 v3, 3072, v3")
            a(f"v_mov_b32 v4, {OOB}")
            a("v_cmp_lt_u32 vcc, 1, v10")
            a("s_nop 1")
            a("v_cndmask_b32 v3, v3, v4, vcc")
            for i in range(8): a(f"v_mul_f32 v{ACC+i}, {hex(f32bits(QSCALE))}, v{ACC+i}")
            a(f"v_cvt_pk_bf16_f32 v6, v{ACC}, v{ACC+1}")
            a(f"v_cvt_pk_bf16_f32 v7, v{ACC+2}, v{ACC+3}")
            a(f"v_cvt_pk_bf16_f32 v8, v{ACC+4}, v{ACC+5}")
            a(f"v_cvt_pk_bf16_f32 v9, v{ACC+6}, v{ACC+7}")
            a("v_cmp_eq_u32 vcc, 1, v10")
            a("v_mov_b32 v4, 0x3f803f80")
            a("v_mov_b32 v5, 0x00003f80")
            a("v_cndmask_b32 v8, v8, v4, vcc")
            a("v_cndmask_b32 v9, v9, v5, vcc")
            a("s_branch kv_store")
        else:
            a("v_and_b32 v1, 15, v0")
            a("v_and_b32 v4, 1, v10")
            a("v_lshl_add_u32 v2, v4, 5, v1")
            a("v_lshlrev_b32 v2, 4, v2")
            a("v_lshrrev_b32 v4, 1, v10")
            a("v_lshl_add_u32 v2, v4, 3, v2")
            a("s_lshl_b32 s13, s10, 10")
            a("s_add_u32 s13, s13, 1024")
            a("v_add_u32 v2, s13, v2")
            a("v_add_u32 v3, 256, v2")
            a(f"v_cvt_pk_bf16_f32 v6, v{ACC}, v{ACC+1}")
            a(f"v_cvt_pk_bf16_f32 v7, v{ACC+2}, v{ACC+3}")
            a(f"v_cvt_pk_bf16_f32 v8, v{ACC+4}, v{ACC+5}")
            a(f"v_cvt_pk_bf16_f32 v9, v{ACC+6}, v{ACC+7}")
            a("v_cmp_eq_u32 vcc, 4, v1")
            a("v_mov_b32 v4, 0x3f803f80")
            a("v_mov_b32 v5, 0")
            a("v_cndmask_b32 v4, v5, v4, vcc")
            a("v_cmp_lt_u32 vcc, 3, v1")
            a("s_nop 1")
            a("v_cndmask_b32 v8, v8, v4, vcc")
            a("v_cndmask_b32 v9, v9, v4, vcc")
    a.label("kv_store")
    a(f"buffer_store_dwordx2 v[6:7], v2, {S4(SRD_WS)}, s12 offen sc1")
    a(f"buffer_store_dwordx2 v[8:9], v3, {S4(SRD_WS)}, s12 offen sc1")
    lds_signal(a, C_F1, 10)
    lds_signal(a, C_KVD, 10)
    a(f"s_lshl_b32 s12, s{sG}, 3")
    a(f"s_add_u32 s12, s12, s{sJ}")
    a("s_lshl_b32 s12, s12, 2")
    a(f"s_add_u32 s12, s12, {FL_KV}")
    flag_set(a, 12, 10)

def touch_lin(a, srd_, per_cu, nl, part, dst):
    a(f"v_min_u32 v8, {nl-1}, v0")
    a("v_lshlrev_b32 v8, 7, v8")
    a(f"s_mul_i32 s7, s2, {per_cu}")
    if part is not None:
        a(f"s_mul_i32 s8, s{part}, {nl*128}")
        a("s_add_u32 s7, s7, s8")
    a(f"buffer_load_dword v{dst}, v8, {S4(srd_)}, s7 offen")

def emit_late_touch(a):
    if not OPT["touch"]: return
    a(f"s_and_b32 s6, s{sWV}, 1")
    a("s_waitcnt vmcnt(0)")
    a(f"s_sleep {OPT.get('ltsleep', 32)}")
    touch_lin(a, SRD_WD, 8640, 34, 6, 57)
    touch_lin(a, SRD_WO, 3200, 13, 6, 58)

def emit_role_a(a):
    NQ = 8
    OA, QF, SB, KB = 128, 80, 48, 16
    v16, v8 = 2, 3
    a(f"s_cmp_ge_u32 s{sWV}, 2")
    a("s_cbranch_scc1 a_touch")
    a(f"s_cmp_eq_u32 s{sWV}, 1")
    a("s_cbranch_scc1 a_join")
    a(f"s_setprio {OPT['kvprio']}")
    emit_kv(a)
    a("s_setprio 0")
    a("s_branch a_join")
    a.label("a_touch")
    emit_late_touch(a)
    a.label("a_join")
    stamp(a, 4)
    a(f"s_mov_b32 s{SRD_KVR}, s{P_WS}")
    a(f"s_mov_b32 s{SRD_KVR+1}, s{P_WS+1}")
    a(f"s_mul_i32 s{SRD_KVR+2}, s{sWV}, {16*KVT}")
    a(f"s_add_u32 s{SRD_KVR+2}, s{SRD_KVR+2}, {WS_KV + 16*KVT}")
    a(f"v_lshlrev_b32 v{v16}, 4, v0")
    a(f"v_lshlrev_b32 v{v8}, 3, v0")
    a("s_waitcnt vmcnt(0)")
    for i in range(NQ * 16): a(f"v_mov_b32 v{OA+i}, 0")
    for i in range(16): a(f"v_mov_b32 v{SB+16+i}, 0")
    for i in range(16): a(f"v_mov_b32 v{KB+16+i}, 0")
    a("v_and_b32 v6, 31, v0")
    a("v_lshlrev_b32 v6, 4, v6")
    a("v_lshrrev_b32 v7, 5, v0")
    a("v_lshl_add_u32 v7, v7, 9, v6")
    a(f"v_mov_b32 v8, {OOB}")
    a("v_cmp_gt_u32 vcc, 32, v0")
    a(f"s_lshl_b32 s8, s{sJ}, 2")
    a(f"s_add_u32 s8, s8, s{sWV}")
    a("s_mul_i32 s6, s8, 20")
    a("s_add_u32 s9, s6, 19")
    a("s_lshr_b32 s6, s6, 7")
    a("s_lshr_b32 s9, s9, 7")
    a("v_cndmask_b32 v6, v8, v6, vcc")
    a("v_mov_b32 v12, s6")
    a("v_mov_b32 v13, s9")
    a("v_cndmask_b32 v12, v12, v13, vcc")
    a(f"v_lshlrev_b32 v12, {FS()}, v12")
    a(f"s_lshl_b32 s13, s{sG}, 5")
    a("s_add_u32 s13, s13, s8")
    a(f"s_lshl_b32 s13, s13, {MS()}")
    a(f"s_add_u32 s13, s13, {MB_Q}")
    a("s_and_b32 s9, s8, 1")
    a("s_mul_i32 s8, s8, 5")
    a("s_lshr_b32 s8, s8, 1")
    a("s_lshl_b32 s8, s8, 9")
    a(f"s_mul_i32 s6, s{sG}, 81920")
    a("s_add_u32 s8, s8, s6")
    a(f"s_add_u32 s8, s8, {WS_QGB}")
    a("s_lshl_b32 s10, s9, 3")
    a("s_add_u32 s10, s10, s8")
    a("s_mul_i32 s11, s9, 504")
    a("s_add_u32 s11, s11, s8")
    a("s_add_u32 s11, s11, 8")
    for d in range(4):
        a(f"s_add_u32 s8, s{sWV}, {d}")
        a("s_and_b32 s8, s8, 3")
        a("s_mul_i32 s8, s8, 3072")
        a(f"s_add_u32 s8, s8, {L_WKV}")
        a(f"v_add_u32 v{8+d}, s8, v{v16}")
    lds_wait(a, C_KVD, 1, 14, 8, sleep=8)
    if OPT.get("x_kvd"): a(f"s_sleep {OPT['x_kvd']}")
    else: lds_wait(a, C_F1, OPT.get("f1wait", 2), 14, 8, sleep=8)
    a("s_setprio 3")
    tstamp(a, 1)
    a(f"s_lshl_b32 s6, s{sWV}, 8")
    a(f"s_add_u32 s6, s6, {FL_KV}")
    a("v_lshlrev_b32 v4, 2, v0")
    flag_poll(a, 4, 6, 5, 7, sleep=OPT["kvsleep"])
    tstamp(a, 2)
    a(f"s_mul_i32 s7, s{sWV}, {16*KVT}")
    a(f"s_add_u32 s7, s7, {WS_KV}")
    def kvload(b):
        kb = KB + 16 * b
        a(f"buffer_load_dwordx4 {vr(kb,4)}, v{v16}, {S4(SRD_KVR)}, s7 offen sc1")
        a(f"buffer_load_dwordx2 {vr(kb+12,2)}, v{v8}, {S4(SRD_KVR)}, s7 offen offset:3072 sc1")
        a(f"buffer_load_dwordx4 {vr(kb+4,4)}, v{v16}, {S4(SRD_KVR)}, s7 offen offset:1024 sc1")
        a(f"buffer_load_dwordx4 {vr(kb+8,4)}, v{v16}, {S4(SRD_KVR)}, s7 offen offset:2048 sc1")
        a(f"s_add_u32 s7, s7, {KVT}")
    kvload(0)
    tstamp(a, 3)
    if OPT.get("qdelay", 0): a(f"s_sleep {OPT['qdelay']}")
    if OPT.get("pp", 0): flag_poll_pipe(a, 12, 13, [4, 5, 13], 8, OPT.get("ppgap", 3))
    else: flag_poll(a, 12, 13, 5, 8, sleep=OPT.get("qsleep", 8))
    stamp(a, 5)
    for rt in range(2):
        if rt:
            a("s_add_u32 s10, s10, 40960")
            a("s_add_u32 s11, s11, 40960")
        a(f"buffer_load_dwordx2 {vr(QF+24+4*rt,2)}, v7, {S4(SRD_WS)}, s10 offen sc1")
        a(f"buffer_load_dwordx2 {vr(QF+24+4*rt+2,2)}, v7, {S4(SRD_WS)}, s11 offen sc1")
        a(f"buffer_load_dwordx2 {vr(QF+44+2*rt,2)}, v6, {S4(SRD_WS)}, s10 offen offset:1024 sc1")
    a("s_waitcnt vmcnt(0)")
    a(f"ds_write_b128 v8, {vr(QF+24,4)}")
    a(f"ds_write_b128 v8, {vr(QF+28,4)} offset:1024")
    a(f"ds_write_b128 v8, {vr(QF+44,4)} offset:2048")
    lds_signal(a, C_QR, 14)
    lds_wait(a, C_QR, 4, 14, 8, sleep=CS())
    for d in range(1, 4):
        a(f"ds_read_b128 {vr(QF+8*(d-1),4)}, v{8+d}")
        a(f"ds_read_b128 {vr(QF+32+4*(d-1),4)}, v{8+d} offset:2048")
        a(f"ds_read_b128 {vr(QF+8*(d-1)+4,4)}, v{8+d} offset:1024")
    a(f"s_setprio {OPT['aprio']}")
    a(f"s_mul_i32 s9, s{sWV}, {6*3072}")
    a(f"v_add_u32 v15, s9, v{v16}")
    a("s_waitcnt lgkmcnt(7)")
    def qk0(n):
        b = (n // NQ) & 1; qt = n % NQ
        mfma32(a, SB + 16 * (n & 1), KB + 16 * b, QF + 4 * qt, "0")
    def qk1(n):
        b = (n // NQ) & 1; qt = n % NQ
        mfma32x8(a, SB + 16 * (n & 1), KB + 16 * b + 12, QF + 32 + 2 * qt)
    def pv(n, t):
        b = (n // NQ) & 1; qt = n % NQ
        mfma32(a, OA + 16 * qt, KB + 16 * b + 4 + 4 * t, SB + 16 * (n & 1) + 4 * t)
    sPASS, sPUB, sTGT = 78, 79, 80
    a(f"s_mov_b32 s{sPASS}, 0")
    a(f"s_mov_b32 s{sPUB}, 0")
    a(f"s_mov_b32 s{sTGT}, 4")
    a("s_mov_b32 s83, 0x07060302")
    a.label("att_start")
    qk0(0); qk1(0)
    a("s_nop 7"); a("s_nop 2")
    a("s_waitcnt lgkmcnt(0)")
    stamp(a, 6)
    a("s_mov_b32 s8, 8")
    a.lines.append(".p2align 6")
    a.label("att_loop")
    def slot(n, last=False):
        s = SB + 16 * (n & 1)
        def e(i): a(f"v_exp_f32 v{s+i}, v{s+i}")
        def c(i):
            if OPT.get("perm"): a(f"v_perm_b32 v{s+i}, v{s+2*i+1}, v{s+2*i}, s83")
            else: a(f"v_cvt_pk_bf16_f32 v{s+i}, v{s+2*i}, v{s+2*i+1}")
        e(0); e(1)
        pv((n - 1) % (2 * NQ), 1)
        if n % NQ == 0 and not last:
            if OPT["ldprio"]: a(f"s_setprio {OPT['ldprio']}")
            kvload(((n // NQ) + 1) & 1)
            if OPT["ldprio"]: a(f"s_setprio {OPT['aprio']}")
        V = [("e",2),("e",3),("c",0),("c",1),("e",4),("e",5),("e",6),("e",7),("c",2),("c",3),("e",8),("e",9),("e",10),("e",11),("c",4),("c",5),("e",12),("e",13),("e",14),("e",15),("c",6),("c",7)]
        p1, p2, p3 = {0: (5, 11, 17), 1: (4, 7, 12), 2: (3, 7, 12), 3: (4, 8, 12)}[OPT.get("clus", 0)]
        fin = last and n == 2 * NQ - 1
        td = n - NQ - 1
        for i, (k, r) in enumerate(V):
            if i == p1 and not fin:
                if (n + 1) % NQ == 0: a("s_waitcnt vmcnt(0)")
                qk0(n + 1)
            if i == p2 and not fin: qk1(n + 1)
            if i == p3: pv(n, 0)
            if last and 0 <= td < 6 and i in (14, 17, 20):
                q4 = (i - 14) // 3
                a(f"ds_write_b128 v15, {vr(OA+16*td+4*q4,4)} offset:{td*3072+q4*1024}")
            (e if k == "e" else c)(r)
    for n in range(NQ): slot(n)
    a("s_cmp_eq_u32 s8, 1")
    a("s_cbranch_scc1 att_last")
    for n in range(NQ, 2 * NQ): slot(n)
    a("s_sub_u32 s8, s8, 1")
    a("s_branch att_loop")
    a.label("att_last")
    lds_wait(a, C_F2, 4, 4, 8)
    for n in range(NQ, 2 * NQ): slot(n, True)
    a("s_setprio 3")
    a("s_nop 0")
    pv(2 * NQ - 1, 1)
    stamp(a, 7)
    lds_signal(a, C_A1, 6)
    stamp(a, 8)
    a(f"s_mul_i32 s10, s{sG}, 40")
    a(f"s_mul_i32 s11, s{sJ}, 5")
    a("s_add_u32 s10, s10, s11")
    a("s_add_u32 s11, s10, 4")
    a(f"s_add_u32 s10, s10, s{sWV}")
    a("s_lshl_b32 s10, s10, 11")
    a(f"s_add_u32 s10, s10, {WS_OF}")
    a("s_lshl_b32 s11, s11, 11")
    a(f"s_add_u32 s11, s11, {WS_OF}")
    a(f"s_lshl_b32 s12, s{sWV}, 9")
    a(f"v_add_u32 v10, s12, v{v16}")
    a(f"v_mov_b32 v11, {OOB}")
    a("v_cmp_gt_u32 vcc, 32, v0")
    for d in range(1, 4):
        a(f"s_sub_u32 s9, s{sWV}, {d}")
        a("s_and_b32 s9, s9, 3")
        a(f"s_mul_i32 s9, s9, {6*3072}")
        a(f"v_add_u32 v{11+d}, s9, v{v16}")
    a("v_cndmask_b32 v10, v11, v10, vcc")
    a(f"s_cmp_lg_u32 s{sPUB}, 0")
    a("s_cbranch_scc1 att_done")
    a(f"s_mov_b32 s81, {hex(f32bits(2.0**-60))}")
    a(f"s_mov_b32 s82, {hex(f32bits(2.0**60))}")
    a("s_mov_b64 s[76:77], 0")
    lds_wait(a, C_A1, f"s{sTGT}", 4, 8, sleep=CS())
    stamp(a, 9)
    R = OA
    for rt in range(2):
        for d in range(1, 4):
            for q4 in range(3):
                a(f"ds_read_b128 {vr(R+rt*36+(d-1)*12+q4*4,4)}, v{11+d} offset:{(2*(d-1)+rt)*3072+q4*1024}")
    for rt in range(2):
        a(f"s_waitcnt lgkmcnt({9 if rt == 0 else 0})")
        b = R + rt * 36; o = OA + 96 + 16 * rt
        for i in range(12):
            a(f"v_add_f32 v{o+i}, v{o+i}, v{b+i}")
            a(f"v_add_f32 v{b+12+i}, v{b+12+i}, v{b+24+i}")
        for i in range(12):
            a(f"v_add_f32 v{o+i}, v{o+i}, v{b+12+i}")
        a(f"v_mov_b32 v8, v{o+8}")
        a(f"v_mov_b32 v9, v{o+8}")
        a("s_nop 1")
        a("v_permlane32_swap_b32 v8, v9")
        a("s_nop 1")
        a("v_rcp_f32 v8, v9")
        a("v_cmp_nle_f32 vcc, s81, v9")
        a("s_or_b64 s[76:77], s[76:77], vcc")
        a("v_cmp_nge_f32 vcc, s82, v9")
        a("s_or_b64 s[76:77], s[76:77], vcc")
        for i in range(12):
            a(f"v_mul_f32 v{o+i}, v8, v{o+i}")
        for i in range(4):
            a(f"v_cvt_pk_bf16_f32 v{b+i}, v{o+2*i}, v{o+2*i+1}")
        a(f"buffer_store_dwordx4 {vr(b,4)}, v{v16}, {S4(SRD_WS)}, s10 offen offset:{rt*1024} sc1")
        for i in range(2):
            a(f"v_cvt_pk_bf16_f32 v{R+72+2*rt+i}, v{o+8+2*i}, v{o+8+2*i+1}")
    a(f"buffer_store_dwordx4 {vr(R+72,4)}, v10, {S4(SRD_WS)}, s11 offen sc1")
    a(f"s_lshl_b32 s12, s{sG}, {MS()+5}")
    a(f"s_and_b32 s13, s{sJ}, 3")
    a(f"s_lshl_b32 s13, s13, {MS()}")
    a("s_add_u32 s12, s12, s13")
    a(f"s_and_b32 s13, s{sJ}, 4")
    a(f"s_add_u32 s13, s13, s{sWV}")
    a(f"s_lshl_b32 s13, s13, {FS()}")
    a("s_add_u32 s12, s12, s13")
    a(f"s_add_u32 s12, s12, {MB_O}")
    a(f"v_lshlrev_b32 v8, {MS()+2}, v0")
    stamp(a, 10)
    a(f"s_cmp_lg_u32 s{sPASS}, 0")
    a("s_cbranch_scc1 att_pub")
    a("s_cmp_eq_u64 s[76:77], 0")
    a("s_cbranch_scc1 att_pub")
    lds_signal(a, C_BAD, 4)
    a("s_branch att_nopub")
    a.label("att_pub")
    flag_bcast(a, 8, 12, 8, 9)
    a(f"s_mov_b32 s{sPUB}, 1")
    a.label("att_nopub")
    stamp(a, 11)
    a(f"s_cmp_lg_u32 s{sPASS}, 0")
    a("s_cbranch_scc1 att_done")
    lds_signal(a, C_A2, 4)
    lds_wait(a, C_A2, 4, 4, 8)
    a(f"v_mov_b32 v4, {L_CNT + C_BAD}")
    a("ds_read_b32 v5, v4")
    a("s_waitcnt lgkmcnt(0)")
    a("v_readfirstlane_b32 s8, v5")
    a("s_cmp_eq_u32 s8, 0")
    a("s_cbranch_scc1 att_done")
    MX = KB + 16
    a("s_waitcnt vmcnt(0)")
    for t in range(8): a(f"v_mov_b32 v{MX+t}, 0xff800000")
    a(f"s_mul_i32 s7, s{sWV}, {16*KVT}")
    a(f"s_add_u32 s7, s7, {WS_KV}")
    a("s_mov_b32 s8, 16")
    a.label("mx_loop")
    kvload(0)
    a("s_waitcnt vmcnt(0)")
    for t in range(8):
        qk0(t); qk1(t)
        a("s_nop 11")
        sb = SB + 16 * (t & 1)
        for i in range(8):
            a(f"v_max3_f32 v{MX+t}, v{MX+t}, v{sb+2*i}, v{sb+2*i+1}")
    a("s_sub_u32 s8, s8, 1")
    a("s_cmp_lg_u32 s8, 0")
    a("s_cbranch_scc1 mx_loop")
    a("v_lshlrev_b32 v4, 2, v0")
    for d in range(4):
        a(f"s_add_u32 s9, s{sWV}, {d+1}")
        a("s_and_b32 s9, s9, 3")
        a("s_lshl_b32 s9, s9, 9")
        a(f"v_add_u32 v{8+d}, s9, v4")
    a(f"s_lshl_b32 s9, s{sWV}, 11")
    for t in range(8):
        a(f"v_mov_b32 v5, v{MX+t}")
        a("s_nop 1")
        a(f"v_permlane32_swap_b32 v5, v{MX+t}")
        a("s_nop 1")
        a(f"v_max_f32 v{MX+t}, v5, v{MX+t}")
        a(f"v_add_u32 v6, s9, v{8+(t>>1)}")
        a(f"ds_write_b32 v6, v{MX+t} offset:{(t&1)*256}")
    lds_signal(a, C_MX, 4)
    lds_wait(a, C_MX, 4, 4, 8)
    a("s_mov_b32 s9, 0xffff0000")
    a("v_cmp_lt_u32 vcc, 31, v0")
    for t in range(8):
        for w in range(4):
            a(f"ds_read_b32 v{SB+w}, v{8+(t>>1)} offset:{w*2048+(t&1)*256}")
        a("s_waitcnt lgkmcnt(0)")
        a(f"v_max3_f32 v4, v{SB}, v{SB+1}, v{SB+2}")
        a(f"v_max_f32 v4, v4, v{SB+3}")
        a("v_sub_f32 v4, 0, v4")
        a("v_and_b32 v5, s9, v4")
        a("v_sub_f32 v4, v4, v5")
        a("v_and_b32 v6, s9, v4")
        a("v_sub_f32 v4, v4, v6")
        a("v_lshrrev_b32 v4, 16, v4")
        a("v_lshrrev_b32 v5, 16, v5")
        a("v_or_b32 v5, v5, v6")
        a(f"v_cndmask_b32 v{QF+32+2*t}, v{QF+32+2*t}, v5, vcc")
        a(f"v_cndmask_b32 v{QF+32+2*t+1}, v{QF+32+2*t+1}, v4, vcc")
    lds_signal(a, C_MX, 4)
    lds_wait(a, C_MX, 8, 4, 8)
    for i in range(NQ * 16): a(f"v_mov_b32 v{OA+i}, 0")
    for i in range(16): a(f"v_mov_b32 v{SB+16+i}, 0")
    for i in range(16): a(f"v_mov_b32 v{KB+16+i}, 0")
    a(f"s_mul_i32 s7, s{sWV}, {16*KVT}")
    a(f"s_add_u32 s7, s7, {WS_KV}")
    kvload(0)
    a(f"s_mov_b32 s{sPASS}, 1")
    a(f"s_mov_b32 s{sTGT}, 8")
    a("s_waitcnt vmcnt(0)")
    a("s_branch att_start")
    a.label("att_done")
    a(f"s_or_b32 s12, s2, s{sWV}")
    a("s_cmp_lg_u32 s12, 0")
    a("s_cbranch_scc1 k_end")
    a(f"v_mov_b32 v8, {WS_EPOCH}")
    a(f"v_mov_b32 v9, s{sE}")
    a("s_mov_b64 exec, 1")
    a(f"buffer_store_dword v9, v8, {S4(SRD_WS)}, 0 offen sc1")
    a("s_mov_b64 exec, -1")
    a("s_branch k_end")

def emit_role_g(a, ln):
    a.label("pro_g")
    XA, TA = 56, 60
    vGO, vUO = 1, 15
    FB, ACC = 64, 128
    a("s_lshl_b32 s6, s9, 3")
    a(f"s_add_u32 s6, s6, s{sJ}")
    a("s_cmp_ge_u32 s6, 27")
    a("s_cselect_b32 s78, 1280, 0")
    a("s_cselect_b32 s79, 0, 3456")
    a("s_add_u32 s78, s78, s79")
    a("s_lshl_b32 s79, s78, 3")
    a("s_lshl_b32 s80, s78, 4")
    a("s_lshl_b32 s7, s6, 7")
    a("s_mov_b32 s8, 0")
    a("s_cmp_lt_u32 s6, 27")
    a("s_cbranch_scc1 pro_gf")
    for k in range(3):
        a(f"s_mov_b32 s{SRD_WG+k}, s{SRD_WQ+k}")
        a(f"s_mov_b32 s{SRD_WU+k}, s{SRD_WQ+k}")
    a("s_sub_u32 s7, s6, 27")
    a("s_lshl_b32 s7, s7, 8")
    a("s_mov_b32 s8, 128")
    a.label("pro_gf")
    a("v_lshrrev_b32 v8, 3, v0")
    a("v_mul_lo_u32 v9, v8, s78")
    a("v_bfe_u32 v12, v0, 1, 2")
    a("v_bfe_u32 v8, v0, 4, 1")
    a("v_xor_b32 v12, v12, v8")
    a("v_and_b32 v8, 1, v0")
    a("v_lshl_add_u32 v9, v8, 4, v9")
    a("v_add_u32 v9, s7, v9")
    a(f"v_lshl_add_u32 v{vGO}, v12, 5, v9")
    a("v_xor_b32 v12, 2, v12")
    a("v_add_u32 v9, s8, v9")
    a(f"v_lshl_add_u32 v{vUO}, v12, 5, v9")
    a("s_mov_b32 s13, 0")
    def f1slot(stage): return (stage & 3) * 4096
    def f1_dma_ops(stage):
        ops = []
        for gu in range(2):
            for i in range(2):
                def op(gu=gu, i=i):
                    a(f"s_add_u32 m0, s10, {f1slot(stage) + gu*2048 + i*1024}")
                    if i: a("s_add_u32 s11, s13, s79")
                    else: a("s_nop 0")
                    a(f"buffer_load_dwordx4 v{vUO if gu else vGO}, {S4(SRD_WU if gu else SRD_WG)}, {'s11' if i else 's13'} offen lds")
                    if gu == 1 and i == 1: a("s_add_u32 s13, s13, s80")
                ops.append(op)
        return ops
    xn_read_addrs(a, XA, 8)
    a("v_lshrrev_b32 v12, 5, v0")
    a("v_bfe_u32 v13, v0, 2, 2")
    a("v_lshl_add_u32 v12, v12, 3, v13")
    a("v_lshlrev_b32 v12, 7, v12")
    a("v_bfe_u32 v13, v0, 1, 1")
    a("v_lshl_add_u32 v12, v13, 11, v12")
    a("v_and_b32 v14, 1, v0")
    a("v_lshl_add_u32 v12, v14, 4, v12")
    a("v_bfe_u32 v14, v0, 4, 1")
    a("v_lshl_add_u32 v12, v14, 3, v12")
    a("v_add_u32 v12, s10, v12")
    a("v_bfe_u32 v14, v0, 3, 1")
    a("v_lshl_or_b32 v14, v13, 1, v14")
    for t in range(4):
        a(f"v_xor_b32 v8, {t}, v14")
        a(f"v_lshl_add_u32 v{TA+t}, v8, 5, v12")
    for i in range(16, 128): a(f"v_mov_b32 v{ACC+i}, 0")
    side = []
    for st in range(4): side += f1_dma_ops(st)
    e0 = OPT.get("early", 4)
    def pre_bar():
        for i in range(16): a(f"v_mov_b32 v{ACC+i}, 0")
    ln("G", side, {-1: e0, 9: OPT.get("mid", 2)}, {i: OPT.get("late", 1) for i in range(10)}, pre_bar)
    a(f"s_setprio {OPT['eprio']}")
    def f1_read_ops(u):
        fb = FB + (u & 1) * 24
        so = f1slot(u)
        ops = [lambda: a(f"ds_read_b128 {vr(fb+16,4)}, v{XA+(u&3)} offset:{L_XN+u*2048}"),
               lambda: a(f"ds_read_b128 {vr(fb+20,4)}, v{XA+(u&3)} offset:{L_XN+u*2048+1024}")]
        for t in range(4):
            ops.append(lambda t=t: a(f"ds_read_b64_tr_b16 {vr(fb+4*t,2)}, v{TA+t} offset:{so}"))
            ops.append(lambda t=t: a(f"ds_read_b64_tr_b16 {vr(fb+4*t+2,2)}, v{TA+t} offset:{so+512}"))
        return ops
    DEEP = OPT.get("deep", 1)
    a("s_waitcnt vmcnt(12)")
    for op in f1_read_ops(0): op()
    if DEEP:
        a("s_waitcnt lgkmcnt(0)")
        for op in f1_dma_ops(4): op()
    a("s_mov_b32 s8, 10")
    stamp(a, 5)
    a(f"s_setprio {OPT['gprio']}")
    a.lines.append(".p2align 6")
    a.label("f1_loop")
    for u in range(4):
        a(f"s_waitcnt vmcnt({12 if DEEP else 8}) lgkmcnt(0)")
        fb = FB + (u & 1) * 24
        mm = [(lambda t=t, rt=rt: mfma32(a, ACC + (t * 2 + rt) * 16, fb + 4 * t, fb + 16 + 4 * rt)) for t in range(4) for rt in range(2)]
        if DEEP:
            r = f1_read_ops(u + 1)
            side = r[2:] + r[:2] + [lambda: a("s_waitcnt lgkmcnt(2)")] + f1_dma_ops(u + 1)
            interleave(a, mm, side, {1: [4, 4, 2, 0, 2, 1, 1, 1], 2: [4, 4, 2, 2, 1, 1, 1, 0], 3: [5, 5, 0, 2, 1, 1, 1, 0]}[DEEP])
        else:
            interleave(a, mm, f1_read_ops(u + 1) + f1_dma_ops(u), [3, 3, 2, 2, 1, 1, 1, 1])
    for m in range(4): a(f"v_add_u32 v{XA+m}, 8192, v{XA+m}")
    if OPT.get("x_thr"):
        a("s_cmp_ge_u32 s6, 27")
        a("s_cbranch_scc1 thr_skip")
        a(f"s_sleep {OPT['x_thr']}")
        a.label("thr_skip")
    a("s_sub_u32 s8, s8, 1")
    a("s_cmp_lg_u32 s8, 0")
    a("s_cbranch_scc1 f1_loop")
    a(f"s_setprio {OPT['eprio']}")
    stamp(a, 6)
    WOFF = 2
    TB = 6
    vBX, vBY = 9, 10
    HP = 24
    lds_signal(a, C_F1, 12)
    a("s_cmp_lt_u32 s6, 27")
    a("s_cbranch_scc1 f1_epi")
    a("s_setprio 3")
    a("v_lshlrev_b32 v12, 4, v0")
    a("s_sub_u32 s8, s6, 27")
    a("s_lshl_b32 s7, s8, 13")
    a(f"s_mul_i32 s8, s{sG}, 81920")
    a("s_add_u32 s7, s7, s8")
    a(f"s_add_u32 s7, s7, {WS_QGB}")
    a("s_add_u32 s8, s7, 4096")
    a("s_add_u32 s82, s7, 40960")
    a("s_add_u32 s83, s8, 40960")
    for t in range(4):
        for rt in range(2):
            ac = ACC + (t * 2 + rt) * 16
            o = 16 + ((t * 2 + rt) & 3) * 8
            for up in range(2):
                for hi in range(2):
                    r = ac + 8 * hi + 4 * up
                    a(f"v_cvt_pk_bf16_f32 v{o+4*up+2*hi}, v{r}, v{r+1}")
                    a(f"v_cvt_pk_bf16_f32 v{o+4*up+2*hi+1}, v{r+2}, v{r+3}")
                so = [[7, 8], [82, 83]][rt][up]
                a(f"buffer_store_dwordx4 {vr(o+4*up,4)}, v12, {S4(SRD_WS)}, s{so} offen offset:{t*1024} sc1")
    a(f"s_lshl_b32 s7, s{sG}, {MS()+5}")
    a("s_sub_u32 s8, s6, 27")
    a("s_mul_i32 s82, s8, 32")
    a("s_mul_i32 s82, s82, 0x3334")
    a("s_lshr_b32 s82, s82, 16")
    a(f"s_lshl_b32 s8, s8, {FS()}")
    a("s_add_u32 s7, s7, s8")
    a(f"s_add_u32 s7, s7, {MB_Q}")
    a("v_add_u32 v12, s82, v0")
    a("v_min_u32 v12, 31, v12")
    a(f"v_lshlrev_b32 v12, {MS()}, v12")
    flag_bcast(a, 12, 7, 8, 13)
    a(f"s_setprio {OPT['eprio']}")
    a("s_branch f1_epi_skip")
    a.label("f1_epi")
    T = 16
    idx = [(0, 4), (1, 5), (2, 6), (3, 7), (8, 12), (9, 13), (10, 14), (11, 15)]
    a("s_nop 3")
    for t in range(4):
        for rt in range(2):
            ac = ACC + (t * 2 + rt) * 16
            hp = HP + (t * 2 + rt) * 4
            for e, (gi, ui) in enumerate(idx): a(f"v_mul_f32 v{T+e}, {NL2E}, v{ac+gi}")
            for e in range(8): a(f"v_exp_f32 v{T+e}, v{T+e}")
            for e in range(8): a(f"v_add_f32 v{T+e}, 1.0, v{T+e}")
            for e in range(8): a(f"v_rcp_f32 v{T+e}, v{T+e}")
            for e, (gi, ui) in enumerate(idx): a(f"v_mul_f32 v{ac+gi}, v{ac+gi}, v{ac+ui}")
            for e, (gi, ui) in enumerate(idx): a(f"v_mul_f32 v{T+e}, v{T+e}, v{ac+gi}")
            for e in range(4): a(f"v_cvt_pk_bf16_f32 v{hp+e}, v{T+2*e}, v{T+2*e+1}")
    a.label("f1_epi_skip")
    stamp(a, 7)
    FB2, BB, ACC2, WF = 16, 40, 80, 160
    TC, TD = 250, 253
    a(f"s_and_b32 s76, s{sJ}, 1")
    a(f"s_lshr_b32 s77, s{sJ}, 1")
    a("s_mul_i32 s77, s77, 320")
    a("s_lshl_b32 s8, s76, 7")
    a("s_add_u32 s77, s77, s8")
    for i in range(4):
        a(f"v_add_u32 v12, {i*64}, v0")
        a("v_mul_u32_u24 v13, 0xaab, v12")
        a("v_lshrrev_b32 v13, 15, v13")
        a("v_mul_u32_u24 v14, 12, v13")
        a("v_sub_u32 v14, v12, v14")
        a("v_mul_u32_u24 v13, 1280, v13")
        a("v_lshl_add_u32 v13, v14, 4, v13")
        a(f"v_add_u32 v{WOFF+i}, s77, v13")
    a("v_cmp_lt_u32 vcc, 47, v0")
    a(f"v_mov_b32 v12, {OOB}")
    a("s_mul_i32 s78, s9, 28")
    a(f"v_cndmask_b32 v{WOFF+3}, v{WOFF+3}, v12, vcc")
    a(f"s_mul_i32 s11, s78, {16*1280}")
    a(f"s_add_u32 s7, s11, {28*16*1280}")
    a(f"s_min_u32 s{SRD_WD+2}, s7, {F*D*2}")
    a("s_lshl_b32 s84, s9, 14")
    a("s_lshl_b32 s79, s76, 6")
    a("s_add_u32 s80, s79, 64")
    a("s_cmp_eq_u32 s76, 0")
    a("s_cselect_b32 s81, 128, 0")
    a("v_bfe_u32 v12, v0, 2, 2")
    a("v_mul_u32_u24 v12, 192, v12")
    a("v_bfe_u32 v13, v0, 4, 1")
    a("v_bfe_u32 v14, v0, 1, 1")
    a("v_lshl_add_u32 v13, v13, 1, v14")
    a("v_add_u32 v13, s9, v13")
    a("v_and_b32 v13, 3, v13")
    a("v_lshl_add_u32 v12, v13, 4, v12")
    a("v_and_b32 v13, 1, v0")
    a("v_lshl_add_u32 v12, v13, 3, v12")
    a("v_add_u32 v11, s10, v12")
    a("v_lshrrev_b32 v13, 5, v0")
    a(f"v_mul_u32_u24 v14, {8*192}, v13")
    for t, sT in enumerate((79, 80, 81)):
        a(f"v_add3_u32 v{TB+t}, v11, v14, s{sT}")
    a("v_add_u32 v11, s84, v12")
    a(f"v_mul_u32_u24 v14, {4*192}, v13")
    a("v_lshlrev_b32 v15, 13, v13")
    for t, sT in enumerate((79, 80, 81)):
        a(f"v_add3_u32 v{TC+t}, v11, v14, s{sT}")
        a(f"v_add3_u32 v{TD+t}, v11, v15, s{sT}")
    a("v_lshlrev_b32 v11, 4, v0")
    a("s_lshl_b32 s7, s76, 10")
    a(f"v_add_u32 v{vBX}, s7, v11")
    a("s_xor_b32 s7, s7, 1024")
    a(f"v_add_u32 v{vBY}, s7, v11")
    for i in range(80): a(f"v_mov_b32 v{ACC2+i}, 0")
    a("s_cmp_eq_u32 s9, 3")
    a("s_cselect_b32 s7, 5, 6")
    a("v_min_u32 v15, s7, v0")
    a(f"v_lshlrev_b32 v15, {FS()}, v15")
    a(f"s_lshl_b32 s83, s{sG}, 3")
    a(f"s_add_u32 s83, s83, s{sJ}")
    a("s_lshl_b32 s83, s83, 2")
    a("s_add_u32 s83, s83, s9")
    a(f"s_lshl_b32 s83, s83, {MS()}")
    a(f"s_add_u32 s83, s83, {MB_H}")
    a(f"s_mul_i32 s12, s{sG}, {108*2048}")
    a(f"s_add_u32 s12, s12, {WS_HF}")
    a("s_lshl_b32 s8, s78, 11")
    a("s_add_u32 s82, s12, s8")
    a("s_lshl_b32 s8, s6, 13")
    a("s_add_u32 s12, s12, s8")
    a(f"s_mov_b32 s{SRD_H}, s{P_WS}")
    a(f"s_mov_b32 s{SRD_H+1}, s{P_WS+1}")
    a("s_cmp_eq_u32 s9, 3")
    a("s_cselect_b32 s8, 24, 28")
    a("s_lshl_b32 s8, s8, 11")
    a(f"s_add_u32 s{SRD_H+2}, s82, s8")
    a("s_mul_i32 s8, s6, 37")
    a("s_lshr_b32 s8, s8, 8")
    a("s_mul_i32 s7, s8, 7")
    a("s_sub_u32 s7, s6, s7")
    a(f"s_lshl_b32 s8, s8, {MS()}")
    a(f"s_lshl_b32 s7, s7, {FS()}")
    a(f"s_lshl_b32 s13, s{sG}, {MS()+5}")
    a("s_add_u32 s13, s13, s8")
    a("s_add_u32 s13, s13, s7")
    a(f"s_add_u32 s13, s13, {MB_H}")
    a(f"v_lshlrev_b32 v1, {MS()+2}, v0")
    a(f"v_mov_b32 v14, s{sTAG}")
    def wd_dma_ops(slot):
        ops = []
        for i in range(3):
            def op(i=i):
                a(f"s_add_u32 m0, s10, {slot*4096 + i*1024}")
                a("s_nop 0")
                a(f"buffer_load_dwordx4 v{WOFF+i}, {S4(SRD_WD)}, s11 offen lds")
                if i == 2: a(f"s_add_u32 s11, s11, {16*1280}")
            ops.append(op)
        return ops
    def wo_stage(sl, sbase):
        for s in range(4):
            a(f"s_mul_i32 s7, s9, {80*1280}")
            a(f"s_add_u32 s7, s7, {(sl*320 + s*20)*1280}")
            for i in range(4):
                a(f"s_add_u32 m0, s{sbase}, {s*4096 + i*1024}")
                a("s_nop 0")
                a(f"buffer_load_dwordx4 v{WOFF+i}, {S4(SRD_WO)}, s7 offen lds")
    def wo_reads():
        for s5 in range(5):
            for t in range(3):
                f = WF + s5 * 12 + 4 * t
                if s5 < 4:
                    a(f"ds_read_b64_tr_b16 {vr(f,2)}, v{TC+t} offset:{s5*4096}")
                    a(f"ds_read_b64_tr_b16 {vr(f+2,2)}, v{TC+t} offset:{s5*4096+8*192}")
                else:
                    a(f"ds_read_b64_tr_b16 {vr(f,2)}, v{TD+t} offset:{16*192}")
                    a(f"ds_read_b64_tr_b16 {vr(f+2,2)}, v{TD+t} offset:{4096+16*192}")
    a("s_setprio 0")
    lds_wait(a, C_F1, 5, 12, 7, sleep=4)
    a("s_waitcnt vmcnt(0)")
    UG = OPT.get("ungate", 0)
    if UG:
        for n in range(4):
            for op in wd_dma_ops(n): op()
        wo_stage(0, 84)
        a("s_waitcnt vmcnt(0)")
        wo_reads()
    lds_wait(a, C_QR, 4, 12, 7, sleep=4)
    a("s_cmp_ge_u32 s6, 27")
    a("s_cbranch_scc1 h_st_skip")
    for t in range(4):
        for rt in range(2):
            a(f"buffer_store_dwordx4 {vr(HP+(t*2+rt)*4,4)}, v11, {S4(SRD_WS)}, s12 offen offset:{(t&1)*2048+rt*1024} sc1")
        if t == 1: a("s_add_u32 s12, s12, 4096")
    a.label("h_st_skip")
    if not UG:
        for n in range(4):
            for op in wd_dma_ops(n): op()
    a("s_cmp_ge_u32 s6, 27")
    a("s_cbranch_scc1 h_fl_skip")
    a(f"s_waitcnt vmcnt({0 if UG else 12})")
    a("s_mov_b64 exec, 0xff")
    a(f"buffer_store_dword v14, v1, {S4(SRD_WS)}, s13 offen sc1")
    a("s_mov_b64 exec, -1")
    a.label("h_fl_skip")
    if not UG:
        wo_stage(0, 84)
        a("s_waitcnt vmcnt(0)")
        wo_reads()
    flag_poll(a, 15, 83, 13, 8, sleep=OPT.get("hsleep", 8))
    stamp(a, 8)
    def h_ops(slot):
        return [lambda: a(f"buffer_load_dwordx4 {vr(BB+slot*8,4)}, v{vBX}, {S4(SRD_H)}, s82 offen sc1"),
                lambda: (a(f"buffer_load_dwordx4 {vr(BB+slot*8+4,4)}, v{vBY}, {S4(SRD_H)}, s82 offen sc1"), a("s_add_u32 s82, s82, 2048"))]
    for n in range(4):
        for op in h_ops(n): op()
    def f2_read_ops(u):
        fb = FB2 + (u & 1) * 12
        slot = u % 4
        ops = []
        for t in range(3):
            ops.append(lambda t=t: a(f"ds_read_b64_tr_b16 {vr(fb+4*t,2)}, v{TB+t} offset:{slot*4096}"))
            ops.append(lambda t=t: a(f"ds_read_b64_tr_b16 {vr(fb+4*t+2,2)}, v{TB+t} offset:{slot*4096+4*192}"))
        return ops
    def mm5(fb, bx, by, acc, c=None):
        return [lambda: mfma32(a, acc + 0, fb + 0, bx, c), lambda: mfma32(a, acc + 16, fb + 0, by, c),
                lambda: mfma32(a, acc + 32, fb + 4, bx, c), lambda: mfma32(a, acc + 48, fb + 4, by, c),
                lambda: mfma32(a, acc + 64, fb + 8, bx, c)]
    for op in f2_read_ops(0): op()
    a("s_sub_u32 s7, s10, s84")
    a("s_waitcnt lgkmcnt(6)")
    for t in range(6): a(f"v_add_u32 v{TC+t}, s7, v{TC+t}")
    a("s_cmp_eq_u32 s9, 3")
    a("s_cselect_b32 s8, 6, 7")
    if OPT.get("f2it"): a(f"s_mov_b32 s8, {OPT['f2it']}")
    a("s_waitcnt vmcnt(0)")
    a(f"s_setprio {OPT['g2prio']}")
    a.lines.append(".p2align 6")
    a.label("f2_loop")
    for u in range(4):
        a("s_waitcnt vmcnt(10) lgkmcnt(0)")
        mm = mm5(FB2 + (u & 1) * 12, BB + u * 8, BB + u * 8 + 4, ACC2)
        interleave(a, mm, f2_read_ops(u + 1) + wd_dma_ops(u), [3, 3, 1, 1, 1])
        for op in h_ops(u): op()
    a("s_sub_u32 s8, s8, 1")
    a("s_cmp_lg_u32 s8, 0")
    a("s_cbranch_scc1 f2_loop")
    a(f"s_setprio {OPT['eprio']}")
    a("s_waitcnt vmcnt(0) lgkmcnt(0)")
    stamp(a, 9)
    wo_stage(1, 10)
    a("v_and_b32 v1, 31, v0")
    a("v_mul_u32_u24 v1, 1280, v1")
    a("v_lshrrev_b32 v12, 5, v0")
    a("v_lshl_add_u32 v1, v12, 3, v1")
    a("s_lshl_b32 s7, s9, 4")
    a("s_add_u32 s7, s7, s77")
    a(f"s_mul_i32 s8, s{sG}, {64*1280}")
    a("s_add_u32 s7, s7, s8")
    a(f"s_mul_i32 s8, s76, {32*1280}")
    a(f"s_sub_u32 s11, {32*1280}, s8")
    a("s_add_u32 s8, s8, s7")
    a("s_add_u32 s11, s11, s7")
    a("s_add_u32 s83, s79, s8")
    a("s_add_u32 s85, s79, s11")
    a("s_add_u32 s6, s80, s8")
    a("s_add_u32 s12, s80, s11")
    a("s_add_u32 s13, s81, s8")
    US = [83, 85, 6, 12, 13]
    XPR = [236, 238, 2, 4, 6]
    for u in range(5):
        a(f"buffer_load_dwordx2 {vr(XPR[u],2)}, v1, {S4(SRD_X)}, s{US[u]} offen")
    RA = 12
    def blk_off(u, d): return (u * 3 + (d - 1)) * 1024
    def red_write(acc, base, cnt, vt):
        a(f"v_lshlrev_b32 v{RA}, 4, v0")
        for d in range(1, 4):
            a(f"s_sub_u32 s7, s9, {d}")
            a("s_and_b32 s7, s7, 3")
            a("s_lshl_b32 s7, s7, 14")
            if base: a(f"s_add_u32 s7, s7, {base}")
            a(f"v_add_u32 v{RA+d}, s7, v{RA}")
        a(f"v_add_u32 v{RA}, s{10 if base else 84}, v{RA}")
        for u in range(5):
            for d in range(1, 4):
                a(f"ds_write_b128 v{RA}, {vr(acc+16*u+4*d,4)} offset:{blk_off(u,d)}")
        lds_signal(a, cnt, vt)
    def red_read(RR, cnt):
        lds_wait(a, cnt, 4, RR, 7, sleep=CS())
        for u in range(5):
            for d in range(1, 4):
                a(f"ds_read_b128 {vr(RR+u*12+(d-1)*4,4)}, v{RA+d} offset:{blk_off(u,d)}")
    def red_sum(acc, RR, u):
        r = RR + u * 12
        for i in range(4):
            a(f"v_add_f32 v{r+i}, v{r+i}, v{r+4+i}")
            a(f"v_add_f32 v{r+8+i}, v{r+8+i}, v{acc+16*u+i}")
        for i in range(4):
            a(f"v_add_f32 v{r+i}, v{r+i}, v{r+8+i}")
    RR = 16
    red_write(ACC2, 0, C_G1, RR)
    red_read(RR, C_G1)
    lds_signal(a, C_F2, 76)
    GG = 240
    for u in range(5):
        red_sum(ACC2, RR, u)
        r = RR + u * 12
        for i in range(4): a(f"v_mul_f32 v{r+4+i}, {NL2E}, v{r+i}")
        for i in range(4): a(f"v_exp_f32 v{r+4+i}, v{r+4+i}")
        for i in range(4): a(f"v_add_f32 v{r+4+i}, 1.0, v{r+4+i}")
        for i in range(4): a(f"v_rcp_f32 v{r+4+i}, v{r+4+i}")
        a("s_nop 0")
        for i in range(4): a(f"v_mul_f32 v{r+i}, v{r+i}, v{r+4+i}")
        a(f"v_cvt_pk_bf16_f32 v{GG+2*u}, v{r}, v{r+1}")
        a(f"v_cvt_pk_bf16_f32 v{GG+2*u+1}, v{r+2}, v{r+3}")
    stamp(a, 10)
    ACC3 = 80
    def ob(k): return 16 + k * 8 if k < 8 else 220 + (k - 8) * 8
    a("v_min_u32 v12, 7, v0")
    a(f"v_lshlrev_b32 v12, {FS()}, v12")
    a(f"s_lshl_b32 s7, s{sG}, 3")
    a(f"s_add_u32 s7, s7, s{sJ}")
    a("s_lshl_b32 s7, s7, 2")
    a("s_add_u32 s7, s7, s9")
    a(f"s_lshl_b32 s7, s7, {MS()}")
    a(f"s_add_u32 s7, s7, {MB_O}")
    a(f"s_mul_i32 s82, s{sG}, {40*2048}")
    a(f"s_mul_i32 s8, s9, {5*2048}")
    a("s_add_u32 s82, s82, s8")
    a(f"s_add_u32 s82, s82, {WS_OF}")
    def wo_read_step(s5):
        for t in range(3):
            f = WF + s5 * 12 + 4 * t
            if s5 < 4:
                a(f"ds_read_b64_tr_b16 {vr(f,2)}, v{TC+t} offset:{s5*4096}")
                a(f"ds_read_b64_tr_b16 {vr(f+2,2)}, v{TC+t} offset:{s5*4096+8*192}")
            else:
                a(f"ds_read_b64_tr_b16 {vr(f,2)}, v{TD+t} offset:{16*192}")
                a(f"ds_read_b64_tr_b16 {vr(f+2,2)}, v{TD+t} offset:{4096+16*192}")
    stamp(a, 11)
    def oloads(sl):
        for k in range(5 * sl, 5 * sl + 5):
            a(f"buffer_load_dwordx4 {vr(ob(k),4)}, v{vBX if k % 5 < 4 else 14}, {S4(SRD_WS)}, s82 offen sc1")
            a(f"buffer_load_dwordx4 {vr(ob(k)+4,4)}, v{vBY if k % 5 < 4 else 15}, {S4(SRD_WS)}, s82 offen sc1")
            a("s_add_u32 s82, s82, 2048")
        a(f"s_add_u32 s82, s82, {15*2048}")
    def omm(sl, younger):
        for k in range(5):
            a(f"s_waitcnt vmcnt({8-2*k+younger})" + (f" lgkmcnt({min(15, 24-6*k)})" if sl else ""))
            kk = 5 * sl + k
            if k == 4:
                L1 = a.newlabel("f5o"); L2 = a.newlabel("f5d")
                a("s_cmp_lg_u32 s76, 0")
                a(f"s_cbranch_scc1 {L1}")
                a(f"v_swap_b32 v{ob(kk)+2}, v{ob(kk)+4}")
                a(f"v_swap_b32 v{ob(kk)+3}, v{ob(kk)+5}")
                a(f"s_branch {L2}")
                a.label(L1)
                a(f"v_swap_b32 v{ob(kk)}, v{ob(kk)+6}")
                a(f"v_swap_b32 v{ob(kk)+1}, v{ob(kk)+7}")
                a.label(L2)
                a("s_nop 1")
            for m in mm5(WF + k * 12, ob(kk), ob(kk) + 4, ACC3, "0" if kk == 0 else None): m()
            if sl == 0: wo_read_step(k)
    a("v_and_b32 v14, 31, v0")
    a("v_lshlrev_b32 v14, 4, v14")
    a("v_lshrrev_b32 v15, 5, v0")
    a("v_lshl_add_u32 v14, v15, 10, v14")
    a("s_lshl_b32 s8, s76, 9")
    a("v_add_u32 v14, s8, v14")
    a("v_xor_b32 v15, 0x200, v14")
    def pollload(): a(f"buffer_load_dword v13, v12, {S4(SRD_WS)}, s7 offen {PF()}")
    a(f"s_setprio {OPT.get('oprio', 3)}")
    if OPT.get("ogate", 0):
        a("s_mov_b32 s78, s7")
        lds_wait(a, C_A1, OPT.get("ogate", 0), 76, 7, sleep=4)
        a("s_mov_b32 s7, s78")
        if OPT.get("odelay", 0): a(f"s_sleep {OPT['odelay']}")
        else: a("s_nop 3")
    a(f"s_mov_b32 s8, {POLL_CAP}")
    a.label("o_poll0")
    pollload()
    a("s_waitcnt vmcnt(0)")
    a(f"v_cmp_ne_u32 vcc, s{sTAG}, v13")
    a("s_and_b32 s11, vcc_lo, 15")
    a("s_cbranch_scc0 o_go0")
    a(f"s_sleep {OPT.get('osleep', 16)}")
    a("s_sub_u32 s8, s8, 1")
    a("s_cmp_lg_u32 s8, 0")
    a("s_cbranch_scc1 o_poll0")
    a.label("o_go0")
    a("s_setprio 3")
    tstamp(a, 12)
    oloads(0)
    a("s_cbranch_vccnz o_slow")
    oloads(1)
    omm(0, 10)
    a("s_branch o_second")
    a.label("o_slow")
    pollload()
    omm(0, 1)
    a("s_waitcnt vmcnt(0)")
    a(f"v_cmp_ne_u32 vcc, s{sTAG}, v13")
    a("s_cbranch_vccz o_go1")
    if OPT.get("pp", 0): flag_poll_pipe(a, 12, 7, [13, 8, 11], 8, OPT.get("ppgap", 3))
    else: flag_poll(a, 12, 7, 13, 8, sleep=OPT.get("osleep2", 8))
    a.label("o_go1")
    oloads(1)
    a.label("o_second")
    tstamp(a, 1)
    omm(1, 0)
    RR = 160
    tstamp(a, 3)
    red_write(ACC3, L_RING, C_G2, 230)
    tstamp(a, 4)
    a("s_mov_b32 s78, 0xffff0000")
    for u in range(5):
        t = 16 + 8 * u
        x = XPR[u]
        a(f"v_lshlrev_b32 v{t}, 16, v{x}")
        a(f"v_and_b32 v{t+1}, s78, v{x}")
        a(f"v_lshlrev_b32 v{t+2}, 16, v{x+1}")
        a(f"v_and_b32 v{t+3}, s78, v{x+1}")
        a(f"v_lshlrev_b32 v{t+4}, 16, v{GG+2*u}")
        a(f"v_and_b32 v{t+5}, s78, v{GG+2*u}")
        a(f"v_lshlrev_b32 v{t+6}, 16, v{GG+2*u+1}")
        a(f"v_and_b32 v{t+7}, s78, v{GG+2*u+1}")
    red_read(RR, C_G2)
    tstamp(a, 5)
    for u in range(5):
        a(f"s_waitcnt lgkmcnt({12-3*u})")
        t = 16 + 8 * u
        r = RR + u * 12
        red_sum(ACC3, RR, u)
        for i in range(4):
            a(f"v_fmac_f32 v{t+i}, v{r+i}, v{t+4+i}")
        a(f"v_cvt_pk_bf16_f32 v{t+4}, v{t}, v{t+1}")
        a(f"v_cvt_pk_bf16_f32 v{t+5}, v{t+2}, v{t+3}")
        a(f"buffer_store_dwordx2 {vr(t+4,2)}, v1, {S4(SRD_OUT)}, s{US[u]} offen")

def build():
    a = Asm()
    hdr = open("cdna_kernels/" + NAME + ".s.ref").read().split("\n")
    head = [l for l in hdr if l.startswith(";") and "@launch" not in l]
    out = "\n".join(head) + "\n"
    out += f"; @launch grid=(256,1,1) block=(512,1,1) lds={LDS_TOTAL}\n"
    out += '.amdgcn_target "amdgcn-amd-amdhsa--gfx950"\n.text\n'
    a.lines += [f".globl {KNAME}", ".p2align 8", f".type {KNAME},@function"]
    a.label(KNAME)
    ln = emit_prologue(a)
    emit_role_a(a)
    emit_role_g(a, ln)
    a.label("k_end")
    stamp_flush(a)
    a.label("k_exit")
    a("s_endpgm")
    a.label("code_end")
    probs = check_hazards(a.lines)
    for p in probs: print(p, file=sys.stderr)
    out += a.text()
    out += f""".section .rodata,"a"
.p2align 6
.amdhsa_kernel {KNAME}
  .amdhsa_next_free_vgpr 256
  .amdhsa_next_free_sgpr 102
  .amdhsa_accum_offset 256
  .amdhsa_group_segment_fixed_size 0
  .amdhsa_kernarg_size 96
  .amdhsa_user_sgpr_count 2
  .amdhsa_user_sgpr_kernarg_segment_ptr 1
  .amdhsa_system_sgpr_workgroup_id_x 1
.end_amdhsa_kernel
"""
    return out

if __name__ == "__main__":
    path = sys.argv[1] if len(sys.argv) > 1 else "cdna_kernels/" + NAME + ".s"
    for kv in sys.argv[2:]:
        k, v = kv.split("=")
        OPT[k] = int(v)
    open(path, "w").write(build())
```

```python
import re

class Asm:
    def __init__(self):
        self.lines = []
        self.nlab = 0
    def __call__(self, s):
        for ln in s.split("\n"):
            ln = ln.strip()
            if ln:
                self.lines.append(ln)
    def label(self, name):
        self.lines.append(name + ":")
    def newlabel(self, pfx="L"):
        self.nlab += 1
        return f"{pfx}_{self.nlab}"
    def comment(self, s):
        self.lines.append("; " + s)
    def nop(self, n):
        while n > 0:
            k = min(n, 16)
            self.lines.append(f"s_nop {k-1}")
            n -= k
    def text(self):
        out = []
        for l in self.lines:
            if l.endswith(":") or l.startswith(".") or l.startswith(";"):
                out.append(l)
            else:
                out.append("  " + l)
        return "\n".join(out) + "\n"

def vr(b, n=1):
    return f"v{b}" if n == 1 else f"v[{b}:{b+n-1}]"
def sr(b, n=1):
    return f"s{b}" if n == 1 else f"s[{b}:{b+n-1}]"

_reg_re = re.compile(r"\b([vsa])(?:(\d+)|\[(\d+):(\d+)\])")
def regs_of(tok):
    out = set()
    for m in _reg_re.finditer(tok):
        k = m.group(1)
        if m.group(2) is not None:
            out.add((k, int(m.group(2))))
        else:
            for i in range(int(m.group(3)), int(m.group(4)) + 1):
                out.add((k, i))
    if re.search(r"\bvcc\b", tok): out.add(("s", "vcc"))
    if re.search(r"\bexec\b", tok): out.add(("s", "exec"))
    if re.search(r"\bm0\b", tok): out.add(("s", "m0"))
    return out

TRANS = ("v_exp_f32", "v_log_f32", "v_rcp_f32", "v_rsq_f32", "v_sqrt_f32", "v_sin_f32", "v_cos_f32")

class Ins:
    def __init__(self, text):
        self.text = text
        t = text.split(";")[0].strip()
        sp = t.split(None, 1)
        self.op = sp[0]
        rest = sp[1] if len(sp) > 1 else ""
        ops = []; depth = 0; cur = ""
        for ch in rest:
            if ch == "[": depth += 1
            if ch == "]": depth -= 1
            if ch == "," and depth == 0:
                ops.append(cur.strip()); cur = ""
            else:
                cur += ch
        if cur.strip(): ops.append(cur.strip())
        self.ops = ops
        op = self.op
        self.is_mfma = op.startswith("v_mfma")
        self.is_valu = op.startswith("v_") and not self.is_mfma
        self.is_salu = op.startswith("s_")
        self.is_vmem = op.startswith("buffer_") or op.startswith("global_")
        self.is_ds = op.startswith("ds_")
        self.is_trans = any(op.startswith(x) for x in TRANS)
        self.is_dpp = "_dpp" in op or "quad_perm" in rest or "row_" in rest
        self.is_perml = op.startswith("v_permlane")
        self.is_lds_dma = self.is_vmem and re.search(r"\blds\b", rest) is not None
        self.w = set(); self.r = set()
        self.srcC = set(); self.srcAB = set(); self.stdata = set()
        self.ws = 1
        if op == "s_nop":
            self.ws = int(ops[0], 0) + 1
        R = [regs_of(o) for o in ops]
        if self.is_mfma:
            self.w = R[0]; self.srcAB = R[1] | R[2]; self.srcC = R[3]; self.r = self.srcAB | self.srcC
            if "32x32x16" in op or "32x32x8" in op: self.passes = 8
            elif "16x16x32" in op or "16x16x16" in op: self.passes = 4
            else: raise ValueError(op)
        elif self.is_valu:
            if op.startswith("v_cmp"):
                self.w = R[0]; self.r = set().union(*R[1:])
                if op.startswith("v_cmpx"): self.w |= {("s", "exec")}
            elif op.startswith("v_readfirstlane") or op.startswith("v_readlane"):
                self.w = R[0]; self.r = set().union(*R[1:])
            elif self.is_perml or op.startswith("v_swap"):
                self.w = R[0] | R[1]; self.r = R[0] | R[1]
            elif op.startswith("v_add_co") or op.startswith("v_addc_co") or op.startswith("v_sub_co"):
                self.w = R[0] | R[1]; self.r = set().union(*R[2:])
            else:
                self.w = R[0]; self.r = set().union(*R[1:]) if len(R) > 1 else set()
                if op.startswith("v_fmac") or op.startswith("v_dot2c") or "sdwa" in op or self.is_dpp or op.startswith("v_writelane"):
                    self.r |= R[0]
                if op.startswith("v_cndmask") and len(ops) == 3:
                    self.r |= {("s", "vcc")}
        elif self.is_vmem:
            if "store" in op or "atomic" in op:
                self.stdata = R[0]; self.r = set().union(*R)
                if "atomic" in op and "sc0" in rest: self.w = R[0]
            elif op in ("buffer_wbl2", "buffer_inv"):
                pass
            elif self.is_lds_dma:
                self.r = set().union(*R) | {("s", "m0")}
            else:
                self.w = R[0]; self.r = set().union(*R[1:])
        elif self.is_ds:
            if "read" in op or "permute" in op or "swizzle" in op or "rtn" in op:
                self.w = R[0]; self.r = set().union(*R[1:])
            else:
                self.r = set().union(*R)
        elif self.is_salu:
            if op.startswith("s_cmp") or op.startswith("s_cbranch") or op in ("s_branch", "s_waitcnt", "s_barrier", "s_nop", "s_endpgm", "s_setprio", "s_sleep"):
                self.r = set().union(*R) if R else set()
            else:
                self.w = R[0] if R else set(); self.r = set().union(*R[1:]) if len(R) > 1 else set()
                if "saveexec" in op: self.w |= {("s", "exec")}; self.r |= {("s", "exec")}

def _need(p, c):
    n = 0
    vw = {x for x in p.w if x[0] in "va"}
    sw = {x for x in p.w if x[0] == "s"}
    if p.is_valu:
        if c.is_mfma and (vw & c.r): n = max(n, 2)
        if c.is_valu and c.is_dpp and (vw & c.r): n = max(n, 2)
        if c.is_perml and (vw & c.r): n = max(n, 2)
        if c.op.startswith("v_readfirstlane") or c.op.startswith("v_readlane"):
            if vw & c.r: n = max(n, 1)
            if sw & c.r: n = max(n, 4)
        if p.is_trans and c.is_valu and not c.is_trans and (vw & c.r): n = max(n, 1)
        if p.is_trans and (c.is_mfma) and (vw & c.r): n = max(n, 2)
        if "sdwa" in p.op and c.is_valu and (vw & (c.r | c.w)): n = max(n, 1)
        if sw:
            if c.is_vmem and (sw & c.r): n = max(n, 5)
            if c.is_valu and (sw & c.r): n = max(n, 2)
            if ("s", "exec") in sw:
                if c.is_mfma: n = max(n, 4)
                if c.is_dpp: n = max(n, 5)
                if c.is_perml: n = max(n, 4)
    if p.is_salu and ("s", "m0") in p.w and c.is_lds_dma: n = max(n, 1)
    if p.is_mfma:
        big = {8: 12, 4: 8}[p.passes]
        ovl = {8: 10, 4: 6}[p.passes]
        war = {8: 7, 4: 3}[p.passes]
        if c.is_mfma:
            if p.w & c.srcAB: n = max(n, big)
            if p.w & c.srcC:
                if not (p.w == c.srcC and p.passes == c.passes): n = max(n, ovl)
            elif p.w & c.w:
                n = max(n, ovl)
        elif c.is_valu or c.is_vmem or c.is_ds:
            if p.w & (c.r | c.w): n = max(n, big)
            if c.is_valu and (p.srcC & c.w): n = max(n, war)
    if p.is_vmem and p.stdata and len(p.stdata) >= 3:
        if (p.stdata & c.w): n = max(n, 2 if c.is_valu else 1)
    return n

def check_hazards(lines, window=24):
    ins = []; labels = {}
    for l in lines:
        if l.endswith(":"):
            labels[l[:-1]] = len(ins); continue
        if l.startswith(".") or l.startswith(";"): continue
        ins.append(Ins(l))
    probs = []
    def succs(i):
        x = ins[i]
        if x.op == "s_endpgm": return []
        if x.op == "s_branch": return [labels[x.ops[0]]]
        if x.op.startswith("s_cbranch"): return [i + 1, labels[x.ops[0]]]
        return [i + 1]
    for i, p in enumerate(ins):
        if not (p.is_valu or p.is_mfma or p.is_vmem or (p.is_salu and ("s", "m0") in p.w)): continue
        stack = [(s, 0) for s in succs(i)]
        seen = {}
        while stack:
            j, d = stack.pop()
            if j >= len(ins) or d >= 13: continue
            if j in seen and seen[j] <= d: continue
            seen[j] = d
            c = ins[j]
            n = _need(p, c)
            if n > d:
                probs.append(f"hazard: need {n} have {d}: [{p.text}] -> [{c.text}]")
            for s in succs(j):
                stack.append((s, d + c.ws))
    return probs

import subprocess, tempfile, os
_PROMO = ("v_exp_f32", "v_rcp_f32", "v_mov_b32", "v_add_u32", "v_add_f32", "v_mul_f32", "v_lshlrev_b32", "v_lshrrev_b32", "v_and_b32", "v_or_b32", "v_xor_b32", "v_max_f32", "v_sub_f32", "v_min_u32", "v_sub_u32")
def _sizes(lines):
    src = '.amdgcn_target "amdgcn-amd-amdhsa--gfx950"\n.text\n' + "\n".join(l for l in lines if not l.startswith(".p2align")) + "\n"
    with tempfile.TemporaryDirectory() as d:
        open(d + "/a.s", "w").write(src)
        subprocess.run(["clang", "-x", "assembler", "-target", "amdgcn-amd-amdhsa", "-mcpu=gfx950", "-c", d + "/a.s", "-o", d + "/a.o"], check=True)
        out = subprocess.run(["llvm-objdump", "-d", "--mcpu=gfx950", d + "/a.o"], capture_output=True, text=True).stdout
    sz = []
    for l in out.split("\n"):
        if "//" in l and l.startswith("\t"):
            sz.append(4 * len(l.split("//")[1].split(":")[1].split()))
    return sz
def align_pass(lines, use_nop=True):
    sz = _sizes(lines)
    out = []; k = 0; off = 0; run = []
    npro = nnop = 0
    for l in lines:
        if l.startswith(".p2align"):
            out.append(l); off = 0; run = []; continue
        if l.endswith(":") or l.startswith(".") or l.startswith(";"):
            out.append(l); continue
        n = sz[k]; k += 1
        if n >= 8 and off % 8 == 4:
            cand = [i for i in run if out[i].split()[0] in _PROMO and "dpp" not in out[i]]
            if cand:
                i = cand[-1]; sp = out[i].split(None, 1); out[i] = sp[0] + "_e64 " + sp[1]; off += 4; npro += 1
            elif use_nop:
                out.append("s_nop 0"); off += 4; nnop += 1
        out.append(l); off += n
        if n >= 8: run = []
        else: run.append(len(out) - 1)
    return out, npro, nnop
```

```python
import sys, struct, os
from asmlib import *

NAME = "recurrent_scan__grouped_kv_mqa__swiglu_ffn__prompt"
KNAME = NAME + "_kernel"
S, D, H, DH, F = 2048, 640, 32, 20, 1728
WS_EPOCH = 0
FL_KV = 0x1000
MB_H = 0xF00000
MB_O = 0x1000000
MB_Q = 0x1100000
WS_QG = 0x60000
WS_QGB = 0xC00000
WS_KV = 0x10000
WS_OF = 0x800000
WS_STAMP = 0xB00000
WS_HF = 0x100000
WS_SIZE = 0x1200000
KVT = 3584
OOB = 0x7f000000
POLL_CAP = 3000

OPT = dict(stamp=False, touch=True, aprio=1, gprio=2, eprio=2, mapping=3, codetouch=True, kvsleep=16, g2prio=0, kvprio=3, ldprio=3, f1hi=0, clus=1)

def f32bits(x): return struct.unpack("<I", struct.pack("<f", x))[0]
QSCALE = (DH ** -0.5) * 1.4426950408889634
NL2E = hex(f32bits(-1.4426950408889634))

sWV, sG, sJ = 3, 4, 5
sTAG = 15
sRB = 85
sIDX = 14
P_X, P_WQ, P_WK, P_WV, P_WO, P_BX, P_WG, P_WU, P_WD, P_OUT, P_DBG, P_WS = [16 + 2 * i for i in range(12)]
SRD_X, SRD_WQ, SRD_WKV, SRD_WO, SRD_WG, SRD_WU, SRD_WD, SRD_OUT, SRD_WS = 40, 44, 48, 52, 56, 60, 64, 68, 72
sE = 84
L_XN = 0
L_RING = 81920
L_WKV = 147456
L_CNT = 162816
L_H = 0
L_EXT = 32768
LDS_TOTAL = 163840
C_F1, C_A1, C_G1, C_G2, C_A2, C_BAD, C_KVD, C_QR, C_F2, C_MX, C_MID = 0, 4, 8, 12, 16, 20, 24, 28, 32, 36, 40
SRD_KVR = SRD_WKV
SRD_H = SRD_WQ

def CS(): return OPT.get('cs', 0)
def PF(): return ['sc1', 'sc0 sc1', 'sc1 nt', 'sc0 sc1 nt'][OPT.get('pf', 0)]
def SF(): return ['sc1', 'sc0 sc1'][OPT.get('sf', 0)]
def FS(): return OPT.get('fs', 7)
def MS(): return max(7, FS() + 3)
def S4(b): return f"s[{b}:{b+3}]"
def srd(a, dst, ptr, nbytes):
    a(f"s_mov_b32 s{dst}, s{ptr}")
    a(f"s_mov_b32 s{dst+1}, s{ptr+1}")
    a(f"s_mov_b32 s{dst+2}, {nbytes}")
    a(f"s_mov_b32 s{dst+3}, 0x20000")

NST = 14
def stamp(a, i):
    if not OPT["stamp"]: return
    a("s_memtime s[98:99]" if OPT["stamp"] == 1 else "s_memrealtime s[98:99]")
    a("s_waitcnt lgkmcnt(0)")
    if OPT["stamp"] == 2: a("s_mul_i32 s98, s98, 10")
    a(f"s_mov_b32 s{STR[i]}, s98")
STR = [86+i for i in range(10)] + [26, 27, 100, 101]
def loop_align(a, key, lab):
    if key in OPT:
        a(f"s_branch {lab}")
        a.lines.append(".p2align 8")
        if OPT[key]: a.lines.append(f".fill {OPT[key] // 4}, 4, 0xbf800000")
    else:
        a.lines.append(".p2align 6")
def tstamp(a, i):
    if OPT.get("tail") or i >= 12: stamp(a, i)
def stamp_head(a):
    if not OPT["stamp"]: return
    for i in range(NST): a(f"s_mov_b32 s{STR[i]}, 0")
    a("s_memrealtime s[96:97]")
    stamp(a, 12)
    if OPT["stamp"] == 2: a("s_mul_i32 s78, s78, 10")
    a(f"s_mov_b32 s{STR[0]}, s78")
def stamp_flush(a):
    if not OPT["stamp"]: return
    stamp(a, NST-1)
    a("s_memrealtime s[98:99]")
    a("s_waitcnt lgkmcnt(0)")
    a("s_mov_b32 s97, s98")
    a("s_lshl_b32 s98, s2, 3")
    a(f"s_add_u32 s98, s98, s{sWV}")
    a("s_lshl_b32 s98, s98, 6")
    a(f"s_add_u32 s98, s98, {WS_STAMP}")
    a("s_mov_b64 exec, 1")
    a("v_mov_b32 v0, 0")
    for i, r in enumerate(STR + [96, 97]): a(f"v_mov_b32 v{4+i}, s{r}")
    for q in range(4):
        a(f"buffer_store_dwordx4 v[{4+4*q}:{7+4*q}], v0, {S4(SRD_WS)}, s98 offen offset:{16*q}")
    if OPT.get("dbgout"):
        srd(a, SRD_X, P_DBG, 256)
        a("v_not_b32 v20, v18")
        a(f"buffer_atomic_umax v19, v0, {S4(SRD_X)}, 0 offen")
        a(f"buffer_atomic_umax v20, v0, {S4(SRD_X)}, 0 offen offset:4")
        a(f"buffer_atomic_umax v18, v0, {S4(SRD_X)}, 0 offen offset:8")
        a(f"s_lshl_b32 s98, s2, 3")
        a(f"s_add_u32 s98, s98, s{sWV}")
        a(f"s_cmp_lg_u32 s98, {OPT['dbgout']}")
        a("s_cbranch_scc1 k_exit")
        for i in range(1, 14):
            a(f"v_sub_u32 v{4+i}, v{4+i}, v4")
            a(f"buffer_store_dword v{4+i}, v0, {S4(SRD_X)}, 0 offen offset:{8+4*i}")

def mfma32(a, d, A, B, c=None):
    a(f"v_mfma_f32_32x32x16_bf16 {vr(d,16)}, {vr(A,4)}, {vr(B,4)}, {vr(d,16) if c is None else c}")
def mfma32x8(a, d, A, B, c=None):
    a(f"v_mfma_f32_32x32x8_bf16 {vr(d,16)}, {vr(A,2)}, {vr(B,2)}, {vr(d,16) if c is None else c}")
def mfma16(a, d, A, B, c=None):
    a(f"v_mfma_f32_16x16x32_bf16 {vr(d,4)}, {vr(A,4)}, {vr(B,4)}, {vr(d,4) if c is None else c}")

def interleave(a, main, side, per):
    k = 0
    for i, m in enumerate(main):
        m()
        for _ in range(per[i]):
            if k < len(side):
                side[k](); k += 1
    while k < len(side):
        side[k](); k += 1

def lds_signal(a, cnt, vt):
    a("s_waitcnt lgkmcnt(0)")
    a(f"v_mov_b32 v{vt}, {L_CNT + cnt}")
    a(f"v_mov_b32 v{vt+1}, 1")
    a("s_mov_b64 exec, 1")
    a(f"ds_add_u32 v{vt}, v{vt+1}")
    a("s_mov_b64 exec, -1")
def lds_wait(a, cnt, target, vt, st, sleep=1):
    L = a.newlabel("lw"); Dn = a.newlabel("lwd")
    a(f"v_mov_b32 v{vt}, {L_CNT + cnt}")
    a(f"s_mov_b32 s{st+1}, 0x40000")
    a.label(L)
    a(f"ds_read_b32 v{vt+1}, v{vt}")
    a("s_waitcnt lgkmcnt(0)")
    a(f"v_readfirstlane_b32 s{st}, v{vt+1}")
    a(f"s_cmp_ge_u32 s{st}, {target}")
    a(f"s_cbranch_scc1 {Dn}")
    if sleep: a(f"s_sleep {sleep}")
    a(f"s_sub_u32 s{st+1}, s{st+1}, 1")
    a(f"s_cmp_lg_u32 s{st+1}, 0")
    a(f"s_cbranch_scc1 {L}")
    a.label(Dn)

def flag_set(a, soff, vt):
    a(f"v_mov_b32 v{vt}, 0")
    a(f"v_mov_b32 v{vt+1}, s{sTAG}")
    a("s_waitcnt vmcnt(0)")
    a("s_mov_b64 exec, 1")
    a(f"buffer_store_dword v{vt+1}, v{vt}, {S4(SRD_WS)}, s{soff} offen sc1")
    a("s_mov_b64 exec, -1")
def flag_bcast(a, vaddr, soff, nl, vt):
    a(f"v_mov_b32 v{vt}, s{sTAG}")
    a("s_waitcnt vmcnt(0)")
    a(f"s_mov_b64 exec, {hex((1 << nl) - 1)}")
    a(f"buffer_store_dword v{vt}, v{vaddr}, {S4(SRD_WS)}, s{soff} offen {SF()}")
    a("s_mov_b64 exec, -1")
def flag_poll(a, vaddr, soff, vt, st, two=False, sleep=2, amask=None):
    L = a.newlabel("fp"); Dn = a.newlabel("fpd")
    a(f"s_mov_b32 s{st}, {POLL_CAP}")
    a.label(L)
    if two:
        a(f"buffer_load_dwordx2 {vr(vt,2)}, v{vaddr}, {S4(SRD_WS)}, s{soff} offen sc1")
        a("s_waitcnt vmcnt(0)")
        a(f"v_xor_b32 v{vt}, s{sTAG}, v{vt}")
        a(f"v_xor_b32 v{vt+1}, s{sTAG}, v{vt+1}")
        a(f"v_or_b32 v{vt}, v{vt}, v{vt+1}")
        a(f"v_cmp_ne_u32 vcc, 0, v{vt}")
    elif amask and OPT.get("apoll"):
        a(f"v_mov_b32 v{vt}, s{sTAG}")
        a(f"s_mov_b32 exec_lo, {amask[0]}")
        a(f"s_mov_b32 exec_hi, {amask[1]}")
        a(f"v_mov_b32 v{vt}, 0")
        a(f"buffer_atomic_or v{vt}, v{vaddr}, {S4(SRD_WS)}, s{soff} offen sc0 sc1")
        a("s_mov_b64 exec, -1")
        a("s_waitcnt vmcnt(0)")
        a(f"v_cmp_ne_u32 vcc, s{sTAG}, v{vt}")
    else:
        a(f"buffer_load_dword v{vt}, v{vaddr}, {S4(SRD_WS)}, s{soff} offen {PF()}")
        a("s_waitcnt vmcnt(0)")
        a(f"v_cmp_ne_u32 vcc, s{sTAG}, v{vt}")
    a(f"s_cbranch_vccz {Dn}")
    a(f"s_sleep {sleep}")
    a(f"s_sub_u32 s{st}, s{st}, 1")
    a(f"s_cmp_lg_u32 s{st}, 0")
    a(f"s_cbranch_scc1 {L}")
    a.label(Dn)

def flag_poll_pipe(a, vaddr, soff, regs, st, gap):
    n = len(regs)
    L = a.newlabel("pp"); Dn = a.newlabel("ppd")
    a(f"s_mov_b32 s{st}, {POLL_CAP}")
    a("s_waitcnt vmcnt(0)")
    for r in regs[:-1]:
        a(f"buffer_load_dword v{r}, v{vaddr}, {S4(SRD_WS)}, s{soff} offen sc1")
        a(f"s_sleep {gap}")
    a.label(L)
    for i in range(n):
        a(f"buffer_load_dword v{regs[(i-1) % n]}, v{vaddr}, {S4(SRD_WS)}, s{soff} offen sc1")
        a(f"s_waitcnt vmcnt({n-1})")
        a(f"v_cmp_ne_u32 vcc, s{sTAG}, v{regs[i]}")
        a(f"s_cbranch_vccz {Dn}")
        a(f"s_sleep {gap}")
    a(f"s_sub_u32 s{st}, s{st}, 1")
    a(f"s_cmp_lg_u32 s{st}, 0")
    a(f"s_cbranch_scc1 {L}")
    a.label(Dn)

def xn_read_addrs(a, XA, tmp):
    a(f"v_lshrrev_b32 v{tmp}, 5, v0")
    for m in range(4):
        a(f"v_or_b32 v{XA+m}, {2*m}, v{tmp}")
        a(f"v_xor_b32 v{XA+m}, v{XA+m}, v0")
        a(f"v_lshlrev_b32 v{XA+m}, 4, v{XA+m}")

NSQ = 12
OPT_SCHED_A1 = {7: 2, 8: 2, 9: 3}; OPT_SCHED_A2 = {}
OPT_SCHED_G1 = {9: 4}; OPT_SCHED_G2 = {i: 1 for i in range(10)}
QREG = 144
def qslot(n): return n * 1024
vQO = 15

def emit_prologue(a):
    a("s_cmp_ge_u32 s2, 256")
    a("s_cbranch_scc1 k_exit")
    if OPT["stamp"]: a("s_memtime s[78:79]" if OPT["stamp"] == 1 else "s_memrealtime s[78:79]")
    a("s_load_dwordx16 s[16:31], s[0:1], 0")
    a("s_load_dwordx8 s[32:39], s[0:1], 64")
    a("v_lshrrev_b32 v1, 6, v0")
    a("v_and_b32 v0, 63, v0")
    a(f"v_readfirstlane_b32 s{sWV}, v1")
    if OPT["mapping"] == 3:
        a("s_bfe_u32 s6, s2, 0x20001")
        a("s_lshl_b32 s6, s6, 3")
        a(f"s_bfe_u32 s{sIDX}, s2, 0x30003")
        a(f"s_add_u32 s{sG}, s6, s{sIDX}")
        a("s_and_b32 s6, s2, 1")
        a("s_lshl_b32 s6, s6, 2")
        a("s_lshr_b32 s7, s2, 6")
        a(f"s_add_u32 s{sJ}, s6, s7")
    elif OPT["mapping"] == 1:
        a("s_and_b32 s6, s2, 7")
        a("s_lshl_b32 s6, s6, 2")
        a("s_bfe_u32 s7, s2, 0x20003")
        a(f"s_add_u32 s{sG}, s6, s7")
        a(f"s_lshr_b32 s{sJ}, s2, 5")
    elif OPT["mapping"] == 4:
        a("s_bfe_u32 s6, s2, 0x10002")
        a("s_lshl_b32 s6, s6, 4")
        a("s_bfe_u32 s7, s2, 0x40003")
        a(f"s_add_u32 s{sG}, s6, s7")
        a("s_and_b32 s6, s2, 3")
        a("s_lshl_b32 s6, s6, 1")
        a("s_lshr_b32 s7, s2, 7")
        a(f"s_add_u32 s{sJ}, s6, s7")
    elif OPT["mapping"] == 5:
        a("s_and_b32 s6, s2, 3")
        a("s_lshl_b32 s6, s6, 3")
        a("s_bfe_u32 s7, s2, 0x30003")
        a(f"s_add_u32 s{sG}, s6, s7")
        a("s_and_b32 s6, s2, 4")
        a("s_lshr_b32 s7, s2, 6")
        a(f"s_add_u32 s{sJ}, s6, s7")
    else:
        raise ValueError
    a("v_lshrrev_b32 v10, 3, v0")
    a("v_and_b32 v11, 7, v0")
    a("v_mul_u32_u24 v12, 1280, v10")
    a("v_lshl_add_u32 v13, v11, 4, v12")
    if OPT.get("rot", 1):
        a(f"s_add_u32 s{sRB}, s{sWV}, s{sJ}")
        a(f"s_and_b32 s{sRB}, s{sRB}, 7")
    else:
        a(f"s_mov_b32 s{sRB}, s{sWV}")
    a(f"s_lshl_b32 s6, s{sG}, 3")
    a(f"s_add_u32 s6, s6, s{sRB}")
    a(f"s_mul_i32 s6, s6, {8*1280}")
    if OPT["codetouch"]:
        a(f"s_cmp_lg_u32 s{sWV}, 1")
        a("s_cbranch_scc1 ct_skip")
        a("s_getpc_b64 s[76:77]")
        a("s_and_b32 s76, s76, 0xffffff00")
        a("s_lshr_b32 s7, s2, 3")
        a("s_lshl_b32 s7, s7, 10")
        a("v_min_u32 v8, 7, v0")
        a("v_lshl_add_u32 v8, v8, 7, s7")
        a(f"v_min_u32 v8, code_end-{KNAME}-4, v8")
        a("global_load_dword v59, v8, s[76:77]")
        a.label("ct_skip")
    a("s_waitcnt lgkmcnt(0)")
    srd(a, SRD_X, P_X, S * D * 2)
    if OPT.get("t0"):
        R0 = OPT["t0"]
        a(f"s_cmp_lg_u32 s{sWV}, {OPT.get('t0w', 0)}")
        a("s_cbranch_scc1 t0_skip")
        srd(a, SRD_WG, P_WG, D * F * 2)
        srd(a, SRD_WU, P_WU, D * F * 2)
        srd(a, SRD_WQ, P_WQ, D * D * 2)
        touch_lin(a, SRD_WG, R0 * 3456 // 256, -(-R0 * 27 // 256), None, 60)
        touch_lin(a, SRD_WU, R0 * 3456 // 256, -(-R0 * 27 // 256), None, 61)
        touch_lin(a, SRD_WQ, R0 * 1280 // 256, -(-R0 * 10 // 256), None, 62)
        a.label("t0_skip")
    XR, DD = 16, 64
    vP, vSum, vSq = 2, 4, 6
    a(f"buffer_load_ushort v{vP}, v12, {S4(SRD_X)}, s6 offen")
    for i in range(10):
        a(f"buffer_load_dwordx4 {vr(XR+4*i,4)}, v13, {S4(SRD_X)}, s6 offen offset:{i*128}")
    a(f"s_load_dword s{sE}, s[{P_WS}:{P_WS+1}], {WS_EPOCH}")
    stamp_head(a)
    srd(a, SRD_WQ, P_WQ, D * D * 2)
    srd(a, SRD_WS, P_WS, WS_SIZE)
    srd(a, SRD_WG, P_WG, D * F * 2)
    srd(a, SRD_WU, P_WU, D * F * 2)
    srd(a, SRD_WD, P_WD, F * D * 2)
    srd(a, SRD_WO, P_WO, D * D * 2)
    srd(a, SRD_OUT, P_OUT, S * D * 2)
    a(f"s_and_b32 s6, s{sJ}, 1")
    a("s_cmp_eq_u32 s6, 0")
    a(f"s_cselect_b32 s{SRD_WKV}, s{P_WK}, s{P_WV}")
    a(f"s_cselect_b32 s{SRD_WKV+1}, s{P_WK+1}, s{P_WV+1}")
    a(f"s_mov_b32 s{SRD_WKV+2}, {D*DH*2}")
    a(f"s_mov_b32 s{SRD_WKV+3}, 0x20000")
    a(f"v_mov_b32 v{vSum}, 0\nv_mov_b32 v{vSum+1}, 0\nv_mov_b32 v{vSq}, 0\nv_mov_b32 v{vSq+1}, 0")
    a("s_mov_b32 s12, 0xffff0000")
    a("v_lshlrev_b32 v14, 4, v0")
    a(f"s_and_b32 s9, s{sWV}, 3")
    a("s_lshl_b32 s10, s9, 14")
    a(f"s_add_u32 s10, s10, {L_RING}")
    a(f"s_cmp_ge_u32 s{sWV}, 4")
    a("s_cbranch_scc1 pro_g")

    def ln(role, side=None, sched1=None, sched2=None, pre_bar=None):
        if role == "A":
            side = []
            if OPT["touch"]:
                side.append(lambda: touch_lin(a, SRD_WG, 8640, 17, 9, 56))
                side.append(lambda: touch_lin(a, SRD_WU, 8640, 17, 9, 57))
                side.append(lambda: touch_lin(a, SRD_WQ, 3200, 7, 9, 58))
            sched1 = {OPT.get("tpos", 9): 3}; sched2 = {}
        issued = [0]
        def do_side(n):
            for _ in range(n):
                if issued[0] < len(side):
                    side[issued[0]](); issued[0] += 1
        do_side(sched1.get(-1, 0))
        a(f"s_waitcnt vmcnt({10 + issued[0]})")
        stamp(a, 1)
        a(f"v_lshlrev_b32 v{vP}, 16, v{vP}")
        for i in range(10):
            a(f"s_waitcnt vmcnt({9-i + issued[0]})")
            for e in range(4):
                d = DD + 8 * i + 2 * e
                a(f"v_lshlrev_b32 v{d}, 16, v{XR+4*i+e}")
                a(f"v_and_b32 v{d+1}, s12, v{XR+4*i+e}")
            for e in range(4):
                d = DD + 8 * i + 2 * e
                a(f"v_pk_add_f32 {vr(d,2)}, {vr(d,2)}, {vr(vP,2)} op_sel_hi:[1,0] neg_lo:[0,1] neg_hi:[0,1]")
            for e in range(4):
                d = DD + 8 * i + 2 * e
                a(f"v_pk_add_f32 {vr(vSum,2)}, {vr(vSum,2)}, {vr(d,2)}")
                a(f"v_pk_fma_f32 {vr(vSq,2)}, {vr(d,2)}, {vr(d,2)}, {vr(vSq,2)}")
            do_side(sched1.get(i, 0))
        stamp(a, 2)
        a(f"v_add_f32 v{vSum}, v{vSum}, v{vSum+1}")
        a(f"v_add_f32 v{vSq}, v{vSq}, v{vSq+1}")
        for ctl in ("quad_perm:[1,0,3,2]", "quad_perm:[2,3,0,1]", "row_half_mirror"):
            a("s_nop 1")
            a(f"v_add_f32_dpp v{vSum}, v{vSum}, v{vSum} {ctl} row_mask:0xf bank_mask:0xf")
            a(f"v_add_f32_dpp v{vSq}, v{vSq}, v{vSq} {ctl} row_mask:0xf bank_mask:0xf")
        inv = f32bits(1.0 / D)
        a(f"v_mul_f32 v{vSum}, {hex(inv)}, v{vSum}")
        a(f"v_mul_f32 v{vSq}, {hex(inv)}, v{vSq}")
        a(f"v_fma_f32 v{vSq}, -v{vSum}, v{vSum}, v{vSq}")
        a(f"v_max_f32 v{vSq}, 0, v{vSq}")
        a(f"v_add_f32 v{vSq}, {hex(f32bits(1e-5))}, v{vSq}")
        a(f"v_rsq_f32 v{vSq}, v{vSq}")
        a(f"s_and_b32 s7, s{sRB}, 3")
        a("s_lshl_b32 s7, s7, 3")
        a(f"v_mul_f32 v{vSum}, v{vSum}, v{vSq}")
        a("v_add_u32 v8, s7, v10")
        a("v_and_b32 v9, 1, v11")
        a("v_lshl_add_u32 v8, v9, 5, v8")
        a("v_xor_b32 v8, v8, v11")
        a("v_lshlrev_b32 v8, 4, v8")
        a("v_lshrrev_b32 v9, 1, v11")
        a("v_lshl_add_u32 v8, v9, 11, v8")
        a(f"s_lshr_b32 s7, s{sRB}, 2")
        a("s_lshl_b32 s7, s7, 10")
        a("v_add_u32 v8, s7, v8")
        a("v_add_u32 v9, 0x10000, v8")
        for i in range(10):
            for e in range(4):
                d = DD + 8 * i + 2 * e
                a(f"v_pk_fma_f32 {vr(d,2)}, {vr(d,2)}, {vr(vSq,2)}, {vr(vSum,2)} op_sel_hi:[1,0,0] neg_lo:[0,0,1] neg_hi:[0,0,1]")
            for e in range(4):
                d = DD + 8 * i + 2 * e
                a(f"v_cvt_pk_bf16_f32 v{XR+4*i+e}, v{d}, v{d+1}")
            off = i * 8192
            a(f"ds_write_b128 v{8 if off < 65536 else 9}, {vr(XR+4*i,4)} offset:{L_XN + off % 65536}")
            do_side(sched2.get(i, 0))
        if role == "A":
            a("v_lshlrev_b32 v8, 2, v0")
            a(f"v_add_u32 v8, {L_CNT}, v8")
            a("v_mov_b32 v9, 0")
            a("ds_write_b32 v8, v9")
            assert issued[0] == len(side)
        if pre_bar: pre_bar()
        a("s_waitcnt lgkmcnt(0)")
        a(f"s_add_u32 s{sE}, s{sE}, 1")
        a(f"s_mul_i32 s{sTAG}, s{sE}, 0x9e3779b1")
        a(f"s_or_b32 s{sTAG}, s{sTAG}, 1")
        stamp(a, 3)
        a("s_barrier")
        if OPT.get("x_idle1"): a(f"s_sleep {OPT['x_idle1']}")
        if role == "G": stamp(a, 4)
        do_side(99)
    ln("A")
    return ln

def emit_kv(a):
    vW0, vW1, vXE, vXO, vXE2, vXO2 = 1, 2, 3, 4, 5, 6
    ACC = 112
    FB = 16
    def wdma(first, n):
        for i in range(n):
            a(f"s_mov_b32 m0, {L_WKV + i*1024}")
            a(f"s_mov_b32 s7, {first + i*1024}")
            a(f"buffer_load_dwordx4 v14, {S4(SRD_WKV)}, s7 offen lds")
    wdma(0, 15)
    a("v_lshrrev_b32 v10, 4, v0")
    a("v_bfe_u32 v11, v0, 2, 2")
    a("v_lshl_add_u32 v11, v10, 3, v11")
    a("v_mul_u32_u24 v11, 40, v11")
    a("v_and_b32 v12, 3, v0")
    a("v_lshl_add_u32 v12, v12, 3, v11")
    a(f"v_add_u32 v{vW0}, {L_WKV}, v12")
    a(f"v_add_u32 v{vW1}, {L_WKV + 32}, v11")
    a(f"s_lshr_b32 s9, s{sJ}, 1")
    a("s_and_b32 s10, s9, 1")
    a("s_lshr_b32 s11, s9, 1")
    a("s_lshl_b32 s12, s10, 4")
    a("v_and_b32 v13, 15, v0")
    a("v_add_u32 v13, s12, v13")
    a("v_and_b32 v15, 1, v10")
    a("v_lshl_add_u32 v15, v15, 5, v13")
    a("v_xor_b32 v15, v15, v10")
    a("v_lshrrev_b32 v7, 1, v10")
    a("v_lshlrev_b32 v7, 11, v7")
    a("s_lshl_b32 s12, s11, 10")
    a("v_add_u32 v7, s12, v7")
    a(f"v_lshl_add_u32 v{vXE}, v15, 4, v7")
    a("v_xor_b32 v15, 4, v15")
    a(f"v_lshl_add_u32 v{vXO}, v15, 4, v7")
    a(f"v_add_u32 v{vXE2}, 0x10000, v{vXE}")
    a(f"v_add_u32 v{vXO2}, 0x10000, v{vXO}")
    def reads(b):
        for t in range(2):
            s = 2 * b + t
            fb = FB + (b & 1) * 24 + t * 12
            wo = (s if s < 12 else s - 12) * 1280
            a(f"ds_read_b64_tr_b16 {vr(fb,2)}, v{vW0} offset:{wo}")
            a(f"ds_read_b64_tr_b16 {vr(fb+2,2)}, v{vW0} offset:{wo+160}")
            a(f"ds_read_b64_tr_b16 {vr(fb+4,2)}, v{vW1} offset:{wo}")
            a(f"ds_read_b64_tr_b16 {vr(fb+6,2)}, v{vW1} offset:{wo+160}")
            off = L_XN + s * 4096
            reg = (vXO if s & 1 else vXE) if off < 65536 else (vXO2 if s & 1 else vXE2)
            a(f"ds_read_b128 {vr(fb+8,4)}, v{reg} offset:{off % 65536}")
    a(f"s_and_b32 s6, s{sJ}, 1")
    a("s_cmp_eq_u32 s6, 1")
    a("s_waitcnt vmcnt(0)")
    a("s_cbranch_scc1 kv_v")
    for kv in (0, 1):
        if kv: a.label("kv_v")
        reads(0)
        for b in range(10):
            if b == 5:
                a("s_waitcnt lgkmcnt(0)")
                wdma(12 * 1280, 10)
            elif b < 9:
                reads(b + 1)
                a("s_waitcnt lgkmcnt(10)")
            else:
                a("s_waitcnt lgkmcnt(0)")
            for t in range(2):
                fb = FB + (b & 1) * 24 + t * 12
                c = "0" if (b == 0 and t == 0) else None
                for ct in range(2):
                    if kv == 0: mfma16(a, ACC + 4 * ct, fb + 4 * ct, fb + 8, c)
                    else:       mfma16(a, ACC + 4 * ct, fb + 8, fb + 4 * ct, c)
            if b == 5:
                a("s_waitcnt vmcnt(0)")
                reads(6)
        a(f"s_lshl_b32 s12, s{sG}, 1")
        a("s_add_u32 s12, s12, s11")
        a(f"s_mul_i32 s12, s12, {KVT}")
        a(f"s_add_u32 s12, s12, {WS_KV}")
        if kv == 0:
            a("v_lshrrev_b32 v2, 1, v10")
            a("v_lshl_add_u32 v2, v2, 5, v13")
            a("v_lshlrev_b32 v2, 4, v2")
            a("v_and_b32 v3, 1, v10")
            a("v_lshl_add_u32 v2, v3, 3, v2")
            a("v_lshl_add_u32 v3, v10, 5, v13")
            a("v_lshlrev_b32 v3, 3, v3")
            a("v_add_u32 v3, 3072, v3")
            a(f"v_mov_b32 v4, {OOB}")
            a("v_cmp_lt_u32 vcc, 1, v10")
            a("s_nop 1")
            a("v_cndmask_b32 v3, v3, v4, vcc")
            for i in range(8): a(f"v_mul_f32 v{ACC+i}, {hex(f32bits(QSCALE))}, v{ACC+i}")
            a(f"v_cvt_pk_bf16_f32 v6, v{ACC}, v{ACC+1}")
            a(f"v_cvt_pk_bf16_f32 v7, v{ACC+2}, v{ACC+3}")
            a(f"v_cvt_pk_bf16_f32 v8, v{ACC+4}, v{ACC+5}")
            a(f"v_cvt_pk_bf16_f32 v9, v{ACC+6}, v{ACC+7}")
            a("v_cmp_eq_u32 vcc, 1, v10")
            a("v_mov_b32 v4, 0x3f803f80")
            a("v_mov_b32 v5, 0x00003f80")
            a("v_cndmask_b32 v8, v8, v4, vcc")
            a("v_cndmask_b32 v9, v9, v5, vcc")
            a("s_branch kv_store")
        else:
            a("v_and_b32 v1, 15, v0")
            a("v_and_b32 v4, 1, v10")
            a("v_lshl_add_u32 v2, v4, 5, v1")
            a("v_lshlrev_b32 v2, 4, v2")
            a("v_lshrrev_b32 v4, 1, v10")
            a("v_lshl_add_u32 v2, v4, 3, v2")
            a("s_lshl_b32 s13, s10, 10")
            a("s_add_u32 s13, s13, 1024")
            a("v_add_u32 v2, s13, v2")
            a("v_add_u32 v3, 256, v2")
            a(f"v_cvt_pk_bf16_f32 v6, v{ACC}, v{ACC+1}")
            a(f"v_cvt_pk_bf16_f32 v7, v{ACC+2}, v{ACC+3}")
            a(f"v_cvt_pk_bf16_f32 v8, v{ACC+4}, v{ACC+5}")
            a(f"v_cvt_pk_bf16_f32 v9, v{ACC+6}, v{ACC+7}")
            a("v_cmp_eq_u32 vcc, 4, v1")
            a("v_mov_b32 v4, 0x3f803f80")
            a("v_mov_b32 v5, 0")
            a("v_cndmask_b32 v4, v5, v4, vcc")
            a("v_cmp_lt_u32 vcc, 3, v1")
            a("s_nop 1")
            a("v_cndmask_b32 v8, v8, v4, vcc")
            a("v_cndmask_b32 v9, v9, v4, vcc")
    a.label("kv_store")
    a(f"buffer_store_dwordx2 v[6:7], v2, {S4(SRD_WS)}, s12 offen sc1")
    a(f"buffer_store_dwordx2 v[8:9], v3, {S4(SRD_WS)}, s12 offen sc1")
    lds_signal(a, C_F1, 10)
    lds_signal(a, C_KVD, 10)
    a(f"s_lshl_b32 s12, s{sG}, 3")
    a(f"s_add_u32 s12, s12, s{sJ}")
    a("s_lshl_b32 s12, s12, 2")
    a(f"s_add_u32 s12, s12, {FL_KV}")
    flag_set(a, 12, 10)

def touch_lin(a, srd_, per_cu, nl, part, dst):
    a(f"v_min_u32 v8, {nl-1}, v0")
    a("v_lshlrev_b32 v8, 7, v8")
    a(f"s_mul_i32 s7, s2, {per_cu}")
    if part is not None:
        a(f"s_mul_i32 s8, s{part}, {nl*128}")
        a("s_add_u32 s7, s7, s8")
    a(f"buffer_load_dword v{dst}, v8, {S4(srd_)}, s7 offen")

def emit_late_touch(a):
    if not OPT["touch"]: return
    a(f"s_and_b32 s6, s{sWV}, 1")
    a("s_waitcnt vmcnt(0)")
    a(f"s_sleep {OPT.get('ltsleep', 32)}")
    touch_lin(a, SRD_WD, 8640, 34, 6, 57)
    touch_lin(a, SRD_WO, 3200, 13, 6, 58)

def emit_role_a(a):
    NQ = 8
    OA, QF, SB, KB = 128, 80, 48, 16
    v16, v8 = 2, 3
    a(f"s_cmp_ge_u32 s{sWV}, 2")
    a("s_cbranch_scc1 a_touch")
    a(f"s_cmp_eq_u32 s{sWV}, 1")
    a("s_cbranch_scc1 a_join")
    a(f"s_setprio {OPT['kvprio']}")
    emit_kv(a)
    a("s_setprio 0")
    a("s_branch a_join")
    a.label("a_touch")
    emit_late_touch(a)
    a.label("a_join")
    stamp(a, 4)
    a(f"s_mov_b32 s{SRD_KVR}, s{P_WS}")
    a(f"s_mov_b32 s{SRD_KVR+1}, s{P_WS+1}")
    a(f"s_mul_i32 s{SRD_KVR+2}, s{sWV}, {16*KVT}")
    a(f"s_add_u32 s{SRD_KVR+2}, s{SRD_KVR+2}, {WS_KV + 16*KVT}")
    a(f"v_lshlrev_b32 v{v16}, 4, v0")
    a(f"v_lshlrev_b32 v{v8}, 3, v0")
    a("s_waitcnt vmcnt(0)")
    for i in range(NQ * 16): a(f"v_mov_b32 v{OA+i}, 0")
    for i in range(16): a(f"v_mov_b32 v{SB+16+i}, 0")
    for i in range(16): a(f"v_mov_b32 v{KB+16+i}, 0")
    a("v_and_b32 v6, 31, v0")
    a("v_lshlrev_b32 v6, 4, v6")
    a("v_lshrrev_b32 v7, 5, v0")
    a("v_lshl_add_u32 v7, v7, 9, v6")
    a(f"v_mov_b32 v8, {OOB}")
    a("v_cmp_gt_u32 vcc, 32, v0")
    a(f"s_lshl_b32 s8, s{sJ}, 2")
    a(f"s_add_u32 s8, s8, s{sWV}")
    a("s_mul_i32 s6, s8, 20")
    a("s_add_u32 s9, s6, 19")
    a("s_lshr_b32 s6, s6, 7")
    a("s_lshr_b32 s9, s9, 7")
    a("v_cndmask_b32 v6, v8, v6, vcc")
    a("v_mov_b32 v12, s6")
    a("v_mov_b32 v13, s9")
    a("v_cndmask_b32 v12, v12, v13, vcc")
    a(f"v_lshlrev_b32 v12, {FS()}, v12")
    a(f"s_lshl_b32 s13, s{sG}, 5")
    a("s_add_u32 s13, s13, s8")
    a(f"s_lshl_b32 s13, s13, {MS()}")
    a(f"s_add_u32 s13, s13, {MB_Q}")
    a("s_and_b32 s9, s8, 1")
    a("s_mul_i32 s8, s8, 5")
    a("s_lshr_b32 s8, s8, 1")
    a("s_lshl_b32 s8, s8, 9")
    a(f"s_mul_i32 s6, s{sG}, 81920")
    a("s_add_u32 s8, s8, s6")
    a(f"s_add_u32 s8, s8, {WS_QGB}")
    a("s_lshl_b32 s10, s9, 3")
    a("s_add_u32 s10, s10, s8")
    a("s_mul_i32 s11, s9, 504")
    a("s_add_u32 s11, s11, s8")
    a("s_add_u32 s11, s11, 8")
    for d in range(4):
        a(f"s_add_u32 s8, s{sWV}, {d}")
        a("s_and_b32 s8, s8, 3")
        a("s_mul_i32 s8, s8, 3072")
        a(f"s_add_u32 s8, s8, {L_WKV}")
        a(f"v_add_u32 v{8+d}, s8, v{v16}")
    lds_wait(a, C_KVD, 1, 14, 8, sleep=8)
    lds_wait(a, C_MID, 1, 14, 8, sleep=8)
    a("s_setprio 3")
    tstamp(a, 1)
    a(f"s_lshl_b32 s6, s{sWV}, 8")
    a(f"s_add_u32 s6, s6, {FL_KV}")
    a("v_lshlrev_b32 v4, 2, v0")
    flag_poll(a, 4, 6, 5, 7, sleep=OPT["kvsleep"])
    tstamp(a, 2)
    a(f"s_mul_i32 s7, s{sWV}, {16*KVT}")
    a(f"s_add_u32 s7, s7, {WS_KV}")
    def kvload(b):
        kb = KB + 16 * b
        a(f"buffer_load_dwordx4 {vr(kb,4)}, v{v16}, {S4(SRD_KVR)}, s7 offen sc1")
        a(f"buffer_load_dwordx2 {vr(kb+12,2)}, v{v8}, {S4(SRD_KVR)}, s7 offen offset:3072 sc1")
        a(f"buffer_load_dwordx4 {vr(kb+4,4)}, v{v16}, {S4(SRD_KVR)}, s7 offen offset:1024 sc1")
        a(f"buffer_load_dwordx4 {vr(kb+8,4)}, v{v16}, {S4(SRD_KVR)}, s7 offen offset:2048 sc1")
        a(f"s_add_u32 s7, s7, {KVT}")
    kvload(0)
    lds_wait(a, C_F1, OPT.get("f1wait", 2), 14, 8, sleep=4)
    tstamp(a, 3)
    if OPT.get("qdelay", 0): a(f"s_sleep {OPT['qdelay']}")
    if OPT.get("pp", 0): flag_poll_pipe(a, 12, 13, [4, 5, 13], 8, OPT.get("ppgap", 3))
    else: flag_poll(a, 12, 13, 5, 8, sleep=OPT.get("qsleep", 8), amask=(1, 1))
    stamp(a, 5)
    for rt in range(2):
        if rt:
            a("s_add_u32 s10, s10, 40960")
            a("s_add_u32 s11, s11, 40960")
        a(f"buffer_load_dwordx2 {vr(QF+24+4*rt,2)}, v7, {S4(SRD_WS)}, s10 offen sc1")
        a(f"buffer_load_dwordx2 {vr(QF+24+4*rt+2,2)}, v7, {S4(SRD_WS)}, s11 offen sc1")
        a(f"buffer_load_dwordx2 {vr(QF+44+2*rt,2)}, v6, {S4(SRD_WS)}, s10 offen offset:1024 sc1")
    a("s_waitcnt vmcnt(0)")
    if OPT.get("shift"):
        sh = f32bits(-float(OPT["shift"])) >> 16
        a("v_cmp_lt_u32 vcc, 31, v0")
        a(f"v_mov_b32 v4, {hex(sh)}")
        a("s_nop 0")
        a(f"v_cndmask_b32 v{QF+44}, v{QF+44}, v4, vcc")
        a(f"v_cndmask_b32 v{QF+46}, v{QF+46}, v4, vcc")
    a(f"ds_write_b128 v8, {vr(QF+24,4)}")
    a(f"ds_write_b128 v8, {vr(QF+28,4)} offset:1024")
    a(f"ds_write_b128 v8, {vr(QF+44,4)} offset:2048")
    lds_signal(a, C_QR, 14)
    lds_wait(a, C_QR, 4, 14, 8, sleep=CS())
    for d in range(1, 4):
        a(f"ds_read_b128 {vr(QF+8*(d-1),4)}, v{8+d}")
        a(f"ds_read_b128 {vr(QF+32+4*(d-1),4)}, v{8+d} offset:2048")
        a(f"ds_read_b128 {vr(QF+8*(d-1)+4,4)}, v{8+d} offset:1024")
    a(f"s_setprio {OPT['aprio']}")
    a(f"s_mul_i32 s9, s{sWV}, {6*3072}")
    a(f"v_add_u32 v15, s9, v{v16}")
    a("s_waitcnt lgkmcnt(7)")
    def qk0(n):
        b = (n // NQ) & 1; qt = n % NQ
        if OPT.get("qswap"): mfma32x8(a, SB + 16 * (n & 1), KB + 16 * b + 12, QF + 32 + 2 * qt, "0")
        else: mfma32(a, SB + 16 * (n & 1), KB + 16 * b, QF + 4 * qt, "0")
    def qk1(n):
        b = (n // NQ) & 1; qt = n % NQ
        if OPT.get("qswap"): mfma32(a, SB + 16 * (n & 1), KB + 16 * b, QF + 4 * qt)
        else: mfma32x8(a, SB + 16 * (n & 1), KB + 16 * b + 12, QF + 32 + 2 * qt)
    def pv(n, t):
        b = (n // NQ) & 1; qt = n % NQ
        mfma32(a, OA + 16 * qt, KB + 16 * b + 4 + 4 * t, SB + 16 * (n & 1) + 4 * t)
    sPASS, sPUB, sTGT = 78, 79, 80
    a(f"s_mov_b32 s{sPASS}, 0")
    a(f"s_mov_b32 s{sPUB}, 0")
    a(f"s_mov_b32 s{sTGT}, 4")
    a("s_mov_b32 s83, 0x07060302")
    if OPT.get("x_idle2"): a(f"s_sleep {OPT['x_idle2']}")
    a.label("att_start")
    qk0(0); qk1(0)
    a("s_nop 7"); a("s_nop 2")
    a("s_waitcnt lgkmcnt(0)")
    stamp(a, 6)
    a("s_mov_b32 s8, 8")
    loop_align(a, "pa", "att_loop")
    a.label("att_loop")
    E64 = {0: (), 1: (6, 7), 2: tuple(range(16))}[OPT.get("e64", 0)]
    def slot(n, last=False):
        s = SB + 16 * (n & 1)
        def e(i): a(f"v_exp_f32{'_e64' if i in E64 else ''} v{s+i}, v{s+i}")
        def c(i):
            if OPT.get("perm"): a(f"v_perm_b32 v{s+i}, v{s+2*i+1}, v{s+2*i}, s83")
            else: a(f"v_cvt_pk_bf16_f32 v{s+i}, v{s+2*i}, v{s+2*i+1}")
        e(0); e(1)
        pv((n - 1) % (2 * NQ), 1)
        if n % NQ == 0 and not last:
            if OPT["ldprio"]: a(f"s_setprio {OPT['ldprio']}")
            kvload(((n // NQ) + 1) & 1)
            if OPT["ldprio"]: a(f"s_setprio {OPT['aprio']}")
        V = [("e",2),("e",3),("c",0),("c",1),("e",4),("e",5),("e",6),("e",7),("c",2),("c",3),("e",8),("e",9),("e",10),("e",11),("c",4),("c",5),("e",12),("e",13),("e",14),("e",15),("c",6),("c",7)]
        p1, p2, p3 = {0: (5, 11, 17), 1: (4, 7, 12), 2: (3, 7, 12), 3: (4, 8, 12)}[OPT.get("clus", 0)]
        fin = last and n == 2 * NQ - 1
        td = n - NQ - 1
        for i, (k, r) in enumerate(V):
            if i == p1 and not fin:
                if (n + 1) % NQ == 0: a("s_waitcnt vmcnt(0)")
                qk0(n + 1)
            if i == p2 and not fin: qk1(n + 1)
            if i == p3: pv(n, 0)
            if last and 0 <= td < 6 and i in (14, 17, 20):
                q4 = (i - 14) // 3
                a(f"ds_write_b128 v15, {vr(OA+16*td+4*q4,4)} offset:{td*3072+q4*1024}")
            (e if k == "e" else c)(r)
    for n in range(NQ): slot(n)
    a("s_cmp_eq_u32 s8, 1")
    a("s_cbranch_scc1 att_last")
    for n in range(NQ, 2 * NQ): slot(n)
    a("s_sub_u32 s8, s8, 1")
    a("s_branch att_loop")
    a.label("att_last")
    lds_wait(a, C_F2, 4, 4, 8)
    for n in range(NQ, 2 * NQ): slot(n, True)
    a("s_setprio 3")
    a("s_nop 0")
    pv(2 * NQ - 1, 1)
    stamp(a, 7)
    lds_signal(a, C_A1, 6)
    stamp(a, 8)
    a(f"s_mul_i32 s10, s{sG}, 40")
    a(f"s_mul_i32 s11, s{sJ}, 5")
    a("s_add_u32 s10, s10, s11")
    a("s_add_u32 s11, s10, 4")
    a(f"s_add_u32 s10, s10, s{sWV}")
    a("s_lshl_b32 s10, s10, 11")
    a(f"s_add_u32 s10, s10, {WS_OF}")
    a("s_lshl_b32 s11, s11, 11")
    a(f"s_add_u32 s11, s11, {WS_OF}")
    a(f"s_lshl_b32 s12, s{sWV}, 9")
    a(f"v_add_u32 v10, s12, v{v16}")
    a(f"v_mov_b32 v11, {OOB}")
    a("v_cmp_gt_u32 vcc, 32, v0")
    for d in range(1, 4):
        a(f"s_sub_u32 s9, s{sWV}, {d}")
        a("s_and_b32 s9, s9, 3")
        a(f"s_mul_i32 s9, s9, {6*3072}")
        a(f"v_add_u32 v{11+d}, s9, v{v16}")
    a("v_cndmask_b32 v10, v11, v10, vcc")
    a(f"s_cmp_lg_u32 s{sPUB}, 0")
    a("s_cbranch_scc1 att_done")
    a(f"s_mov_b32 s81, {hex(f32bits(2.0**-80))}")
    a(f"s_mov_b32 s82, {hex(f32bits(2.0**60))}")
    a("s_mov_b64 s[76:77], 0")
    lds_wait(a, C_A1, f"s{sTGT}", 4, 8, sleep=CS())
    stamp(a, 9)
    R = OA
    for rt in range(2):
        for d in range(1, 4):
            for q4 in range(3):
                a(f"ds_read_b128 {vr(R+rt*36+(d-1)*12+q4*4,4)}, v{11+d} offset:{(2*(d-1)+rt)*3072+q4*1024}")
    for rt in range(2):
        a(f"s_waitcnt lgkmcnt({9 if rt == 0 else 0})")
        b = R + rt * 36; o = OA + 96 + 16 * rt
        for i in (8, 0, 2, 4, 6, 10):
            a(f"v_pk_add_f32 {vr(o+i,2)}, {vr(o+i,2)}, {vr(b+i,2)}")
            a(f"v_pk_add_f32 {vr(b+12+i,2)}, {vr(b+12+i,2)}, {vr(b+24+i,2)}")
        for i in (8, 0, 2, 4, 6, 10):
            a(f"v_pk_add_f32 {vr(o+i,2)}, {vr(o+i,2)}, {vr(b+12+i,2)}")
        a(f"v_mov_b32 v8, v{o+8}")
        a(f"v_mov_b32 v9, v{o+8}")
        a("s_nop 1")
        a("v_permlane32_swap_b32 v8, v9")
        a("s_nop 1")
        a("v_rcp_f32 v8, v9")
        a("v_cmp_nle_f32 vcc, s81, v9")
        a("s_or_b64 s[76:77], s[76:77], vcc")
        a("v_cmp_nge_f32 vcc, s82, v9")
        a("s_or_b64 s[76:77], s[76:77], vcc")
        for i in range(0, 12, 2):
            a(f"v_pk_mul_f32 {vr(o+i,2)}, {vr(o+i,2)}, v[8:9] op_sel_hi:[1,0]")
        for i in range(4):
            a(f"v_cvt_pk_bf16_f32 v{b+i}, v{o+2*i}, v{o+2*i+1}")
        a(f"buffer_store_dwordx4 {vr(b,4)}, v{v16}, {S4(SRD_WS)}, s10 offen offset:{rt*1024} sc1")
        for i in range(2):
            a(f"v_cvt_pk_bf16_f32 v{R+72+2*rt+i}, v{o+8+2*i}, v{o+8+2*i+1}")
    a(f"buffer_store_dwordx4 {vr(R+72,4)}, v10, {S4(SRD_WS)}, s11 offen sc1")
    a(f"s_lshl_b32 s12, s{sG}, {MS()+5}")
    a(f"s_and_b32 s13, s{sJ}, 3")
    a(f"s_lshl_b32 s13, s13, {MS()}")
    a("s_add_u32 s12, s12, s13")
    a(f"s_and_b32 s13, s{sJ}, 4")
    a(f"s_add_u32 s13, s13, s{sWV}")
    a(f"s_lshl_b32 s13, s13, {FS()}")
    a("s_add_u32 s12, s12, s13")
    a(f"s_add_u32 s12, s12, {MB_O}")
    a(f"v_lshlrev_b32 v8, {MS()+2}, v0")
    stamp(a, 10)
    a(f"s_cmp_lg_u32 s{sPASS}, 0")
    a("s_cbranch_scc1 att_pub")
    a("s_cmp_eq_u64 s[76:77], 0")
    a("s_cbranch_scc1 att_pub")
    lds_signal(a, C_BAD, 4)
    a("s_branch att_nopub")
    a.label("att_pub")
    flag_bcast(a, 8, 12, 8, 9)
    a(f"s_mov_b32 s{sPUB}, 1")
    a.label("att_nopub")
    stamp(a, 11)
    a(f"s_cmp_lg_u32 s{sPASS}, 0")
    a("s_cbranch_scc1 att_done")
    lds_signal(a, C_A2, 4)
    lds_wait(a, C_A2, 4, 4, 8)
    a(f"v_mov_b32 v4, {L_CNT + C_BAD}")
    a("ds_read_b32 v5, v4")
    a("s_waitcnt lgkmcnt(0)")
    a("v_readfirstlane_b32 s8, v5")
    a("s_cmp_eq_u32 s8, 0")
    a("s_cbranch_scc1 att_done")
    MX = KB + 16
    a("s_waitcnt vmcnt(0)")
    for t in range(8): a(f"v_mov_b32 v{MX+t}, 0xff800000")
    if OPT.get("shift"):
        a("v_cmp_gt_u32 vcc, 32, v0")
        a("s_nop 1")
        for t in range(8): a(f"v_cndmask_b32 v{QF+32+2*t}, 0, v{QF+32+2*t}, vcc")
    a(f"s_mul_i32 s7, s{sWV}, {16*KVT}")
    a(f"s_add_u32 s7, s7, {WS_KV}")
    a("s_mov_b32 s8, 16")
    a.label("mx_loop")
    kvload(0)
    a("s_waitcnt vmcnt(0)")
    for t in range(8):
        qk0(t); qk1(t)
        a("s_nop 11")
        sb = SB + 16 * (t & 1)
        for i in range(8):
            a(f"v_max3_f32 v{MX+t}, v{MX+t}, v{sb+2*i}, v{sb+2*i+1}")
    a("s_sub_u32 s8, s8, 1")
    a("s_cmp_lg_u32 s8, 0")
    a("s_cbranch_scc1 mx_loop")
    a("v_lshlrev_b32 v4, 2, v0")
    for d in range(4):
        a(f"s_add_u32 s9, s{sWV}, {d+1}")
        a("s_and_b32 s9, s9, 3")
        a("s_lshl_b32 s9, s9, 9")
        a(f"v_add_u32 v{8+d}, s9, v4")
    a(f"s_lshl_b32 s9, s{sWV}, 11")
    for t in range(8):
        a(f"v_mov_b32 v5, v{MX+t}")
        a("s_nop 1")
        a(f"v_permlane32_swap_b32 v5, v{MX+t}")
        a("s_nop 1")
        a(f"v_max_f32 v{MX+t}, v5, v{MX+t}")
        a(f"v_add_u32 v6, s9, v{8+(t>>1)}")
        a(f"ds_write_b32 v6, v{MX+t} offset:{(t&1)*256}")
    lds_signal(a, C_MX, 4)
    lds_wait(a, C_MX, 4, 4, 8)
    a("s_mov_b32 s9, 0xffff0000")
    a("v_cmp_lt_u32 vcc, 31, v0")
    for t in range(8):
        for w in range(4):
            a(f"ds_read_b32 v{SB+w}, v{8+(t>>1)} offset:{w*2048+(t&1)*256}")
        a("s_waitcnt lgkmcnt(0)")
        a(f"v_max3_f32 v4, v{SB}, v{SB+1}, v{SB+2}")
        a(f"v_max_f32 v4, v4, v{SB+3}")
        a("v_sub_f32 v4, 0, v4")
        a("v_and_b32 v5, s9, v4")
        a("v_sub_f32 v4, v4, v5")
        a("v_and_b32 v6, s9, v4")
        a("v_sub_f32 v4, v4, v6")
        a("v_lshrrev_b32 v4, 16, v4")
        a("v_lshrrev_b32 v5, 16, v5")
        a("v_or_b32 v5, v5, v6")
        a(f"v_cndmask_b32 v{QF+32+2*t}, v{QF+32+2*t}, v5, vcc")
        a(f"v_cndmask_b32 v{QF+32+2*t+1}, v{QF+32+2*t+1}, v4, vcc")
    lds_signal(a, C_MX, 4)
    lds_wait(a, C_MX, 8, 4, 8)
    for i in range(NQ * 16): a(f"v_mov_b32 v{OA+i}, 0")
    for i in range(16): a(f"v_mov_b32 v{SB+16+i}, 0")
    for i in range(16): a(f"v_mov_b32 v{KB+16+i}, 0")
    a(f"s_mul_i32 s7, s{sWV}, {16*KVT}")
    a(f"s_add_u32 s7, s7, {WS_KV}")
    kvload(0)
    a(f"s_mov_b32 s{sPASS}, 1")
    a(f"s_mov_b32 s{sTGT}, 8")
    a("s_waitcnt vmcnt(0)")
    a("s_branch att_start")
    a.label("att_done")
    a(f"s_or_b32 s12, s2, s{sWV}")
    a("s_cmp_lg_u32 s12, 0")
    a("s_cbranch_scc1 k_end")
    a(f"v_mov_b32 v8, {WS_EPOCH}")
    a(f"v_mov_b32 v9, s{sE}")
    a("s_mov_b64 exec, 1")
    a(f"buffer_store_dword v9, v8, {S4(SRD_WS)}, 0 offen sc1")
    a("s_mov_b64 exec, -1")
    a("s_branch k_end")

def emit_role_g(a, ln):
    a.label("pro_g")
    XA, TA = 56, 60
    vGO, vUO = 1, 15
    FB, ACC = 64, 128
    a("s_lshl_b32 s6, s9, 3")
    a(f"s_add_u32 s6, s6, s{sJ}")
    a("s_cmp_ge_u32 s6, 27")
    a("s_cselect_b32 s78, 1280, 0")
    a("s_cselect_b32 s79, 0, 3456")
    a("s_add_u32 s78, s78, s79")
    a("s_lshl_b32 s79, s78, 3")
    a("s_lshl_b32 s80, s78, 4")
    a("s_lshl_b32 s7, s6, 7")
    a("s_mov_b32 s8, 0")
    a("s_cmp_lt_u32 s6, 27")
    a("s_cbranch_scc1 pro_gf")
    for k in range(3):
        a(f"s_mov_b32 s{SRD_WG+k}, s{SRD_WQ+k}")
        a(f"s_mov_b32 s{SRD_WU+k}, s{SRD_WQ+k}")
    a("s_sub_u32 s7, s6, 27")
    a("s_lshl_b32 s7, s7, 8")
    a("s_mov_b32 s8, 128")
    a.label("pro_gf")
    if OPT.get("m0once", 0):
        a("s_sub_u32 s79, s79, 1024")
        a(f"s_sub_u32 s{SRD_WU}, s{SRD_WU}, 2048")
        a(f"s_subb_u32 s{SRD_WU+1}, s{SRD_WU+1}, 0")
        a(f"s_add_u32 s{SRD_WU+2}, s{SRD_WU+2}, 2048")
    a("v_lshrrev_b32 v8, 3, v0")
    a("v_mul_lo_u32 v9, v8, s78")
    a("v_bfe_u32 v12, v0, 1, 2")
    a("v_bfe_u32 v8, v0, 4, 1")
    a("v_xor_b32 v12, v12, v8")
    a("v_and_b32 v8, 1, v0")
    a("v_lshl_add_u32 v9, v8, 4, v9")
    a("v_add_u32 v9, s7, v9")
    a(f"v_lshl_add_u32 v{vGO}, v12, 5, v9")
    a("v_xor_b32 v12, 2, v12")
    a("v_add_u32 v9, s8, v9")
    a(f"v_lshl_add_u32 v{vUO}, v12, 5, v9")
    a("s_mov_b32 s13, 0")
    def f1slot(stage): return (stage & 3) * 4096
    def f1_dma_ops(stage):
        ops = []
        for gu in range(2):
            for i in range(2):
                def op(gu=gu, i=i):
                    if OPT.get("m0once", 0):
                        if gu == 0 and i == 0:
                            a(f"s_add_u32 m0, s10, {f1slot(stage)}")
                            a("s_add_u32 s11, s13, s79")
                        a(f"buffer_load_dwordx4 v{vUO if gu else vGO}, {S4(SRD_WU if gu else SRD_WG)}, {'s11' if i else 's13'} offen offset:{gu*2048+i*1024} lds")
                    else:
                        a(f"s_add_u32 m0, s10, {f1slot(stage) + gu*2048 + i*1024}")
                        if i: a("s_add_u32 s11, s13, s79")
                        else: a("s_nop 0")
                        a(f"buffer_load_dwordx4 v{vUO if gu else vGO}, {S4(SRD_WU if gu else SRD_WG)}, {'s11' if i else 's13'} offen lds")
                    if gu == 1 and i == 1: a("s_add_u32 s13, s13, s80")
                ops.append(op)
        return ops
    xn_read_addrs(a, XA, 8)
    a("v_lshrrev_b32 v12, 5, v0")
    a("v_bfe_u32 v13, v0, 2, 2")
    a("v_lshl_add_u32 v12, v12, 3, v13")
    a("v_lshlrev_b32 v12, 7, v12")
    a("v_bfe_u32 v13, v0, 1, 1")
    a("v_lshl_add_u32 v12, v13, 11, v12")
    a("v_and_b32 v14, 1, v0")
    a("v_lshl_add_u32 v12, v14, 4, v12")
    a("v_bfe_u32 v14, v0, 4, 1")
    a("v_lshl_add_u32 v12, v14, 3, v12")
    a("v_add_u32 v12, s10, v12")
    a("v_bfe_u32 v14, v0, 3, 1")
    a("v_lshl_or_b32 v14, v13, 1, v14")
    for t in range(4):
        a(f"v_xor_b32 v8, {t}, v14")
        a(f"v_lshl_add_u32 v{TA+t}, v8, 5, v12")
    for i in range(16, 128): a(f"v_mov_b32 v{ACC+i}, 0")
    side = []
    for st in range(4): side += f1_dma_ops(st)
    e0 = OPT.get("early", 4)
    def pre_bar():
        for i in range(16): a(f"v_mov_b32 v{ACC+i}, 0")
    ln("G", side, {-1: e0, 9: OPT.get("mid", 2)}, {i: OPT.get("late", 1) for i in range(10)}, pre_bar)
    a(f"s_setprio {OPT['eprio']}")
    def f1_read_ops(u):
        fb = FB + (u & 1) * 24
        so = f1slot(u)
        ops = [lambda: a(f"ds_read_b128 {vr(fb+16,4)}, v{XA+(u&3)} offset:{L_XN+u*2048}"),
               lambda: a(f"ds_read_b128 {vr(fb+20,4)}, v{XA+(u&3)} offset:{L_XN+u*2048+1024}")]
        for t in range(4):
            ops.append(lambda t=t: a(f"ds_read_b64_tr_b16 {vr(fb+4*t,2)}, v{TA+t} offset:{so}"))
            ops.append(lambda t=t: a(f"ds_read_b64_tr_b16 {vr(fb+4*t+2,2)}, v{TA+t} offset:{so+512}"))
        return ops
    DEEP = OPT.get("deep", 1)
    a("s_waitcnt vmcnt(12)")
    for op in f1_read_ops(0): op()
    if DEEP:
        a("s_waitcnt lgkmcnt(0)")
        for op in f1_dma_ops(4): op()
    a("s_mov_b32 s8, 10")
    stamp(a, 5)
    a(f"s_setprio {OPT['gprio']}")
    loop_align(a, "p1", "f1_loop")
    a.label("f1_loop")
    for u in range(4):
        a(f"s_waitcnt vmcnt({12 if DEEP else 8}) lgkmcnt(0)")
        fb = FB + (u & 1) * 24
        mm = [(lambda t=t, rt=rt: mfma32(a, ACC + (t * 2 + rt) * 16, fb + 4 * t, fb + 16 + 4 * rt)) for t in range(4) for rt in range(2)]
        if DEEP:
            r = f1_read_ops(u + 1)
            side = r[2:] + r[:2] + [lambda: a("s_waitcnt lgkmcnt(2)")] + f1_dma_ops(u + 1)
            interleave(a, mm, side, {1: [4, 4, 2, 0, 2, 1, 1, 1], 2: [4, 4, 2, 2, 1, 1, 1, 0], 3: [5, 5, 0, 2, 1, 1, 1, 0]}[DEEP])
        else:
            interleave(a, mm, f1_read_ops(u + 1) + f1_dma_ops(u), [3, 3, 2, 2, 1, 1, 1, 1])
    for m in range(4): a(f"v_add_u32 v{XA+m}, 8192, v{XA+m}")
    a(f"s_cmp_lg_u32 s8, {OPT.get('mid_it', 3)}")
    a("s_cbranch_scc1 f1_nomid")
    a(f"v_mov_b32 v12, {L_CNT + C_MID}")
    a("v_mov_b32 v13, 1")
    a("ds_write_b32 v12, v13")
    a.label("f1_nomid")
    if OPT.get("x_thr"):
        a("s_cmp_ge_u32 s6, 27")
        a("s_cbranch_scc1 thr_skip")
        a(f"s_sleep {OPT['x_thr']}")
        a.label("thr_skip")
    a("s_sub_u32 s8, s8, 1")
    a("s_cmp_lg_u32 s8, 0")
    a("s_cbranch_scc1 f1_loop")
    a(f"s_setprio {OPT['eprio']}")
    stamp(a, 6)
    WOFF = 2
    TB = 6
    vBX, vBY = 9, 10
    HP = 24
    lds_signal(a, C_F1, 12)
    a("s_cmp_lt_u32 s6, 27")
    a("s_cbranch_scc1 f1_epi")
    a("s_setprio 3")
    a("v_lshlrev_b32 v12, 4, v0")
    a("s_sub_u32 s8, s6, 27")
    a("s_lshl_b32 s7, s8, 13")
    a(f"s_mul_i32 s8, s{sG}, 81920")
    a("s_add_u32 s7, s7, s8")
    a(f"s_add_u32 s7, s7, {WS_QGB}")
    a("s_add_u32 s8, s7, 4096")
    a("s_add_u32 s82, s7, 40960")
    a("s_add_u32 s83, s8, 40960")
    for t in range(4):
        for rt in range(2):
            ac = ACC + (t * 2 + rt) * 16
            o = 16 + ((t * 2 + rt) & 3) * 8
            for up in range(2):
                for hi in range(2):
                    r = ac + 8 * hi + 4 * up
                    a(f"v_cvt_pk_bf16_f32 v{o+4*up+2*hi}, v{r}, v{r+1}")
                    a(f"v_cvt_pk_bf16_f32 v{o+4*up+2*hi+1}, v{r+2}, v{r+3}")
                so = [[7, 8], [82, 83]][rt][up]
                a(f"buffer_store_dwordx4 {vr(o+4*up,4)}, v12, {S4(SRD_WS)}, s{so} offen offset:{t*1024} sc1")
    a(f"s_lshl_b32 s7, s{sG}, {MS()+5}")
    a("s_sub_u32 s8, s6, 27")
    a("s_mul_i32 s82, s8, 32")
    a("s_mul_i32 s82, s82, 0x3334")
    a("s_lshr_b32 s82, s82, 16")
    a(f"s_lshl_b32 s8, s8, {FS()}")
    a("s_add_u32 s7, s7, s8")
    a(f"s_add_u32 s7, s7, {MB_Q}")
    a("v_add_u32 v12, s82, v0")
    a("v_min_u32 v12, 31, v12")
    a(f"v_lshlrev_b32 v12, {MS()}, v12")
    flag_bcast(a, 12, 7, 8, 13)
    a(f"s_setprio {OPT['eprio']}")
    a("s_branch f1_epi_skip")
    a.label("f1_epi")
    T = 16
    idx = [(0, 4), (1, 5), (2, 6), (3, 7), (8, 12), (9, 13), (10, 14), (11, 15)]
    a("s_nop 3")
    for t in range(4):
        for rt in range(2):
            ac = ACC + (t * 2 + rt) * 16
            hp = HP + (t * 2 + rt) * 4
            for e, (gi, ui) in enumerate(idx): a(f"v_mul_f32 v{T+e}, {NL2E}, v{ac+gi}")
            for e in range(8): a(f"v_exp_f32 v{T+e}, v{T+e}")
            for e in range(8): a(f"v_add_f32 v{T+e}, 1.0, v{T+e}")
            for e in range(8): a(f"v_rcp_f32 v{T+e}, v{T+e}")
            for e, (gi, ui) in enumerate(idx): a(f"v_mul_f32 v{ac+gi}, v{ac+gi}, v{ac+ui}")
            for e, (gi, ui) in enumerate(idx): a(f"v_mul_f32 v{T+e}, v{T+e}, v{ac+gi}")
            for e in range(4): a(f"v_cvt_pk_bf16_f32 v{hp+e}, v{T+2*e}, v{T+2*e+1}")
    a.label("f1_epi_skip")
    stamp(a, 7)
    FB2, BB, ACC2, WF = 16, 40, 80, 160
    TC, TD = 250, 253
    a(f"s_and_b32 s76, s{sJ}, 1")
    a(f"s_lshr_b32 s77, s{sJ}, 1")
    a("s_mul_i32 s77, s77, 320")
    a("s_lshl_b32 s8, s76, 7")
    a("s_add_u32 s77, s77, s8")
    for i in range(4):
        a(f"v_add_u32 v12, {i*64}, v0")
        a("v_mul_u32_u24 v13, 0xaab, v12")
        a("v_lshrrev_b32 v13, 15, v13")
        a("v_mul_u32_u24 v14, 12, v13")
        a("v_sub_u32 v14, v12, v14")
        a("v_mul_u32_u24 v13, 1280, v13")
        a("v_lshl_add_u32 v13, v14, 4, v13")
        a(f"v_add_u32 v{WOFF+i}, s77, v13")
    a("v_cmp_lt_u32 vcc, 47, v0")
    a(f"v_mov_b32 v12, {OOB}")
    a("s_mul_i32 s78, s9, 28")
    a(f"v_cndmask_b32 v{WOFF+3}, v{WOFF+3}, v12, vcc")
    a(f"s_mul_i32 s11, s78, {16*1280}")
    a(f"s_add_u32 s7, s11, {28*16*1280}")
    a(f"s_min_u32 s{SRD_WD+2}, s7, {F*D*2}")
    a("s_lshl_b32 s84, s9, 14")
    a("s_lshl_b32 s79, s76, 6")
    a("s_add_u32 s80, s79, 64")
    a("s_cmp_eq_u32 s76, 0")
    a("s_cselect_b32 s81, 128, 0")
    a("v_bfe_u32 v12, v0, 2, 2")
    a("v_mul_u32_u24 v12, 192, v12")
    a("v_bfe_u32 v13, v0, 4, 1")
    a("v_bfe_u32 v14, v0, 1, 1")
    a("v_lshl_add_u32 v13, v13, 1, v14")
    a("v_add_u32 v13, s9, v13")
    a("v_and_b32 v13, 3, v13")
    a("v_lshl_add_u32 v12, v13, 4, v12")
    a("v_and_b32 v13, 1, v0")
    a("v_lshl_add_u32 v12, v13, 3, v12")
    a("v_add_u32 v11, s10, v12")
    a("v_lshrrev_b32 v13, 5, v0")
    a(f"v_mul_u32_u24 v14, {8*192}, v13")
    for t, sT in enumerate((79, 80, 81)):
        a(f"v_add3_u32 v{TB+t}, v11, v14, s{sT}")
    a("v_add_u32 v11, s84, v12")
    a(f"v_mul_u32_u24 v14, {4*192}, v13")
    a("v_lshlrev_b32 v15, 13, v13")
    for t, sT in enumerate((79, 80, 81)):
        a(f"v_add3_u32 v{TC+t}, v11, v14, s{sT}")
        a(f"v_add3_u32 v{TD+t}, v11, v15, s{sT}")
    a("v_lshlrev_b32 v11, 4, v0")
    a("s_lshl_b32 s7, s76, 10")
    a(f"v_add_u32 v{vBX}, s7, v11")
    a("s_xor_b32 s7, s7, 1024")
    a(f"v_add_u32 v{vBY}, s7, v11")
    for i in range(80): a(f"v_mov_b32 v{ACC2+i}, 0")
    a("s_cmp_eq_u32 s9, 3")
    a("s_cselect_b32 s7, 5, 6")
    a("v_min_u32 v15, s7, v0")
    a(f"v_lshlrev_b32 v15, {FS()}, v15")
    a(f"s_lshl_b32 s83, s{sG}, 3")
    a(f"s_add_u32 s83, s83, s{sJ}")
    a("s_lshl_b32 s83, s83, 2")
    a("s_add_u32 s83, s83, s9")
    a(f"s_lshl_b32 s83, s83, {MS()}")
    a(f"s_add_u32 s83, s83, {MB_H}")
    a(f"s_mul_i32 s12, s{sG}, {108*2048}")
    a(f"s_add_u32 s12, s12, {WS_HF}")
    a("s_lshl_b32 s8, s78, 11")
    a("s_add_u32 s82, s12, s8")
    a("s_lshl_b32 s8, s6, 13")
    a("s_add_u32 s12, s12, s8")
    a(f"s_mov_b32 s{SRD_H}, s{P_WS}")
    a(f"s_mov_b32 s{SRD_H+1}, s{P_WS+1}")
    a("s_cmp_eq_u32 s9, 3")
    a("s_cselect_b32 s8, 24, 28")
    a("s_lshl_b32 s8, s8, 11")
    a(f"s_add_u32 s{SRD_H+2}, s82, s8")
    a("s_mul_i32 s8, s6, 37")
    a("s_lshr_b32 s8, s8, 8")
    a("s_mul_i32 s7, s8, 7")
    a("s_sub_u32 s7, s6, s7")
    a(f"s_lshl_b32 s8, s8, {MS()}")
    a(f"s_lshl_b32 s7, s7, {FS()}")
    a(f"s_lshl_b32 s13, s{sG}, {MS()+5}")
    a("s_add_u32 s13, s13, s8")
    a("s_add_u32 s13, s13, s7")
    a(f"s_add_u32 s13, s13, {MB_H}")
    a(f"v_lshlrev_b32 v1, {MS()+2}, v0")
    a(f"v_mov_b32 v14, s{sTAG}")
    def wd_dma_ops(slot):
        ops = []
        for i in range(3):
            def op(i=i):
                a(f"s_add_u32 m0, s10, {slot*4096 + i*1024}")
                a("s_nop 0")
                a(f"buffer_load_dwordx4 v{WOFF+i}, {S4(SRD_WD)}, s11 offen lds")
                if i == 2: a(f"s_add_u32 s11, s11, {16*1280}")
            ops.append(op)
        return ops
    def wo_stage(sl, sbase):
        for s in range(4):
            a(f"s_mul_i32 s7, s9, {80*1280}")
            a(f"s_add_u32 s7, s7, {(sl*320 + s*20)*1280}")
            for i in range(4):
                a(f"s_add_u32 m0, s{sbase}, {s*4096 + i*1024}")
                a("s_nop 0")
                a(f"buffer_load_dwordx4 v{WOFF+i}, {S4(SRD_WO)}, s7 offen lds")
    def wo_reads():
        for s5 in range(5):
            for t in range(3):
                f = WF + s5 * 12 + 4 * t
                if s5 < 4:
                    a(f"ds_read_b64_tr_b16 {vr(f,2)}, v{TC+t} offset:{s5*4096}")
                    a(f"ds_read_b64_tr_b16 {vr(f+2,2)}, v{TC+t} offset:{s5*4096+8*192}")
                else:
                    a(f"ds_read_b64_tr_b16 {vr(f,2)}, v{TD+t} offset:{16*192}")
                    a(f"ds_read_b64_tr_b16 {vr(f+2,2)}, v{TD+t} offset:{4096+16*192}")
    a("s_setprio 0")
    lds_wait(a, C_F1, 5, 12, 7, sleep=4)
    a("s_waitcnt vmcnt(0)")
    UG = OPT.get("ungate", 0)
    if UG == 2: lds_wait(a, C_QR, 4, 12, 7, sleep=4)
    if UG:
        for n in range(4):
            for op in wd_dma_ops(n): op()
        wo_stage(0, 84)
        a("s_waitcnt vmcnt(0)")
        wo_reads()
    if UG != 2: lds_wait(a, C_QR, 4, 12, 7, sleep=4)
    if OPT.get("hdelay"): a(f"s_sleep {OPT['hdelay']}")
    a("s_cmp_ge_u32 s6, 27")
    a("s_cbranch_scc1 h_st_skip")
    for t in range(4):
        for rt in range(2):
            a(f"buffer_store_dwordx4 {vr(HP+(t*2+rt)*4,4)}, v11, {S4(SRD_WS)}, s12 offen offset:{(t&1)*2048+rt*1024} sc1")
        if t == 1: a("s_add_u32 s12, s12, 4096")
    a.label("h_st_skip")
    if not UG:
        for n in range(4):
            for op in wd_dma_ops(n): op()
    a("s_cmp_ge_u32 s6, 27")
    a("s_cbranch_scc1 h_fl_skip")
    a(f"s_waitcnt vmcnt({0 if UG else 12})")
    a("s_mov_b64 exec, 0xff")
    a(f"buffer_store_dword v14, v1, {S4(SRD_WS)}, s13 offen sc1")
    a("s_mov_b64 exec, -1")
    a.label("h_fl_skip")
    if not UG:
        wo_stage(0, 84)
        a("s_waitcnt vmcnt(0)")
        wo_reads()
    flag_poll(a, 15, 83, 13, 8, sleep=OPT.get("hsleep", 8))
    stamp(a, 8)
    def h_ops(slot):
        return [lambda: a(f"buffer_load_dwordx4 {vr(BB+slot*8,4)}, v{vBX}, {S4(SRD_H)}, s82 offen sc1"),
                lambda: (a(f"buffer_load_dwordx4 {vr(BB+slot*8+4,4)}, v{vBY}, {S4(SRD_H)}, s82 offen sc1"), a("s_add_u32 s82, s82, 2048"))]
    for n in range(4):
        for op in h_ops(n): op()
    def f2_read_ops(u):
        fb = FB2 + (u & 1) * 12
        slot = u % 4
        ops = []
        for t in range(3):
            ops.append(lambda t=t: a(f"ds_read_b64_tr_b16 {vr(fb+4*t,2)}, v{TB+t} offset:{slot*4096}"))
            ops.append(lambda t=t: a(f"ds_read_b64_tr_b16 {vr(fb+4*t+2,2)}, v{TB+t} offset:{slot*4096+4*192}"))
        return ops
    def mm5(fb, bx, by, acc, c=None):
        return [lambda: mfma32(a, acc + 0, fb + 0, bx, c), lambda: mfma32(a, acc + 16, fb + 0, by, c),
                lambda: mfma32(a, acc + 32, fb + 4, bx, c), lambda: mfma32(a, acc + 48, fb + 4, by, c),
                lambda: mfma32(a, acc + 64, fb + 8, bx, c)]
    for op in f2_read_ops(0): op()
    a("s_sub_u32 s7, s10, s84")
    a("s_waitcnt lgkmcnt(6)")
    for t in range(6): a(f"v_add_u32 v{TC+t}, s7, v{TC+t}")
    DEC = OPT.get("dec", 1)
    if DEC: lds_signal(a, C_F2, 12)
    a("s_cmp_eq_u32 s9, 3")
    a("s_cselect_b32 s8, 6, 7")
    if OPT.get("f2it"): a(f"s_mov_b32 s8, {OPT['f2it']}")
    a("s_waitcnt vmcnt(0)")
    a(f"s_setprio {OPT['g2prio']}")
    loop_align(a, "p2", "f2_loop")
    a.label("f2_loop")
    for u in range(4):
        a("s_waitcnt vmcnt(10) lgkmcnt(0)")
        mm = mm5(FB2 + (u & 1) * 12, BB + u * 8, BB + u * 8 + 4, ACC2)
        interleave(a, mm, f2_read_ops(u + 1) + wd_dma_ops(u), [3, 3, 1, 1, 1])
        for op in h_ops(u): op()
    a("s_sub_u32 s8, s8, 1")
    a("s_cmp_lg_u32 s8, 0")
    a("s_cbranch_scc1 f2_loop")
    a(f"s_setprio {OPT['eprio']}")
    a("s_waitcnt vmcnt(0) lgkmcnt(0)")
    stamp(a, 9)
    if not DEC: wo_stage(1, 10)
    a("v_and_b32 v1, 31, v0")
    a("v_mul_u32_u24 v1, 1280, v1")
    a("v_lshrrev_b32 v12, 5, v0")
    a("v_lshl_add_u32 v1, v12, 3, v1")
    a("s_lshl_b32 s7, s9, 4")
    a("s_add_u32 s7, s7, s77")
    a(f"s_mul_i32 s8, s{sG}, {64*1280}")
    a("s_add_u32 s7, s7, s8")
    a(f"s_mul_i32 s8, s76, {32*1280}")
    a(f"s_sub_u32 s11, {32*1280}, s8")
    a("s_add_u32 s8, s8, s7")
    a("s_add_u32 s11, s11, s7")
    a("s_add_u32 s83, s79, s8")
    a("s_add_u32 s85, s79, s11")
    a("s_add_u32 s6, s80, s8")
    a("s_add_u32 s12, s80, s11")
    a("s_add_u32 s13, s81, s8")
    US = [83, 85, 6, 12, 13]
    XPR = [236, 238, 2, 4, 6]
    def xloads():
        for u in range(5):
            a(f"buffer_load_dwordx2 {vr(XPR[u],2)}, v1, {S4(SRD_X)}, s{US[u]} offen")
    if not DEC: xloads()
    RA = 12
    def blk_off(u, d): return (u * 3 + (d - 1)) * 1024
    def red_write(acc, base, cnt, vt):
        a(f"v_lshlrev_b32 v{RA}, 4, v0")
        for d in range(1, 4):
            a(f"s_sub_u32 s7, s9, {d}")
            a("s_and_b32 s7, s7, 3")
            a("s_lshl_b32 s7, s7, 14")
            if base: a(f"s_add_u32 s7, s7, {base}")
            a(f"v_add_u32 v{RA+d}, s7, v{RA}")
        a(f"v_add_u32 v{RA}, s{10 if base else 84}, v{RA}")
        for u in range(5):
            for d in range(1, 4):
                a(f"ds_write_b128 v{RA}, {vr(acc+16*u+4*d,4)} offset:{blk_off(u,d)}")
        lds_signal(a, cnt, vt)
    def red_read(RR, cnt):
        lds_wait(a, cnt, 4, RR, 7, sleep=CS())
        for u in range(5):
            for d in range(1, 4):
                a(f"ds_read_b128 {vr(RR+u*12+(d-1)*4,4)}, v{RA+d} offset:{blk_off(u,d)}")
    def red_sum(acc, RR, u):
        r = RR + u * 12
        for i in (0, 2):
            a(f"v_pk_add_f32 {vr(r+i,2)}, {vr(r+i,2)}, {vr(r+4+i,2)}")
            a(f"v_pk_add_f32 {vr(r+8+i,2)}, {vr(r+8+i,2)}, {vr(acc+16*u+i,2)}")
        for i in (0, 2):
            a(f"v_pk_add_f32 {vr(r+i,2)}, {vr(r+i,2)}, {vr(r+8+i,2)}")
    RR = 16
    red_write(ACC2, L_RING if DEC else 0, C_G1, RR)
    red_read(RR, C_G1)
    lds_signal(a, C_G1 if DEC else C_F2, 76)
    if DEC:
        lds_wait(a, C_G1, 8, 76, 7, sleep=0)
        wo_stage(1, 10)
        xloads()
    GG = 240
    for u in range(5):
        red_sum(ACC2, RR, u)
        r = RR + u * 12
        for i in range(4): a(f"v_mul_f32 v{r+4+i}, {NL2E}, v{r+i}")
        for i in range(4): a(f"v_exp_f32 v{r+4+i}, v{r+4+i}")
        for i in range(4): a(f"v_add_f32 v{r+4+i}, 1.0, v{r+4+i}")
        for i in range(4): a(f"v_rcp_f32 v{r+4+i}, v{r+4+i}")
        a("s_nop 0")
        for i in range(4): a(f"v_mul_f32 v{r+i}, v{r+i}, v{r+4+i}")
        a(f"v_cvt_pk_bf16_f32 v{GG+2*u}, v{r}, v{r+1}")
        a(f"v_cvt_pk_bf16_f32 v{GG+2*u+1}, v{r+2}, v{r+3}")
    stamp(a, 10)
    ACC3 = 80
    def ob(k): return 16 + k * 8 if k < 8 else 220 + (k - 8) * 8
    a("v_min_u32 v12, 7, v0")
    a(f"v_lshlrev_b32 v12, {FS()}, v12")
    a(f"s_lshl_b32 s7, s{sG}, 3")
    a(f"s_add_u32 s7, s7, s{sJ}")
    a("s_lshl_b32 s7, s7, 2")
    a("s_add_u32 s7, s7, s9")
    a(f"s_lshl_b32 s7, s7, {MS()}")
    a(f"s_add_u32 s7, s7, {MB_O}")
    a(f"s_mul_i32 s82, s{sG}, {40*2048}")
    a(f"s_mul_i32 s8, s9, {5*2048}")
    a("s_add_u32 s82, s82, s8")
    a(f"s_add_u32 s82, s82, {WS_OF}")
    def wo_read_step(s5):
        for t in range(3):
            f = WF + s5 * 12 + 4 * t
            if s5 < 4:
                a(f"ds_read_b64_tr_b16 {vr(f,2)}, v{TC+t} offset:{s5*4096}")
                a(f"ds_read_b64_tr_b16 {vr(f+2,2)}, v{TC+t} offset:{s5*4096+8*192}")
            else:
                a(f"ds_read_b64_tr_b16 {vr(f,2)}, v{TD+t} offset:{16*192}")
                a(f"ds_read_b64_tr_b16 {vr(f+2,2)}, v{TD+t} offset:{4096+16*192}")
    stamp(a, 11)
    def oloads(sl):
        for k in range(5 * sl, 5 * sl + 5):
            a(f"buffer_load_dwordx4 {vr(ob(k),4)}, v{vBX if k % 5 < 4 else 14}, {S4(SRD_WS)}, s82 offen sc1")
            a(f"buffer_load_dwordx4 {vr(ob(k)+4,4)}, v{vBY if k % 5 < 4 else 15}, {S4(SRD_WS)}, s82 offen sc1")
            a("s_add_u32 s82, s82, 2048")
        a(f"s_add_u32 s82, s82, {15*2048}")
    def omm(sl, younger):
        for k in range(5):
            a(f"s_waitcnt vmcnt({8-2*k+younger})" + (f" lgkmcnt({min(15, 24-6*k)})" if sl else ""))
            kk = 5 * sl + k
            if k == 4:
                L1 = a.newlabel("f5o"); L2 = a.newlabel("f5d")
                a("s_cmp_lg_u32 s76, 0")
                a(f"s_cbranch_scc1 {L1}")
                a(f"v_swap_b32 v{ob(kk)+2}, v{ob(kk)+4}")
                a(f"v_swap_b32 v{ob(kk)+3}, v{ob(kk)+5}")
                a(f"s_branch {L2}")
                a.label(L1)
                a(f"v_swap_b32 v{ob(kk)}, v{ob(kk)+6}")
                a(f"v_swap_b32 v{ob(kk)+1}, v{ob(kk)+7}")
                a.label(L2)
                a("s_nop 1")
            for m in mm5(WF + k * 12, ob(kk), ob(kk) + 4, ACC3, "0" if kk == 0 else None): m()
            if sl == 0: wo_read_step(k)
    a("v_and_b32 v14, 31, v0")
    a("v_lshlrev_b32 v14, 4, v14")
    a("v_lshrrev_b32 v15, 5, v0")
    a("v_lshl_add_u32 v14, v15, 10, v14")
    a("s_lshl_b32 s8, s76, 9")
    a("v_add_u32 v14, s8, v14")
    a("v_xor_b32 v15, 0x200, v14")
    def pollload():
        if OPT.get("apoll"):
            a(f"v_mov_b32 v13, s{sTAG}")
            a("s_mov_b64 exec, 0xff")
            a("v_mov_b32 v13, 0")
            a(f"buffer_atomic_or v13, v12, {S4(SRD_WS)}, s7 offen sc0 sc1")
            a("s_mov_b64 exec, -1")
        else: a(f"buffer_load_dword v13, v12, {S4(SRD_WS)}, s7 offen {PF()}")
    a(f"s_setprio {OPT.get('oprio', 3)}")
    if OPT.get("ogate", 0):
        a("s_mov_b32 s78, s7")
        lds_wait(a, C_A1, OPT.get("ogate", 0), 76, 7, sleep=4)
        a("s_mov_b32 s7, s78")
        if OPT.get("odelay", 0): a(f"s_sleep {OPT['odelay']}")
        else: a("s_nop 3")
    a(f"s_mov_b32 s8, {POLL_CAP}")
    a.label("o_poll0")
    pollload()
    a("s_waitcnt vmcnt(0)")
    a(f"v_cmp_ne_u32 vcc, s{sTAG}, v13")
    a("s_and_b32 s11, vcc_lo, 15")
    a("s_cbranch_scc0 o_go0")
    a(f"s_sleep {OPT.get('osleep', 16)}")
    a("s_sub_u32 s8, s8, 1")
    a("s_cmp_lg_u32 s8, 0")
    a("s_cbranch_scc1 o_poll0")
    a.label("o_go0")
    a("s_setprio 3")
    tstamp(a, 12)
    oloads(0)
    a("s_cbranch_vccnz o_slow")
    oloads(1)
    omm(0, 10)
    a("s_branch o_second")
    a.label("o_slow")
    pollload()
    omm(0, 1)
    a("s_waitcnt vmcnt(0)")
    a(f"v_cmp_ne_u32 vcc, s{sTAG}, v13")
    a("s_cbranch_vccz o_go1")
    if OPT.get("pp", 0): flag_poll_pipe(a, 12, 7, [13, 8, 11], 8, OPT.get("ppgap", 3))
    else: flag_poll(a, 12, 7, 13, 8, sleep=OPT.get("osleep2", 8), amask=(0xf0, 0))
    a.label("o_go1")
    oloads(1)
    a.label("o_second")
    tstamp(a, 1)
    omm(1, 0)
    RR = 160
    tstamp(a, 3)
    red_write(ACC3, L_RING, C_G2, 230)
    tstamp(a, 4)
    a("s_mov_b32 s78, 0xffff0000")
    for u in range(5):
        t = 16 + 8 * u
        x = XPR[u]
        a(f"v_lshlrev_b32 v{t}, 16, v{x}")
        a(f"v_and_b32 v{t+1}, s78, v{x}")
        a(f"v_lshlrev_b32 v{t+2}, 16, v{x+1}")
        a(f"v_and_b32 v{t+3}, s78, v{x+1}")
        a(f"v_lshlrev_b32 v{t+4}, 16, v{GG+2*u}")
        a(f"v_and_b32 v{t+5}, s78, v{GG+2*u}")
        a(f"v_lshlrev_b32 v{t+6}, 16, v{GG+2*u+1}")
        a(f"v_and_b32 v{t+7}, s78, v{GG+2*u+1}")
    red_read(RR, C_G2)
    tstamp(a, 5)
    for u in range(5):
        a(f"s_waitcnt lgkmcnt({12-3*u})")
        t = 16 + 8 * u
        r = RR + u * 12
        red_sum(ACC3, RR, u)
        for i in (0, 2):
            a(f"v_pk_fma_f32 {vr(t+i,2)}, {vr(r+i,2)}, {vr(t+4+i,2)}, {vr(t+i,2)}")
        a(f"v_cvt_pk_bf16_f32 v{t+4}, v{t}, v{t+1}")
        a(f"v_cvt_pk_bf16_f32 v{t+5}, v{t+2}, v{t+3}")
        a(f"buffer_store_dwordx2 {vr(t+4,2)}, v1, {S4(SRD_OUT)}, s{US[u]} offen")

def build():
    a = Asm()
    hdr = open("cdna_kernels/" + NAME + ".s.ref").read().split("\n")
    head = [l for l in hdr if l.startswith(";") and "@launch" not in l]
    out = "\n".join(head) + "\n"
    out += f"; @launch grid=(256,1,1) block=(512,1,1) lds={LDS_TOTAL}\n"
    out += '.amdgcn_target "amdgcn-amd-amdhsa--gfx950"\n.text\n'
    a.lines += [f".globl {KNAME}", ".p2align 8", f".type {KNAME},@function"]
    a.label(KNAME)
    ln = emit_prologue(a)
    emit_role_a(a)
    emit_role_g(a, ln)
    a.label("k_end")
    stamp_flush(a)
    a.label("k_exit")
    a("s_endpgm")
    a.label("code_end")
    if OPT.get("align"):
        a.lines, npro, nnop = align_pass(a.lines, use_nop=(OPT["align"] == 2))
        print("align: promoted", npro, "nops", nnop, file=sys.stderr)
    probs = check_hazards(a.lines)
    for p in probs: print(p, file=sys.stderr)
    out += a.text()
    out += f""".section .rodata,"a"
.p2align 6
.amdhsa_kernel {KNAME}
  .amdhsa_next_free_vgpr 256
  .amdhsa_next_free_sgpr 102
  .amdhsa_accum_offset 256
  .amdhsa_group_segment_fixed_size 0
  .amdhsa_kernarg_size 96
  .amdhsa_user_sgpr_count 2
  .amdhsa_user_sgpr_kernarg_segment_ptr 1
  .amdhsa_system_sgpr_workgroup_id_x 1
.end_amdhsa_kernel
"""
    return out

if __name__ == "__main__":
    path = sys.argv[1] if len(sys.argv) > 1 else "cdna_kernels/" + NAME + ".s"
    for kv in sys.argv[2:]:
        k, v = kv.split("=")
        OPT[k] = int(v)
    open(path, "w").write(build())
```

```python
import sys, struct, os
from asmlib import *

NAME = "recurrent_scan__grouped_kv_mqa__swiglu_ffn__prompt"
KNAME = NAME + "_kernel"
S, D, H, DH, F = 2048, 640, 32, 20, 1728
WS_EPOCH = 0
FL_KV = 0x1000
MB_H = 0xF00000
MB_O = 0x1000000
MB_Q = 0x1100000
WS_QG = 0x60000
WS_QGB = 0xC00000
WS_KV = 0x10000
WS_OF = 0x800000
WS_STAMP = 0xB00000
WS_HF = 0x100000
WS_SIZE = 0x1200000
KVT = 3584
OOB = 0x7f000000
POLL_CAP = 3000

OPT = dict(stamp=False, touch=True, aprio=1, gprio=2, eprio=2, mapping=3, codetouch=True, kvsleep=16, g2prio=0, kvprio=3, ldprio=3, f1hi=0, clus=1)

def f32bits(x): return struct.unpack("<I", struct.pack("<f", x))[0]
QSCALE = (DH ** -0.5) * 1.4426950408889634
NL2E = hex(f32bits(-1.4426950408889634))

sWV, sG, sJ = 3, 4, 5
sTAG = 15
sRB = 85
sIDX = 14
P_X, P_WQ, P_WK, P_WV, P_WO, P_BX, P_WG, P_WU, P_WD, P_OUT, P_DBG, P_WS = [16 + 2 * i for i in range(12)]
SRD_X, SRD_WQ, SRD_WKV, SRD_WO, SRD_WG, SRD_WU, SRD_WD, SRD_OUT, SRD_WS = 40, 44, 48, 52, 56, 60, 64, 68, 72
sE = 84
L_XN = 0
L_RING = 81920
L_WKV = 147456
L_CNT = 162816
L_H = 0
L_EXT = 32768
LDS_TOTAL = 163840
C_F1, C_A1, C_G1, C_G2, C_A2, C_BAD, C_KVD, C_QR, C_F2, C_MX, C_MID = 0, 4, 8, 12, 16, 20, 24, 28, 32, 36, 40
SRD_KVR = SRD_WKV
SRD_H = SRD_WQ

def CS(): return OPT.get('cs', 0)
def PF(): return ['sc1', 'sc0 sc1', 'sc1 nt', 'sc0 sc1 nt'][OPT.get('pf', 0)]
def SF(): return ['sc1', 'sc0 sc1'][OPT.get('sf', 0)]
def FS(): return OPT.get('fs', 7)
def MS(): return max(7, FS() + 3)
def S4(b): return f"s[{b}:{b+3}]"
def srd(a, dst, ptr, nbytes):
    a(f"s_mov_b32 s{dst}, s{ptr}")
    a(f"s_mov_b32 s{dst+1}, s{ptr+1}")
    a(f"s_mov_b32 s{dst+2}, {nbytes}")
    a(f"s_mov_b32 s{dst+3}, 0x20000")

NST = 14
def stamp(a, i):
    if not OPT["stamp"]: return
    a("s_memtime s[98:99]" if OPT["stamp"] == 1 else "s_memrealtime s[98:99]")
    a("s_waitcnt lgkmcnt(0)")
    if OPT["stamp"] == 2: a("s_mul_i32 s98, s98, 10")
    a(f"s_mov_b32 s{STR[i]}, s98")
STR = [86+i for i in range(10)] + [26, 27, 100, 101]
def loop_align(a, key, lab):
    if key in OPT:
        a(f"s_branch {lab}")
        a.lines.append(".p2align 8")
        if OPT[key]: a.lines.append(f".fill {OPT[key] // 4}, 4, 0xbf800000")
    else:
        a.lines.append(".p2align 6")
def tstamp(a, i):
    if OPT.get("tail") or i >= 12: stamp(a, i)
def stamp_head(a):
    if not OPT["stamp"]: return
    for i in range(NST): a(f"s_mov_b32 s{STR[i]}, 0")
    a("s_memrealtime s[96:97]")
    stamp(a, 12)
    if OPT["stamp"] == 2: a("s_mul_i32 s78, s78, 10")
    a(f"s_mov_b32 s{STR[0]}, s78")
def stamp_flush(a):
    if not OPT["stamp"]: return
    stamp(a, NST-1)
    a("s_memrealtime s[98:99]")
    a("s_waitcnt lgkmcnt(0)")
    a("s_mov_b32 s97, s98")
    a("s_lshl_b32 s98, s2, 3")
    a(f"s_add_u32 s98, s98, s{sWV}")
    a("s_lshl_b32 s98, s98, 6")
    a(f"s_add_u32 s98, s98, {WS_STAMP}")
    a("s_mov_b64 exec, 1")
    a("v_mov_b32 v0, 0")
    for i, r in enumerate(STR + [96, 97]): a(f"v_mov_b32 v{4+i}, s{r}")
    for q in range(4):
        a(f"buffer_store_dwordx4 v[{4+4*q}:{7+4*q}], v0, {S4(SRD_WS)}, s98 offen offset:{16*q}")
    if OPT.get("dbgout"):
        srd(a, SRD_X, P_DBG, 256)
        a("v_not_b32 v20, v18")
        a(f"buffer_atomic_umax v19, v0, {S4(SRD_X)}, 0 offen")
        a(f"buffer_atomic_umax v20, v0, {S4(SRD_X)}, 0 offen offset:4")
        a(f"buffer_atomic_umax v18, v0, {S4(SRD_X)}, 0 offen offset:8")
        a(f"s_lshl_b32 s98, s2, 3")
        a(f"s_add_u32 s98, s98, s{sWV}")
        a(f"s_cmp_lg_u32 s98, {OPT['dbgout']}")
        a("s_cbranch_scc1 k_exit")
        for i in range(1, 14):
            a(f"v_sub_u32 v{4+i}, v{4+i}, v4")
            a(f"buffer_store_dword v{4+i}, v0, {S4(SRD_X)}, 0 offen offset:{8+4*i}")

def mfma32(a, d, A, B, c=None):
    a(f"v_mfma_f32_32x32x16_bf16 {vr(d,16)}, {vr(A,4)}, {vr(B,4)}, {vr(d,16) if c is None else c}")
def mfma32x8(a, d, A, B, c=None):
    a(f"v_mfma_f32_32x32x8_bf16 {vr(d,16)}, {vr(A,2)}, {vr(B,2)}, {vr(d,16) if c is None else c}")
def mfma16(a, d, A, B, c=None):
    a(f"v_mfma_f32_16x16x32_bf16 {vr(d,4)}, {vr(A,4)}, {vr(B,4)}, {vr(d,4) if c is None else c}")

def interleave(a, main, side, per):
    k = 0
    for i, m in enumerate(main):
        m()
        for _ in range(per[i]):
            if k < len(side):
                side[k](); k += 1
    while k < len(side):
        side[k](); k += 1

def lds_signal(a, cnt, vt):
    a("s_waitcnt lgkmcnt(0)")
    a(f"v_mov_b32 v{vt}, {L_CNT + cnt}")
    a(f"v_mov_b32 v{vt+1}, 1")
    a("s_mov_b64 exec, 1")
    a(f"ds_add_u32 v{vt}, v{vt+1}")
    a("s_mov_b64 exec, -1")
def lds_wait(a, cnt, target, vt, st, sleep=1):
    L = a.newlabel("lw"); Dn = a.newlabel("lwd")
    a(f"v_mov_b32 v{vt}, {L_CNT + cnt}")
    a(f"s_mov_b32 s{st+1}, 0x40000")
    a.label(L)
    a(f"ds_read_b32 v{vt+1}, v{vt}")
    a("s_waitcnt lgkmcnt(0)")
    a(f"v_readfirstlane_b32 s{st}, v{vt+1}")
    a(f"s_cmp_ge_u32 s{st}, {target}")
    a(f"s_cbranch_scc1 {Dn}")
    if sleep: a(f"s_sleep {sleep}")
    a(f"s_sub_u32 s{st+1}, s{st+1}, 1")
    a(f"s_cmp_lg_u32 s{st+1}, 0")
    a(f"s_cbranch_scc1 {L}")
    a.label(Dn)

def flag_set(a, soff, vt):
    a(f"v_mov_b32 v{vt}, 0")
    a(f"v_mov_b32 v{vt+1}, s{sTAG}")
    a("s_waitcnt vmcnt(0)")
    a("s_mov_b64 exec, 1")
    a(f"buffer_store_dword v{vt+1}, v{vt}, {S4(SRD_WS)}, s{soff} offen sc1")
    a("s_mov_b64 exec, -1")
def flag_bcast(a, vaddr, soff, nl, vt):
    a(f"v_mov_b32 v{vt}, s{sTAG}")
    a("s_waitcnt vmcnt(0)")
    a(f"s_mov_b64 exec, {hex((1 << nl) - 1)}")
    a(f"buffer_store_dword v{vt}, v{vaddr}, {S4(SRD_WS)}, s{soff} offen {SF()}")
    a("s_mov_b64 exec, -1")
def flag_poll(a, vaddr, soff, vt, st, two=False, sleep=2, amask=None):
    L = a.newlabel("fp"); Dn = a.newlabel("fpd")
    a(f"s_mov_b32 s{st}, {POLL_CAP}")
    a.label(L)
    if two:
        a(f"buffer_load_dwordx2 {vr(vt,2)}, v{vaddr}, {S4(SRD_WS)}, s{soff} offen sc1")
        a("s_waitcnt vmcnt(0)")
        a(f"v_xor_b32 v{vt}, s{sTAG}, v{vt}")
        a(f"v_xor_b32 v{vt+1}, s{sTAG}, v{vt+1}")
        a(f"v_or_b32 v{vt}, v{vt}, v{vt+1}")
        a(f"v_cmp_ne_u32 vcc, 0, v{vt}")
    elif amask and OPT.get("apoll"):
        a(f"v_mov_b32 v{vt}, s{sTAG}")
        a(f"s_mov_b32 exec_lo, {amask[0]}")
        a(f"s_mov_b32 exec_hi, {amask[1]}")
        a(f"v_mov_b32 v{vt}, 0")
        a(f"buffer_atomic_or v{vt}, v{vaddr}, {S4(SRD_WS)}, s{soff} offen sc0 sc1")
        a("s_mov_b64 exec, -1")
        a("s_waitcnt vmcnt(0)")
        a(f"v_cmp_ne_u32 vcc, s{sTAG}, v{vt}")
    else:
        a(f"buffer_load_dword v{vt}, v{vaddr}, {S4(SRD_WS)}, s{soff} offen {PF()}")
        a("s_waitcnt vmcnt(0)")
        a(f"v_cmp_ne_u32 vcc, s{sTAG}, v{vt}")
    a(f"s_cbranch_vccz {Dn}")
    a(f"s_sleep {sleep}")
    a(f"s_sub_u32 s{st}, s{st}, 1")
    a(f"s_cmp_lg_u32 s{st}, 0")
    a(f"s_cbranch_scc1 {L}")
    a.label(Dn)

def flag_poll_pipe(a, vaddr, soff, regs, st, gap):
    n = len(regs)
    L = a.newlabel("pp"); Dn = a.newlabel("ppd")
    a(f"s_mov_b32 s{st}, {POLL_CAP}")
    a("s_waitcnt vmcnt(0)")
    for r in regs[:-1]:
        a(f"buffer_load_dword v{r}, v{vaddr}, {S4(SRD_WS)}, s{soff} offen sc1")
        a(f"s_sleep {gap}")
    a.label(L)
    for i in range(n):
        a(f"buffer_load_dword v{regs[(i-1) % n]}, v{vaddr}, {S4(SRD_WS)}, s{soff} offen sc1")
        a(f"s_waitcnt vmcnt({n-1})")
        a(f"v_cmp_ne_u32 vcc, s{sTAG}, v{regs[i]}")
        a(f"s_cbranch_vccz {Dn}")
        a(f"s_sleep {gap}")
    a(f"s_sub_u32 s{st}, s{st}, 1")
    a(f"s_cmp_lg_u32 s{st}, 0")
    a(f"s_cbranch_scc1 {L}")
    a.label(Dn)

def xn_read_addrs(a, XA, tmp):
    a(f"v_lshrrev_b32 v{tmp}, 5, v0")
    for m in range(4):
        a(f"v_or_b32 v{XA+m}, {2*m}, v{tmp}")
        a(f"v_xor_b32 v{XA+m}, v{XA+m}, v0")
        a(f"v_lshlrev_b32 v{XA+m}, 4, v{XA+m}")

NSQ = 12
OPT_SCHED_A1 = {7: 2, 8: 2, 9: 3}; OPT_SCHED_A2 = {}
OPT_SCHED_G1 = {9: 4}; OPT_SCHED_G2 = {i: 1 for i in range(10)}
QREG = 144
def qslot(n): return n * 1024
vQO = 15

def emit_prologue(a):
    a("s_cmp_ge_u32 s2, 256")
    a("s_cbranch_scc1 k_exit")
    if OPT["stamp"]: a("s_memtime s[78:79]" if OPT["stamp"] == 1 else "s_memrealtime s[78:79]")
    if OPT.get("x_fix"): a("s_memrealtime s[100:101]")
    a("s_load_dwordx16 s[16:31], s[0:1], 0")
    a("s_load_dwordx8 s[32:39], s[0:1], 64")
    a("v_lshrrev_b32 v1, 6, v0")
    a("v_and_b32 v0, 63, v0")
    a(f"v_readfirstlane_b32 s{sWV}, v1")
    if OPT["mapping"] == 3:
        a("s_bfe_u32 s6, s2, 0x20001")
        a("s_lshl_b32 s6, s6, 3")
        a(f"s_bfe_u32 s{sIDX}, s2, 0x30003")
        a(f"s_add_u32 s{sG}, s6, s{sIDX}")
        a("s_and_b32 s6, s2, 1")
        a("s_lshl_b32 s6, s6, 2")
        a("s_lshr_b32 s7, s2, 6")
        a(f"s_add_u32 s{sJ}, s6, s7")
    elif OPT["mapping"] == 1:
        a("s_and_b32 s6, s2, 7")
        a("s_lshl_b32 s6, s6, 2")
        a("s_bfe_u32 s7, s2, 0x20003")
        a(f"s_add_u32 s{sG}, s6, s7")
        a(f"s_lshr_b32 s{sJ}, s2, 5")
    elif OPT["mapping"] == 4:
        a("s_bfe_u32 s6, s2, 0x10002")
        a("s_lshl_b32 s6, s6, 4")
        a("s_bfe_u32 s7, s2, 0x40003")
        a(f"s_add_u32 s{sG}, s6, s7")
        a("s_and_b32 s6, s2, 3")
        a("s_lshl_b32 s6, s6, 1")
        a("s_lshr_b32 s7, s2, 7")
        a(f"s_add_u32 s{sJ}, s6, s7")
    elif OPT["mapping"] == 5:
        a("s_and_b32 s6, s2, 3")
        a("s_lshl_b32 s6, s6, 3")
        a("s_bfe_u32 s7, s2, 0x30003")
        a(f"s_add_u32 s{sG}, s6, s7")
        a("s_and_b32 s6, s2, 4")
        a("s_lshr_b32 s7, s2, 6")
        a(f"s_add_u32 s{sJ}, s6, s7")
    else:
        raise ValueError
    a("v_lshrrev_b32 v10, 3, v0")
    a("v_and_b32 v11, 7, v0")
    a("v_mul_u32_u24 v12, 1280, v10")
    a("v_lshl_add_u32 v13, v11, 4, v12")
    if OPT.get("rot", 1):
        a(f"s_add_u32 s{sRB}, s{sWV}, s{sJ}")
        a(f"s_and_b32 s{sRB}, s{sRB}, 7")
    else:
        a(f"s_mov_b32 s{sRB}, s{sWV}")
    a(f"s_lshl_b32 s6, s{sG}, 3")
    a(f"s_add_u32 s6, s6, s{sRB}")
    a(f"s_mul_i32 s6, s6, {8*1280}")
    if OPT["codetouch"]:
        a(f"s_cmp_lg_u32 s{sWV}, 1")
        a("s_cbranch_scc1 ct_skip")
        a("s_getpc_b64 s[76:77]")
        a("s_and_b32 s76, s76, 0xffffff00")
        a("s_lshr_b32 s7, s2, 3")
        a("s_lshl_b32 s7, s7, 10")
        a("v_min_u32 v8, 7, v0")
        a("v_lshl_add_u32 v8, v8, 7, s7")
        a(f"v_min_u32 v8, code_end-{KNAME}-4, v8")
        a("global_load_dword v59, v8, s[76:77]")
        a.label("ct_skip")
    a("s_waitcnt lgkmcnt(0)")
    srd(a, SRD_X, P_X, S * D * 2)
    if OPT.get("t0"):
        R0 = OPT["t0"]
        a(f"s_cmp_lg_u32 s{sWV}, {OPT.get('t0w', 0)}")
        a("s_cbranch_scc1 t0_skip")
        srd(a, SRD_WG, P_WG, D * F * 2)
        srd(a, SRD_WU, P_WU, D * F * 2)
        srd(a, SRD_WQ, P_WQ, D * D * 2)
        touch_lin(a, SRD_WG, R0 * 3456 // 256, -(-R0 * 27 // 256), None, 60)
        touch_lin(a, SRD_WU, R0 * 3456 // 256, -(-R0 * 27 // 256), None, 61)
        touch_lin(a, SRD_WQ, R0 * 1280 // 256, -(-R0 * 10 // 256), None, 62)
        a.label("t0_skip")
    XR, DD = 16, 64
    vP, vSum, vSq = 2, 4, 6
    a(f"buffer_load_ushort v{vP}, v12, {S4(SRD_X)}, s6 offen")
    for i in range(10):
        a(f"buffer_load_dwordx4 {vr(XR+4*i,4)}, v13, {S4(SRD_X)}, s6 offen offset:{i*128}")
    a(f"s_load_dword s{sE}, s[{P_WS}:{P_WS+1}], {WS_EPOCH}")
    stamp_head(a)
    srd(a, SRD_WQ, P_WQ, D * D * 2)
    srd(a, SRD_WS, P_WS, WS_SIZE)
    srd(a, SRD_WG, P_WG, D * F * 2)
    srd(a, SRD_WU, P_WU, D * F * 2)
    srd(a, SRD_WD, P_WD, F * D * 2)
    srd(a, SRD_WO, P_WO, D * D * 2)
    srd(a, SRD_OUT, P_OUT, S * D * 2)
    a(f"s_and_b32 s6, s{sJ}, 1")
    a("s_cmp_eq_u32 s6, 0")
    a(f"s_cselect_b32 s{SRD_WKV}, s{P_WK}, s{P_WV}")
    a(f"s_cselect_b32 s{SRD_WKV+1}, s{P_WK+1}, s{P_WV+1}")
    a(f"s_mov_b32 s{SRD_WKV+2}, {D*DH*2}")
    a(f"s_mov_b32 s{SRD_WKV+3}, 0x20000")
    a(f"v_mov_b32 v{vSum}, 0\nv_mov_b32 v{vSum+1}, 0\nv_mov_b32 v{vSq}, 0\nv_mov_b32 v{vSq+1}, 0")
    a("s_mov_b32 s12, 0xffff0000")
    a("v_lshlrev_b32 v14, 4, v0")
    a(f"s_and_b32 s9, s{sWV}, 3")
    a("s_lshl_b32 s10, s9, 14")
    a(f"s_add_u32 s10, s10, {L_RING}")
    a(f"s_cmp_ge_u32 s{sWV}, 4")
    a("s_cbranch_scc1 pro_g")

    def ln(role, side=None, sched1=None, sched2=None, pre_bar=None):
        if role == "A":
            side = []
            if OPT["touch"]:
                side.append(lambda: touch_lin(a, SRD_WG, 8640, 17, 9, 56))
                side.append(lambda: touch_lin(a, SRD_WU, 8640, 17, 9, 57))
                side.append(lambda: touch_lin(a, SRD_WQ, 3200, 7, 9, 58))
            sched1 = {OPT.get("tpos", 9): 3}; sched2 = {}
        issued = [0]
        def do_side(n):
            for _ in range(n):
                if issued[0] < len(side):
                    side[issued[0]](); issued[0] += 1
        do_side(sched1.get(-1, 0))
        a(f"s_waitcnt vmcnt({10 + issued[0]})")
        stamp(a, 1)
        a(f"v_lshlrev_b32 v{vP}, 16, v{vP}")
        for i in range(10):
            a(f"s_waitcnt vmcnt({9-i + issued[0]})")
            for e in range(4):
                d = DD + 8 * i + 2 * e
                a(f"v_lshlrev_b32 v{d}, 16, v{XR+4*i+e}")
                a(f"v_and_b32 v{d+1}, s12, v{XR+4*i+e}")
            for e in range(4):
                d = DD + 8 * i + 2 * e
                a(f"v_pk_add_f32 {vr(d,2)}, {vr(d,2)}, {vr(vP,2)} op_sel_hi:[1,0] neg_lo:[0,1] neg_hi:[0,1]")
            for e in range(4):
                d = DD + 8 * i + 2 * e
                a(f"v_pk_add_f32 {vr(vSum,2)}, {vr(vSum,2)}, {vr(d,2)}")
                a(f"v_pk_fma_f32 {vr(vSq,2)}, {vr(d,2)}, {vr(d,2)}, {vr(vSq,2)}")
            do_side(sched1.get(i, 0))
        stamp(a, 2)
        a(f"v_add_f32 v{vSum}, v{vSum}, v{vSum+1}")
        a(f"v_add_f32 v{vSq}, v{vSq}, v{vSq+1}")
        for ctl in ("quad_perm:[1,0,3,2]", "quad_perm:[2,3,0,1]", "row_half_mirror"):
            a("s_nop 1")
            a(f"v_add_f32_dpp v{vSum}, v{vSum}, v{vSum} {ctl} row_mask:0xf bank_mask:0xf")
            a(f"v_add_f32_dpp v{vSq}, v{vSq}, v{vSq} {ctl} row_mask:0xf bank_mask:0xf")
        inv = f32bits(1.0 / D)
        a(f"v_mul_f32 v{vSum}, {hex(inv)}, v{vSum}")
        a(f"v_mul_f32 v{vSq}, {hex(inv)}, v{vSq}")
        a(f"v_fma_f32 v{vSq}, -v{vSum}, v{vSum}, v{vSq}")
        a(f"v_max_f32 v{vSq}, 0, v{vSq}")
        a(f"v_add_f32 v{vSq}, {hex(f32bits(1e-5))}, v{vSq}")
        a(f"v_rsq_f32 v{vSq}, v{vSq}")
        a(f"s_and_b32 s7, s{sRB}, 3")
        a("s_lshl_b32 s7, s7, 3")
        a(f"v_mul_f32 v{vSum}, v{vSum}, v{vSq}")
        a("v_add_u32 v8, s7, v10")
        a("v_and_b32 v9, 1, v11")
        a("v_lshl_add_u32 v8, v9, 5, v8")
        a("v_xor_b32 v8, v8, v11")
        a("v_lshlrev_b32 v8, 4, v8")
        a("v_lshrrev_b32 v9, 1, v11")
        a("v_lshl_add_u32 v8, v9, 11, v8")
        a(f"s_lshr_b32 s7, s{sRB}, 2")
        a("s_lshl_b32 s7, s7, 10")
        a("v_add_u32 v8, s7, v8")
        a("v_add_u32 v9, 0x10000, v8")
        for i in range(10):
            for e in range(4):
                d = DD + 8 * i + 2 * e
                a(f"v_pk_fma_f32 {vr(d,2)}, {vr(d,2)}, {vr(vSq,2)}, {vr(vSum,2)} op_sel_hi:[1,0,0] neg_lo:[0,0,1] neg_hi:[0,0,1]")
            for e in range(4):
                d = DD + 8 * i + 2 * e
                a(f"v_cvt_pk_bf16_f32 v{XR+4*i+e}, v{d}, v{d+1}")
            off = i * 8192
            a(f"ds_write_b128 v{8 if off < 65536 else 9}, {vr(XR+4*i,4)} offset:{L_XN + off % 65536}")
            do_side(sched2.get(i, 0))
        if role == "A":
            a("v_lshlrev_b32 v8, 2, v0")
            a(f"v_add_u32 v8, {L_CNT}, v8")
            a("v_mov_b32 v9, 0")
            a("ds_write_b32 v8, v9")
            assert issued[0] == len(side)
        if pre_bar: pre_bar()
        a("s_waitcnt lgkmcnt(0)")
        a(f"s_add_u32 s{sE}, s{sE}, 1")
        a(f"s_mul_i32 s{sTAG}, s{sE}, 0x9e3779b1")
        a(f"s_or_b32 s{sTAG}, s{sTAG}, 1")
        stamp(a, 3)
        a("s_barrier")
        if OPT.get("x_idle1"): a(f"s_sleep {OPT['x_idle1']}")
        if role == "G": stamp(a, 4)
        do_side(99)
    ln("A")
    return ln

def emit_kv(a):
    vW0, vW1, vXE, vXO, vXE2, vXO2 = 1, 2, 3, 4, 5, 6
    ACC = 112
    FB = 16
    def wdma(first, n):
        for i in range(n):
            a(f"s_mov_b32 m0, {L_WKV + i*1024}")
            a(f"s_mov_b32 s7, {first + i*1024}")
            a(f"buffer_load_dwordx4 v14, {S4(SRD_WKV)}, s7 offen lds")
    wdma(0, 15)
    a("v_lshrrev_b32 v10, 4, v0")
    a("v_bfe_u32 v11, v0, 2, 2")
    a("v_lshl_add_u32 v11, v10, 3, v11")
    a("v_mul_u32_u24 v11, 40, v11")
    a("v_and_b32 v12, 3, v0")
    a("v_lshl_add_u32 v12, v12, 3, v11")
    a(f"v_add_u32 v{vW0}, {L_WKV}, v12")
    a(f"v_add_u32 v{vW1}, {L_WKV + 32}, v11")
    a(f"s_lshr_b32 s9, s{sJ}, 1")
    a("s_and_b32 s10, s9, 1")
    a("s_lshr_b32 s11, s9, 1")
    a("s_lshl_b32 s12, s10, 4")
    a("v_and_b32 v13, 15, v0")
    a("v_add_u32 v13, s12, v13")
    a("v_and_b32 v15, 1, v10")
    a("v_lshl_add_u32 v15, v15, 5, v13")
    a("v_xor_b32 v15, v15, v10")
    a("v_lshrrev_b32 v7, 1, v10")
    a("v_lshlrev_b32 v7, 11, v7")
    a("s_lshl_b32 s12, s11, 10")
    a("v_add_u32 v7, s12, v7")
    a(f"v_lshl_add_u32 v{vXE}, v15, 4, v7")
    a("v_xor_b32 v15, 4, v15")
    a(f"v_lshl_add_u32 v{vXO}, v15, 4, v7")
    a(f"v_add_u32 v{vXE2}, 0x10000, v{vXE}")
    a(f"v_add_u32 v{vXO2}, 0x10000, v{vXO}")
    def reads(b):
        for t in range(2):
            s = 2 * b + t
            fb = FB + (b & 1) * 24 + t * 12
            wo = (s if s < 12 else s - 12) * 1280
            a(f"ds_read_b64_tr_b16 {vr(fb,2)}, v{vW0} offset:{wo}")
            a(f"ds_read_b64_tr_b16 {vr(fb+2,2)}, v{vW0} offset:{wo+160}")
            a(f"ds_read_b64_tr_b16 {vr(fb+4,2)}, v{vW1} offset:{wo}")
            a(f"ds_read_b64_tr_b16 {vr(fb+6,2)}, v{vW1} offset:{wo+160}")
            off = L_XN + s * 4096
            reg = (vXO if s & 1 else vXE) if off < 65536 else (vXO2 if s & 1 else vXE2)
            a(f"ds_read_b128 {vr(fb+8,4)}, v{reg} offset:{off % 65536}")
    a(f"s_and_b32 s6, s{sJ}, 1")
    a("s_cmp_eq_u32 s6, 1")
    a("s_waitcnt vmcnt(0)")
    a("s_cbranch_scc1 kv_v")
    for kv in (0, 1):
        if kv: a.label("kv_v")
        reads(0)
        for b in range(10):
            if b == 5:
                a("s_waitcnt lgkmcnt(0)")
                wdma(12 * 1280, 10)
            elif b < 9:
                reads(b + 1)
                a("s_waitcnt lgkmcnt(10)")
            else:
                a("s_waitcnt lgkmcnt(0)")
            for t in range(2):
                fb = FB + (b & 1) * 24 + t * 12
                c = "0" if (b == 0 and t == 0) else None
                for ct in range(2):
                    if kv == 0: mfma16(a, ACC + 4 * ct, fb + 4 * ct, fb + 8, c)
                    else:       mfma16(a, ACC + 4 * ct, fb + 8, fb + 4 * ct, c)
            if b == 5:
                a("s_waitcnt vmcnt(0)")
                reads(6)
        a(f"s_lshl_b32 s12, s{sG}, 1")
        a("s_add_u32 s12, s12, s11")
        a(f"s_mul_i32 s12, s12, {KVT}")
        a(f"s_add_u32 s12, s12, {WS_KV}")
        if kv == 0:
            a("v_lshrrev_b32 v2, 1, v10")
            a("v_lshl_add_u32 v2, v2, 5, v13")
            a("v_lshlrev_b32 v2, 4, v2")
            a("v_and_b32 v3, 1, v10")
            a("v_lshl_add_u32 v2, v3, 3, v2")
            a("v_lshl_add_u32 v3, v10, 5, v13")
            a("v_lshlrev_b32 v3, 3, v3")
            a("v_add_u32 v3, 3072, v3")
            a(f"v_mov_b32 v4, {OOB}")
            a("v_cmp_lt_u32 vcc, 1, v10")
            a("s_nop 1")
            a("v_cndmask_b32 v3, v3, v4, vcc")
            for i in range(8): a(f"v_mul_f32 v{ACC+i}, {hex(f32bits(QSCALE))}, v{ACC+i}")
            a(f"v_cvt_pk_bf16_f32 v6, v{ACC}, v{ACC+1}")
            a(f"v_cvt_pk_bf16_f32 v7, v{ACC+2}, v{ACC+3}")
            a(f"v_cvt_pk_bf16_f32 v8, v{ACC+4}, v{ACC+5}")
            a(f"v_cvt_pk_bf16_f32 v9, v{ACC+6}, v{ACC+7}")
            a("v_cmp_eq_u32 vcc, 1, v10")
            a("v_mov_b32 v4, 0x3f803f80")
            a("v_mov_b32 v5, 0x00003f80")
            a("v_cndmask_b32 v8, v8, v4, vcc")
            a("v_cndmask_b32 v9, v9, v5, vcc")
            a("s_branch kv_store")
        else:
            a("v_and_b32 v1, 15, v0")
            a("v_and_b32 v4, 1, v10")
            a("v_lshl_add_u32 v2, v4, 5, v1")
            a("v_lshlrev_b32 v2, 4, v2")
            a("v_lshrrev_b32 v4, 1, v10")
            a("v_lshl_add_u32 v2, v4, 3, v2")
            a("s_lshl_b32 s13, s10, 10")
            a("s_add_u32 s13, s13, 1024")
            a("v_add_u32 v2, s13, v2")
            a("v_add_u32 v3, 256, v2")
            a(f"v_cvt_pk_bf16_f32 v6, v{ACC}, v{ACC+1}")
            a(f"v_cvt_pk_bf16_f32 v7, v{ACC+2}, v{ACC+3}")
            a(f"v_cvt_pk_bf16_f32 v8, v{ACC+4}, v{ACC+5}")
            a(f"v_cvt_pk_bf16_f32 v9, v{ACC+6}, v{ACC+7}")
            a("v_cmp_eq_u32 vcc, 4, v1")
            a("v_mov_b32 v4, 0x3f803f80")
            a("v_mov_b32 v5, 0")
            a("v_cndmask_b32 v4, v5, v4, vcc")
            a("v_cmp_lt_u32 vcc, 3, v1")
            a("s_nop 1")
            a("v_cndmask_b32 v8, v8, v4, vcc")
            a("v_cndmask_b32 v9, v9, v4, vcc")
    a.label("kv_store")
    a(f"buffer_store_dwordx2 v[6:7], v2, {S4(SRD_WS)}, s12 offen sc1")
    a(f"buffer_store_dwordx2 v[8:9], v3, {S4(SRD_WS)}, s12 offen sc1")
    lds_signal(a, C_F1, 10)
    lds_signal(a, C_KVD, 10)
    a(f"s_lshl_b32 s12, s{sG}, 3")
    a(f"s_add_u32 s12, s12, s{sJ}")
    a("s_lshl_b32 s12, s12, 2")
    a(f"s_add_u32 s12, s12, {FL_KV}")
    flag_set(a, 12, 10)

def touch_lin(a, srd_, per_cu, nl, part, dst):
    a(f"v_min_u32 v8, {nl-1}, v0")
    a("v_lshlrev_b32 v8, 7, v8")
    a(f"s_mul_i32 s7, s2, {per_cu}")
    if part is not None:
        a(f"s_mul_i32 s8, s{part}, {nl*128}")
        a("s_add_u32 s7, s7, s8")
    a(f"buffer_load_dword v{dst}, v8, {S4(srd_)}, s7 offen")

def emit_late_touch(a):
    if not OPT["touch"]: return
    a(f"s_and_b32 s6, s{sWV}, 1")
    a("s_waitcnt vmcnt(0)")
    a(f"s_sleep {OPT.get('ltsleep', 32)}")
    touch_lin(a, SRD_WD, 8640, 34, 6, 57)
    touch_lin(a, SRD_WO, 3200, 13, 6, 58)

def emit_role_a(a):
    NQ = 8
    OA, QF, SB, KB = 128, 80, 48, 16
    v16, v8 = 2, 3
    a(f"s_cmp_ge_u32 s{sWV}, 2")
    a("s_cbranch_scc1 a_touch")
    a(f"s_cmp_eq_u32 s{sWV}, 1")
    a("s_cbranch_scc1 a_join")
    a(f"s_setprio {OPT['kvprio']}")
    emit_kv(a)
    a("s_setprio 0")
    a("s_branch a_join")
    a.label("a_touch")
    emit_late_touch(a)
    a.label("a_join")
    stamp(a, 4)
    a(f"s_mov_b32 s{SRD_KVR}, s{P_WS}")
    a(f"s_mov_b32 s{SRD_KVR+1}, s{P_WS+1}")
    a(f"s_mul_i32 s{SRD_KVR+2}, s{sWV}, {16*KVT}")
    a(f"s_add_u32 s{SRD_KVR+2}, s{SRD_KVR+2}, {WS_KV + 16*KVT}")
    a(f"v_lshlrev_b32 v{v16}, 4, v0")
    a(f"v_lshlrev_b32 v{v8}, 3, v0")
    a("s_waitcnt vmcnt(0)")
    for i in range(NQ * 16): a(f"v_mov_b32 v{OA+i}, 0")
    for i in range(16): a(f"v_mov_b32 v{SB+16+i}, 0")
    for i in range(16): a(f"v_mov_b32 v{KB+16+i}, 0")
    a("v_and_b32 v6, 31, v0")
    a("v_lshlrev_b32 v6, 4, v6")
    a("v_lshrrev_b32 v7, 5, v0")
    a("v_lshl_add_u32 v7, v7, 9, v6")
    a(f"v_mov_b32 v8, {OOB}")
    a("v_cmp_gt_u32 vcc, 32, v0")
    a(f"s_lshl_b32 s8, s{sJ}, 2")
    a(f"s_add_u32 s8, s8, s{sWV}")
    a("s_mul_i32 s6, s8, 20")
    a("s_add_u32 s9, s6, 19")
    a("s_lshr_b32 s6, s6, 7")
    a("s_lshr_b32 s9, s9, 7")
    a("v_cndmask_b32 v6, v8, v6, vcc")
    a("v_mov_b32 v12, s6")
    a("v_mov_b32 v13, s9")
    a("v_cndmask_b32 v12, v12, v13, vcc")
    a(f"v_lshlrev_b32 v12, {FS()}, v12")
    a(f"s_lshl_b32 s13, s{sG}, 5")
    a("s_add_u32 s13, s13, s8")
    a(f"s_lshl_b32 s13, s13, {MS()}")
    a(f"s_add_u32 s13, s13, {MB_Q}")
    a("s_and_b32 s9, s8, 1")
    a("s_mul_i32 s8, s8, 5")
    a("s_lshr_b32 s8, s8, 1")
    a("s_lshl_b32 s8, s8, 9")
    a(f"s_mul_i32 s6, s{sG}, 81920")
    a("s_add_u32 s8, s8, s6")
    a(f"s_add_u32 s8, s8, {WS_QGB}")
    a("s_lshl_b32 s10, s9, 3")
    a("s_add_u32 s10, s10, s8")
    a("s_mul_i32 s11, s9, 504")
    a("s_add_u32 s11, s11, s8")
    a("s_add_u32 s11, s11, 8")
    for d in range(4):
        a(f"s_add_u32 s8, s{sWV}, {d}")
        a("s_and_b32 s8, s8, 3")
        a("s_mul_i32 s8, s8, 3072")
        a(f"s_add_u32 s8, s8, {L_WKV}")
        a(f"v_add_u32 v{8+d}, s8, v{v16}")
    lds_wait(a, C_KVD, 1, 14, 8, sleep=8)
    lds_wait(a, C_MID, 1, 14, 8, sleep=8)
    a("s_setprio 3")
    tstamp(a, 1)
    a(f"s_lshl_b32 s6, s{sWV}, 8")
    a(f"s_add_u32 s6, s6, {FL_KV}")
    a("v_lshlrev_b32 v4, 2, v0")
    flag_poll(a, 4, 6, 5, 7, sleep=OPT["kvsleep"])
    tstamp(a, 2)
    a(f"s_mul_i32 s7, s{sWV}, {16*KVT}")
    a(f"s_add_u32 s7, s7, {WS_KV}")
    def kvload(b):
        kb = KB + 16 * b
        a(f"buffer_load_dwordx4 {vr(kb,4)}, v{v16}, {S4(SRD_KVR)}, s7 offen sc1")
        a(f"buffer_load_dwordx2 {vr(kb+12,2)}, v{v8}, {S4(SRD_KVR)}, s7 offen offset:3072 sc1")
        a(f"buffer_load_dwordx4 {vr(kb+4,4)}, v{v16}, {S4(SRD_KVR)}, s7 offen offset:1024 sc1")
        a(f"buffer_load_dwordx4 {vr(kb+8,4)}, v{v16}, {S4(SRD_KVR)}, s7 offen offset:2048 sc1")
        a(f"s_add_u32 s7, s7, {KVT}")
    kvload(0)
    lds_wait(a, C_F1, OPT.get("f1wait", 2), 14, 8, sleep=4)
    tstamp(a, 3)
    if OPT.get("qdelay", 0): a(f"s_sleep {OPT['qdelay']}")
    if OPT.get("pp", 0): flag_poll_pipe(a, 12, 13, [4, 5, 13], 8, OPT.get("ppgap", 3))
    else: flag_poll(a, 12, 13, 5, 8, sleep=OPT.get("qsleep", 8), amask=(1, 1))
    stamp(a, 5)
    for rt in range(2):
        if rt:
            a("s_add_u32 s10, s10, 40960")
            a("s_add_u32 s11, s11, 40960")
        a(f"buffer_load_dwordx2 {vr(QF+24+4*rt,2)}, v7, {S4(SRD_WS)}, s10 offen sc1")
        a(f"buffer_load_dwordx2 {vr(QF+24+4*rt+2,2)}, v7, {S4(SRD_WS)}, s11 offen sc1")
        a(f"buffer_load_dwordx2 {vr(QF+44+2*rt,2)}, v6, {S4(SRD_WS)}, s10 offen offset:1024 sc1")
    a("s_waitcnt vmcnt(0)")
    if OPT.get("shift"):
        sh = f32bits(-float(OPT["shift"])) >> 16
        a("v_cmp_lt_u32 vcc, 31, v0")
        a(f"v_mov_b32 v4, {hex(sh)}")
        a("s_nop 0")
        a(f"v_cndmask_b32 v{QF+44}, v{QF+44}, v4, vcc")
        a(f"v_cndmask_b32 v{QF+46}, v{QF+46}, v4, vcc")
    a(f"ds_write_b128 v8, {vr(QF+24,4)}")
    a(f"ds_write_b128 v8, {vr(QF+28,4)} offset:1024")
    a(f"ds_write_b128 v8, {vr(QF+44,4)} offset:2048")
    lds_signal(a, C_QR, 14)
    lds_wait(a, C_QR, 4, 14, 8, sleep=CS())
    for d in range(1, 4):
        a(f"ds_read_b128 {vr(QF+8*(d-1),4)}, v{8+d}")
        a(f"ds_read_b128 {vr(QF+32+4*(d-1),4)}, v{8+d} offset:2048")
        a(f"ds_read_b128 {vr(QF+8*(d-1)+4,4)}, v{8+d} offset:1024")
    a(f"s_setprio {OPT['aprio']}")
    a(f"s_mul_i32 s9, s{sWV}, {6*3072}")
    a(f"v_add_u32 v15, s9, v{v16}")
    a("s_waitcnt lgkmcnt(7)")
    def qk0(n):
        b = (n // NQ) & 1; qt = n % NQ
        if OPT.get("qswap"): mfma32x8(a, SB + 16 * (n & 1), KB + 16 * b + 12, QF + 32 + 2 * qt, "0")
        else: mfma32(a, SB + 16 * (n & 1), KB + 16 * b, QF + 4 * qt, "0")
    def qk1(n):
        b = (n // NQ) & 1; qt = n % NQ
        if OPT.get("qswap"): mfma32(a, SB + 16 * (n & 1), KB + 16 * b, QF + 4 * qt)
        else: mfma32x8(a, SB + 16 * (n & 1), KB + 16 * b + 12, QF + 32 + 2 * qt)
    def pv(n, t):
        b = (n // NQ) & 1; qt = n % NQ
        mfma32(a, OA + 16 * qt, KB + 16 * b + 4 + 4 * t, SB + 16 * (n & 1) + 4 * t)
    sPASS, sPUB, sTGT = 78, 79, 80
    a(f"s_mov_b32 s{sPASS}, 0")
    a(f"s_mov_b32 s{sPUB}, 0")
    a(f"s_mov_b32 s{sTGT}, 4")
    a("s_mov_b32 s83, 0x07060302")
    if OPT.get("x_idle2"): a(f"s_sleep {OPT['x_idle2']}")
    a.label("att_start")
    qk0(0); qk1(0)
    a("s_nop 7"); a("s_nop 2")
    a("s_waitcnt lgkmcnt(0)")
    stamp(a, 6)
    a("s_mov_b32 s8, 8")
    loop_align(a, "pa", "att_loop")
    a.label("att_loop")
    E64 = {0: (), 1: (6, 7), 2: tuple(range(16))}[OPT.get("e64", 0)]
    def slot(n, last=False):
        s = SB + 16 * (n & 1)
        def e(i): a(f"v_exp_f32{'_e64' if i in E64 else ''} v{s+i}, v{s+i}")
        def c(i):
            if OPT.get("perm"): a(f"v_perm_b32 v{s+i}, v{s+2*i+1}, v{s+2*i}, s83")
            else: a(f"v_cvt_pk_bf16_f32 v{s+i}, v{s+2*i}, v{s+2*i+1}")
        e(0); e(1)
        pv((n - 1) % (2 * NQ), 1)
        if n % NQ == 0 and not last:
            if OPT["ldprio"]: a(f"s_setprio {OPT['ldprio']}")
            kvload(((n // NQ) + 1) & 1)
            if OPT["ldprio"]: a(f"s_setprio {OPT['aprio']}")
        V = [("e",2),("e",3),("c",0),("c",1),("e",4),("e",5),("e",6),("e",7),("c",2),("c",3),("e",8),("e",9),("e",10),("e",11),("c",4),("c",5),("e",12),("e",13),("e",14),("e",15),("c",6),("c",7)]
        p1, p2, p3 = {0: (5, 11, 17), 1: (4, 7, 12), 2: (3, 7, 12), 3: (4, 8, 12)}[OPT.get("clus", 0)]
        fin = last and n == 2 * NQ - 1
        td = n - NQ - 1
        for i, (k, r) in enumerate(V):
            if i == p1 and not fin:
                if (n + 1) % NQ == 0: a("s_waitcnt vmcnt(0)")
                qk0(n + 1)
            if i == p2 and not fin: qk1(n + 1)
            if i == p3: pv(n, 0)
            if last and 0 <= td < 6 and i in (14, 17, 20):
                q4 = (i - 14) // 3
                a(f"ds_write_b128 v15, {vr(OA+16*td+4*q4,4)} offset:{td*3072+q4*1024}")
            (e if k == "e" else c)(r)
    for n in range(NQ): slot(n)
    a("s_cmp_eq_u32 s8, 1")
    a("s_cbranch_scc1 att_last")
    for n in range(NQ, 2 * NQ): slot(n)
    a("s_sub_u32 s8, s8, 1")
    a("s_branch att_loop")
    a.label("att_last")
    lds_wait(a, C_F2, 4, 4, 8)
    for n in range(NQ, 2 * NQ): slot(n, True)
    a("s_setprio 3")
    a("s_nop 0")
    pv(2 * NQ - 1, 1)
    stamp(a, 7)
    lds_signal(a, C_A1, 6)
    stamp(a, 8)
    a(f"s_mul_i32 s10, s{sG}, 40")
    a(f"s_mul_i32 s11, s{sJ}, 5")
    a("s_add_u32 s10, s10, s11")
    a("s_add_u32 s11, s10, 4")
    a(f"s_add_u32 s10, s10, s{sWV}")
    a("s_lshl_b32 s10, s10, 11")
    a(f"s_add_u32 s10, s10, {WS_OF}")
    a("s_lshl_b32 s11, s11, 11")
    a(f"s_add_u32 s11, s11, {WS_OF}")
    a(f"s_lshl_b32 s12, s{sWV}, 9")
    a(f"v_add_u32 v10, s12, v{v16}")
    a(f"v_mov_b32 v11, {OOB}")
    a("v_cmp_gt_u32 vcc, 32, v0")
    for d in range(1, 4):
        a(f"s_sub_u32 s9, s{sWV}, {d}")
        a("s_and_b32 s9, s9, 3")
        a(f"s_mul_i32 s9, s9, {6*3072}")
        a(f"v_add_u32 v{11+d}, s9, v{v16}")
    a("v_cndmask_b32 v10, v11, v10, vcc")
    a(f"s_cmp_lg_u32 s{sPUB}, 0")
    a("s_cbranch_scc1 att_done")
    a(f"s_mov_b32 s81, {hex(f32bits(2.0**-80))}")
    a(f"s_mov_b32 s82, {hex(f32bits(2.0**60))}")
    a("s_mov_b64 s[76:77], 0")
    lds_wait(a, C_A1, f"s{sTGT}", 4, 8, sleep=CS())
    stamp(a, 9)
    R = OA
    for rt in range(2):
        for d in range(1, 4):
            for q4 in range(3):
                a(f"ds_read_b128 {vr(R+rt*36+(d-1)*12+q4*4,4)}, v{11+d} offset:{(2*(d-1)+rt)*3072+q4*1024}")
    for rt in range(2):
        a(f"s_waitcnt lgkmcnt({9 if rt == 0 else 0})")
        b = R + rt * 36; o = OA + 96 + 16 * rt
        for i in (8, 0, 2, 4, 6, 10):
            a(f"v_pk_add_f32 {vr(o+i,2)}, {vr(o+i,2)}, {vr(b+i,2)}")
            a(f"v_pk_add_f32 {vr(b+12+i,2)}, {vr(b+12+i,2)}, {vr(b+24+i,2)}")
        for i in (8, 0, 2, 4, 6, 10):
            a(f"v_pk_add_f32 {vr(o+i,2)}, {vr(o+i,2)}, {vr(b+12+i,2)}")
        a(f"v_mov_b32 v8, v{o+8}")
        a(f"v_mov_b32 v9, v{o+8}")
        a("s_nop 1")
        a("v_permlane32_swap_b32 v8, v9")
        a("s_nop 1")
        a("v_rcp_f32 v8, v9")
        a("v_cmp_nle_f32 vcc, s81, v9")
        a("s_or_b64 s[76:77], s[76:77], vcc")
        a("v_cmp_nge_f32 vcc, s82, v9")
        a("s_or_b64 s[76:77], s[76:77], vcc")
        for i in range(0, 12, 2):
            a(f"v_pk_mul_f32 {vr(o+i,2)}, {vr(o+i,2)}, v[8:9] op_sel_hi:[1,0]")
        for i in range(4):
            a(f"v_cvt_pk_bf16_f32 v{b+i}, v{o+2*i}, v{o+2*i+1}")
        a(f"buffer_store_dwordx4 {vr(b,4)}, v{v16}, {S4(SRD_WS)}, s10 offen offset:{rt*1024} sc1")
        for i in range(2):
            a(f"v_cvt_pk_bf16_f32 v{R+72+2*rt+i}, v{o+8+2*i}, v{o+8+2*i+1}")
    a(f"buffer_store_dwordx4 {vr(R+72,4)}, v10, {S4(SRD_WS)}, s11 offen sc1")
    a(f"s_lshl_b32 s12, s{sG}, {MS()+5}")
    a(f"s_and_b32 s13, s{sJ}, 3")
    a(f"s_lshl_b32 s13, s13, {MS()}")
    a("s_add_u32 s12, s12, s13")
    a(f"s_and_b32 s13, s{sJ}, 4")
    a(f"s_add_u32 s13, s13, s{sWV}")
    a(f"s_lshl_b32 s13, s13, {FS()}")
    a("s_add_u32 s12, s12, s13")
    a(f"s_add_u32 s12, s12, {MB_O}")
    a(f"v_lshlrev_b32 v8, {MS()+2}, v0")
    stamp(a, 10)
    a(f"s_cmp_lg_u32 s{sPASS}, 0")
    a("s_cbranch_scc1 att_pub")
    a("s_cmp_eq_u64 s[76:77], 0")
    a("s_cbranch_scc1 att_pub")
    lds_signal(a, C_BAD, 4)
    a("s_branch att_nopub")
    a.label("att_pub")
    flag_bcast(a, 8, 12, 8, 9)
    a(f"s_mov_b32 s{sPUB}, 1")
    a.label("att_nopub")
    stamp(a, 11)
    a(f"s_cmp_lg_u32 s{sPASS}, 0")
    a("s_cbranch_scc1 att_done")
    lds_signal(a, C_A2, 4)
    lds_wait(a, C_A2, 4, 4, 8)
    a(f"v_mov_b32 v4, {L_CNT + C_BAD}")
    a("ds_read_b32 v5, v4")
    a("s_waitcnt lgkmcnt(0)")
    a("v_readfirstlane_b32 s8, v5")
    a("s_cmp_eq_u32 s8, 0")
    a("s_cbranch_scc1 att_done")
    MX = KB + 16
    a("s_waitcnt vmcnt(0)")
    for t in range(8): a(f"v_mov_b32 v{MX+t}, 0xff800000")
    if OPT.get("shift"):
        a("v_cmp_gt_u32 vcc, 32, v0")
        a("s_nop 1")
        for t in range(8): a(f"v_cndmask_b32 v{QF+32+2*t}, 0, v{QF+32+2*t}, vcc")
    a(f"s_mul_i32 s7, s{sWV}, {16*KVT}")
    a(f"s_add_u32 s7, s7, {WS_KV}")
    a("s_mov_b32 s8, 16")
    a.label("mx_loop")
    kvload(0)
    a("s_waitcnt vmcnt(0)")
    for t in range(8):
        qk0(t); qk1(t)
        a("s_nop 11")
        sb = SB + 16 * (t & 1)
        for i in range(8):
            a(f"v_max3_f32 v{MX+t}, v{MX+t}, v{sb+2*i}, v{sb+2*i+1}")
    a("s_sub_u32 s8, s8, 1")
    a("s_cmp_lg_u32 s8, 0")
    a("s_cbranch_scc1 mx_loop")
    a("v_lshlrev_b32 v4, 2, v0")
    for d in range(4):
        a(f"s_add_u32 s9, s{sWV}, {d+1}")
        a("s_and_b32 s9, s9, 3")
        a("s_lshl_b32 s9, s9, 9")
        a(f"v_add_u32 v{8+d}, s9, v4")
    a(f"s_lshl_b32 s9, s{sWV}, 11")
    for t in range(8):
        a(f"v_mov_b32 v5, v{MX+t}")
        a("s_nop 1")
        a(f"v_permlane32_swap_b32 v5, v{MX+t}")
        a("s_nop 1")
        a(f"v_max_f32 v{MX+t}, v5, v{MX+t}")
        a(f"v_add_u32 v6, s9, v{8+(t>>1)}")
        a(f"ds_write_b32 v6, v{MX+t} offset:{(t&1)*256}")
    lds_signal(a, C_MX, 4)
    lds_wait(a, C_MX, 4, 4, 8)
    a("s_mov_b32 s9, 0xffff0000")
    a("v_cmp_lt_u32 vcc, 31, v0")
    for t in range(8):
        for w in range(4):
            a(f"ds_read_b32 v{SB+w}, v{8+(t>>1)} offset:{w*2048+(t&1)*256}")
        a("s_waitcnt lgkmcnt(0)")
        a(f"v_max3_f32 v4, v{SB}, v{SB+1}, v{SB+2}")
        a(f"v_max_f32 v4, v4, v{SB+3}")
        a("v_sub_f32 v4, 0, v4")
        a("v_and_b32 v5, s9, v4")
        a("v_sub_f32 v4, v4, v5")
        a("v_and_b32 v6, s9, v4")
        a("v_sub_f32 v4, v4, v6")
        a("v_lshrrev_b32 v4, 16, v4")
        a("v_lshrrev_b32 v5, 16, v5")
        a("v_or_b32 v5, v5, v6")
        a(f"v_cndmask_b32 v{QF+32+2*t}, v{QF+32+2*t}, v5, vcc")
        a(f"v_cndmask_b32 v{QF+32+2*t+1}, v{QF+32+2*t+1}, v4, vcc")
    lds_signal(a, C_MX, 4)
    lds_wait(a, C_MX, 8, 4, 8)
    for i in range(NQ * 16): a(f"v_mov_b32 v{OA+i}, 0")
    for i in range(16): a(f"v_mov_b32 v{SB+16+i}, 0")
    for i in range(16): a(f"v_mov_b32 v{KB+16+i}, 0")
    a(f"s_mul_i32 s7, s{sWV}, {16*KVT}")
    a(f"s_add_u32 s7, s7, {WS_KV}")
    kvload(0)
    a(f"s_mov_b32 s{sPASS}, 1")
    a(f"s_mov_b32 s{sTGT}, 8")
    a("s_waitcnt vmcnt(0)")
    a("s_branch att_start")
    a.label("att_done")
    a(f"s_or_b32 s12, s2, s{sWV}")
    a("s_cmp_lg_u32 s12, 0")
    a("s_cbranch_scc1 k_end")
    a(f"v_mov_b32 v8, {WS_EPOCH}")
    a(f"v_mov_b32 v9, s{sE}")
    a("s_mov_b64 exec, 1")
    a(f"buffer_store_dword v9, v8, {S4(SRD_WS)}, 0 offen sc1")
    a("s_mov_b64 exec, -1")
    a("s_branch k_end")

def emit_role_g(a, ln):
    a.label("pro_g")
    XA, TA = 56, 60
    vGO, vUO = 1, 15
    FB, ACC = 64, 128
    a("s_lshl_b32 s6, s9, 3")
    a(f"s_add_u32 s6, s6, s{sJ}")
    a("s_cmp_ge_u32 s6, 27")
    a("s_cselect_b32 s78, 1280, 0")
    a("s_cselect_b32 s79, 0, 3456")
    a("s_add_u32 s78, s78, s79")
    a("s_lshl_b32 s79, s78, 3")
    a("s_lshl_b32 s80, s78, 4")
    a("s_lshl_b32 s7, s6, 7")
    a("s_mov_b32 s8, 0")
    a("s_cmp_lt_u32 s6, 27")
    a("s_cbranch_scc1 pro_gf")
    for k in range(3):
        a(f"s_mov_b32 s{SRD_WG+k}, s{SRD_WQ+k}")
        a(f"s_mov_b32 s{SRD_WU+k}, s{SRD_WQ+k}")
    a("s_sub_u32 s7, s6, 27")
    a("s_lshl_b32 s7, s7, 8")
    a("s_mov_b32 s8, 128")
    a.label("pro_gf")
    if OPT.get("m0once", 0):
        a("s_sub_u32 s79, s79, 1024")
        a(f"s_sub_u32 s{SRD_WU}, s{SRD_WU}, 2048")
        a(f"s_subb_u32 s{SRD_WU+1}, s{SRD_WU+1}, 0")
        a(f"s_add_u32 s{SRD_WU+2}, s{SRD_WU+2}, 2048")
    a("v_lshrrev_b32 v8, 3, v0")
    a("v_mul_lo_u32 v9, v8, s78")
    a("v_bfe_u32 v12, v0, 1, 2")
    a("v_bfe_u32 v8, v0, 4, 1")
    a("v_xor_b32 v12, v12, v8")
    a("v_and_b32 v8, 1, v0")
    a("v_lshl_add_u32 v9, v8, 4, v9")
    a("v_add_u32 v9, s7, v9")
    a(f"v_lshl_add_u32 v{vGO}, v12, 5, v9")
    a("v_xor_b32 v12, 2, v12")
    a("v_add_u32 v9, s8, v9")
    a(f"v_lshl_add_u32 v{vUO}, v12, 5, v9")
    a("s_mov_b32 s13, 0")
    def f1slot(stage): return (stage & 3) * 4096
    def f1_dma_ops(stage):
        ops = []
        for gu in range(2):
            for i in range(2):
                def op(gu=gu, i=i):
                    if OPT.get("m0once", 0):
                        if gu == 0 and i == 0:
                            a(f"s_add_u32 m0, s10, {f1slot(stage)}")
                            a("s_add_u32 s11, s13, s79")
                        a(f"buffer_load_dwordx4 v{vUO if gu else vGO}, {S4(SRD_WU if gu else SRD_WG)}, {'s11' if i else 's13'} offen offset:{gu*2048+i*1024} lds")
                    else:
                        a(f"s_add_u32 m0, s10, {f1slot(stage) + gu*2048 + i*1024}")
                        if i: a("s_add_u32 s11, s13, s79")
                        else: a("s_nop 0")
                        a(f"buffer_load_dwordx4 v{vUO if gu else vGO}, {S4(SRD_WU if gu else SRD_WG)}, {'s11' if i else 's13'} offen lds")
                    if gu == 1 and i == 1: a("s_add_u32 s13, s13, s80")
                ops.append(op)
        return ops
    xn_read_addrs(a, XA, 8)
    a("v_lshrrev_b32 v12, 5, v0")
    a("v_bfe_u32 v13, v0, 2, 2")
    a("v_lshl_add_u32 v12, v12, 3, v13")
    a("v_lshlrev_b32 v12, 7, v12")
    a("v_bfe_u32 v13, v0, 1, 1")
    a("v_lshl_add_u32 v12, v13, 11, v12")
    a("v_and_b32 v14, 1, v0")
    a("v_lshl_add_u32 v12, v14, 4, v12")
    a("v_bfe_u32 v14, v0, 4, 1")
    a("v_lshl_add_u32 v12, v14, 3, v12")
    a("v_add_u32 v12, s10, v12")
    a("v_bfe_u32 v14, v0, 3, 1")
    a("v_lshl_or_b32 v14, v13, 1, v14")
    for t in range(4):
        a(f"v_xor_b32 v8, {t}, v14")
        a(f"v_lshl_add_u32 v{TA+t}, v8, 5, v12")
    for i in range(16, 128): a(f"v_mov_b32 v{ACC+i}, 0")
    side = []
    for st in range(4): side += f1_dma_ops(st)
    e0 = OPT.get("early", 4)
    def pre_bar():
        for i in range(16): a(f"v_mov_b32 v{ACC+i}, 0")
    ln("G", side, {-1: e0, 9: OPT.get("mid", 2)}, {i: OPT.get("late", 1) for i in range(10)}, pre_bar)
    a(f"s_setprio {OPT['eprio']}")
    def f1_read_ops(u):
        fb = FB + (u & 1) * 24
        so = f1slot(u)
        ops = [lambda: a(f"ds_read_b128 {vr(fb+16,4)}, v{XA+(u&3)} offset:{L_XN+u*2048}"),
               lambda: a(f"ds_read_b128 {vr(fb+20,4)}, v{XA+(u&3)} offset:{L_XN+u*2048+1024}")]
        for t in range(4):
            ops.append(lambda t=t: a(f"ds_read_b64_tr_b16 {vr(fb+4*t,2)}, v{TA+t} offset:{so}"))
            ops.append(lambda t=t: a(f"ds_read_b64_tr_b16 {vr(fb+4*t+2,2)}, v{TA+t} offset:{so+512}"))
        return ops
    DEEP = OPT.get("deep", 1)
    a("s_waitcnt vmcnt(12)")
    for op in f1_read_ops(0): op()
    if DEEP:
        a("s_waitcnt lgkmcnt(0)")
        for op in f1_dma_ops(4): op()
    a("s_mov_b32 s8, 10")
    stamp(a, 5)
    a(f"s_setprio {OPT['gprio']}")
    loop_align(a, "p1", "f1_loop")
    a.label("f1_loop")
    for u in range(4):
        a(f"s_waitcnt vmcnt({12 if DEEP else 8}) lgkmcnt(0)")
        fb = FB + (u & 1) * 24
        mm = [(lambda t=t, rt=rt: mfma32(a, ACC + (t * 2 + rt) * 16, fb + 4 * t, fb + 16 + 4 * rt)) for t in range(4) for rt in range(2)]
        if DEEP:
            r = f1_read_ops(u + 1)
            side = r[2:] + r[:2] + [lambda: a("s_waitcnt lgkmcnt(2)")] + f1_dma_ops(u + 1)
            interleave(a, mm, side, {1: [4, 4, 2, 0, 2, 1, 1, 1], 2: [4, 4, 2, 2, 1, 1, 1, 0], 3: [5, 5, 0, 2, 1, 1, 1, 0]}[DEEP])
        else:
            interleave(a, mm, f1_read_ops(u + 1) + f1_dma_ops(u), [3, 3, 2, 2, 1, 1, 1, 1])
    for m in range(4): a(f"v_add_u32 v{XA+m}, 8192, v{XA+m}")
    a(f"s_cmp_lg_u32 s8, {OPT.get('mid_it', 3)}")
    a("s_cbranch_scc1 f1_nomid")
    a(f"v_mov_b32 v12, {L_CNT + C_MID}")
    a("v_mov_b32 v13, 1")
    a("ds_write_b32 v12, v13")
    a.label("f1_nomid")
    if OPT.get("x_thr"):
        a("s_cmp_ge_u32 s6, 27")
        a("s_cbranch_scc1 thr_skip")
        a(f"s_sleep {OPT['x_thr']}")
        a.label("thr_skip")
    a("s_sub_u32 s8, s8, 1")
    a("s_cmp_lg_u32 s8, 0")
    a("s_cbranch_scc1 f1_loop")
    a(f"s_setprio {OPT['eprio']}")
    stamp(a, 6)
    WOFF = 2
    TB = 6
    vBX, vBY = 9, 10
    HP = 24
    lds_signal(a, C_F1, 12)
    a("s_cmp_lt_u32 s6, 27")
    a("s_cbranch_scc1 f1_epi")
    a("s_setprio 3")
    a("v_lshlrev_b32 v12, 4, v0")
    a("s_sub_u32 s8, s6, 27")
    a("s_lshl_b32 s7, s8, 13")
    a(f"s_mul_i32 s8, s{sG}, 81920")
    a("s_add_u32 s7, s7, s8")
    a(f"s_add_u32 s7, s7, {WS_QGB}")
    a("s_add_u32 s8, s7, 4096")
    a("s_add_u32 s82, s7, 40960")
    a("s_add_u32 s83, s8, 40960")
    for t in range(4):
        for rt in range(2):
            ac = ACC + (t * 2 + rt) * 16
            o = 16 + ((t * 2 + rt) & 3) * 8
            for up in range(2):
                for hi in range(2):
                    r = ac + 8 * hi + 4 * up
                    a(f"v_cvt_pk_bf16_f32 v{o+4*up+2*hi}, v{r}, v{r+1}")
                    a(f"v_cvt_pk_bf16_f32 v{o+4*up+2*hi+1}, v{r+2}, v{r+3}")
                so = [[7, 8], [82, 83]][rt][up]
                a(f"buffer_store_dwordx4 {vr(o+4*up,4)}, v12, {S4(SRD_WS)}, s{so} offen offset:{t*1024} sc1")
    a(f"s_lshl_b32 s7, s{sG}, {MS()+5}")
    a("s_sub_u32 s8, s6, 27")
    a("s_mul_i32 s82, s8, 32")
    a("s_mul_i32 s82, s82, 0x3334")
    a("s_lshr_b32 s82, s82, 16")
    a(f"s_lshl_b32 s8, s8, {FS()}")
    a("s_add_u32 s7, s7, s8")
    a(f"s_add_u32 s7, s7, {MB_Q}")
    a("v_add_u32 v12, s82, v0")
    a("v_min_u32 v12, 31, v12")
    a(f"v_lshlrev_b32 v12, {MS()}, v12")
    flag_bcast(a, 12, 7, 8, 13)
    a(f"s_setprio {OPT['eprio']}")
    a("s_branch f1_epi_skip")
    a.label("f1_epi")
    T = 16
    idx = [(0, 4), (1, 5), (2, 6), (3, 7), (8, 12), (9, 13), (10, 14), (11, 15)]
    a("s_nop 3")
    for t in range(4):
        for rt in range(2):
            ac = ACC + (t * 2 + rt) * 16
            hp = HP + (t * 2 + rt) * 4
            for e, (gi, ui) in enumerate(idx): a(f"v_mul_f32 v{T+e}, {NL2E}, v{ac+gi}")
            for e in range(8): a(f"v_exp_f32 v{T+e}, v{T+e}")
            for e in range(8): a(f"v_add_f32 v{T+e}, 1.0, v{T+e}")
            for e in range(8): a(f"v_rcp_f32 v{T+e}, v{T+e}")
            for e, (gi, ui) in enumerate(idx): a(f"v_mul_f32 v{ac+gi}, v{ac+gi}, v{ac+ui}")
            for e, (gi, ui) in enumerate(idx): a(f"v_mul_f32 v{T+e}, v{T+e}, v{ac+gi}")
            for e in range(4): a(f"v_cvt_pk_bf16_f32 v{hp+e}, v{T+2*e}, v{T+2*e+1}")
    a.label("f1_epi_skip")
    stamp(a, 7)
    FB2, BB, ACC2, WF = 16, 40, 80, 160
    TC, TD = 250, 253
    a(f"s_and_b32 s76, s{sJ}, 1")
    a(f"s_lshr_b32 s77, s{sJ}, 1")
    a("s_mul_i32 s77, s77, 320")
    a("s_lshl_b32 s8, s76, 7")
    a("s_add_u32 s77, s77, s8")
    for i in range(4):
        a(f"v_add_u32 v12, {i*64}, v0")
        a("v_mul_u32_u24 v13, 0xaab, v12")
        a("v_lshrrev_b32 v13, 15, v13")
        a("v_mul_u32_u24 v14, 12, v13")
        a("v_sub_u32 v14, v12, v14")
        a("v_mul_u32_u24 v13, 1280, v13")
        a("v_lshl_add_u32 v13, v14, 4, v13")
        a(f"v_add_u32 v{WOFF+i}, s77, v13")
    a("v_cmp_lt_u32 vcc, 47, v0")
    a(f"v_mov_b32 v12, {OOB}")
    a("s_mul_i32 s78, s9, 28")
    a(f"v_cndmask_b32 v{WOFF+3}, v{WOFF+3}, v12, vcc")
    a(f"s_mul_i32 s11, s78, {16*1280}")
    a(f"s_add_u32 s7, s11, {28*16*1280}")
    a(f"s_min_u32 s{SRD_WD+2}, s7, {F*D*2}")
    a("s_lshl_b32 s84, s9, 14")
    a("s_lshl_b32 s79, s76, 6")
    a("s_add_u32 s80, s79, 64")
    a("s_cmp_eq_u32 s76, 0")
    a("s_cselect_b32 s81, 128, 0")
    a("v_bfe_u32 v12, v0, 2, 2")
    a("v_mul_u32_u24 v12, 192, v12")
    a("v_bfe_u32 v13, v0, 4, 1")
    a("v_bfe_u32 v14, v0, 1, 1")
    a("v_lshl_add_u32 v13, v13, 1, v14")
    a("v_add_u32 v13, s9, v13")
    a("v_and_b32 v13, 3, v13")
    a("v_lshl_add_u32 v12, v13, 4, v12")
    a("v_and_b32 v13, 1, v0")
    a("v_lshl_add_u32 v12, v13, 3, v12")
    a("v_add_u32 v11, s10, v12")
    a("v_lshrrev_b32 v13, 5, v0")
    a(f"v_mul_u32_u24 v14, {8*192}, v13")
    for t, sT in enumerate((79, 80, 81)):
        a(f"v_add3_u32 v{TB+t}, v11, v14, s{sT}")
    a("v_add_u32 v11, s84, v12")
    a(f"v_mul_u32_u24 v14, {4*192}, v13")
    a("v_lshlrev_b32 v15, 13, v13")
    for t, sT in enumerate((79, 80, 81)):
        a(f"v_add3_u32 v{TC+t}, v11, v14, s{sT}")
        a(f"v_add3_u32 v{TD+t}, v11, v15, s{sT}")
    a("v_lshlrev_b32 v11, 4, v0")
    a("s_lshl_b32 s7, s76, 10")
    a(f"v_add_u32 v{vBX}, s7, v11")
    a("s_xor_b32 s7, s7, 1024")
    a(f"v_add_u32 v{vBY}, s7, v11")
    for i in range(80): a(f"v_mov_b32 v{ACC2+i}, 0")
    a("s_cmp_eq_u32 s9, 3")
    a("s_cselect_b32 s7, 5, 6")
    a("v_min_u32 v15, s7, v0")
    a(f"v_lshlrev_b32 v15, {FS()}, v15")
    a(f"s_lshl_b32 s83, s{sG}, 3")
    a(f"s_add_u32 s83, s83, s{sJ}")
    a("s_lshl_b32 s83, s83, 2")
    a("s_add_u32 s83, s83, s9")
    a(f"s_lshl_b32 s83, s83, {MS()}")
    a(f"s_add_u32 s83, s83, {MB_H}")
    a(f"s_mul_i32 s12, s{sG}, {108*2048}")
    a(f"s_add_u32 s12, s12, {WS_HF}")
    a("s_lshl_b32 s8, s78, 11")
    a("s_add_u32 s82, s12, s8")
    a("s_lshl_b32 s8, s6, 13")
    a("s_add_u32 s12, s12, s8")
    a(f"s_mov_b32 s{SRD_H}, s{P_WS}")
    a(f"s_mov_b32 s{SRD_H+1}, s{P_WS+1}")
    a("s_cmp_eq_u32 s9, 3")
    a("s_cselect_b32 s8, 24, 28")
    a("s_lshl_b32 s8, s8, 11")
    a(f"s_add_u32 s{SRD_H+2}, s82, s8")
    a("s_mul_i32 s8, s6, 37")
    a("s_lshr_b32 s8, s8, 8")
    a("s_mul_i32 s7, s8, 7")
    a("s_sub_u32 s7, s6, s7")
    a(f"s_lshl_b32 s8, s8, {MS()}")
    a(f"s_lshl_b32 s7, s7, {FS()}")
    a(f"s_lshl_b32 s13, s{sG}, {MS()+5}")
    a("s_add_u32 s13, s13, s8")
    a("s_add_u32 s13, s13, s7")
    a(f"s_add_u32 s13, s13, {MB_H}")
    a(f"v_lshlrev_b32 v1, {MS()+2}, v0")
    a(f"v_mov_b32 v14, s{sTAG}")
    def wd_dma_ops(slot):
        ops = []
        for i in range(3):
            def op(i=i):
                a(f"s_add_u32 m0, s10, {slot*4096 + i*1024}")
                a("s_nop 0")
                a(f"buffer_load_dwordx4 v{WOFF+i}, {S4(SRD_WD)}, s11 offen lds")
                if i == 2: a(f"s_add_u32 s11, s11, {16*1280}")
            ops.append(op)
        return ops
    def wo_stage(sl, sbase):
        for s in range(4):
            a(f"s_mul_i32 s7, s9, {80*1280}")
            a(f"s_add_u32 s7, s7, {(sl*320 + s*20)*1280}")
            for i in range(4):
                a(f"s_add_u32 m0, s{sbase}, {s*4096 + i*1024}")
                a("s_nop 0")
                a(f"buffer_load_dwordx4 v{WOFF+i}, {S4(SRD_WO)}, s7 offen lds")
    def wo_reads():
        for s5 in range(5):
            for t in range(3):
                f = WF + s5 * 12 + 4 * t
                if s5 < 4:
                    a(f"ds_read_b64_tr_b16 {vr(f,2)}, v{TC+t} offset:{s5*4096}")
                    a(f"ds_read_b64_tr_b16 {vr(f+2,2)}, v{TC+t} offset:{s5*4096+8*192}")
                else:
                    a(f"ds_read_b64_tr_b16 {vr(f,2)}, v{TD+t} offset:{16*192}")
                    a(f"ds_read_b64_tr_b16 {vr(f+2,2)}, v{TD+t} offset:{4096+16*192}")
    a("s_setprio 0")
    lds_wait(a, C_F1, 5, 12, 7, sleep=4)
    a("s_waitcnt vmcnt(0)")
    UG = OPT.get("ungate", 0)
    if UG == 2: lds_wait(a, C_QR, 4, 12, 7, sleep=4)
    if UG:
        for n in range(4):
            for op in wd_dma_ops(n): op()
        wo_stage(0, 84)
        a("s_waitcnt vmcnt(0)")
        wo_reads()
    if UG != 2: lds_wait(a, C_QR, 4, 12, 7, sleep=4)
    if OPT.get("hdelay"): a(f"s_sleep {OPT['hdelay']}")
    a("s_cmp_ge_u32 s6, 27")
    a("s_cbranch_scc1 h_st_skip")
    for t in range(4):
        for rt in range(2):
            a(f"buffer_store_dwordx4 {vr(HP+(t*2+rt)*4,4)}, v11, {S4(SRD_WS)}, s12 offen offset:{(t&1)*2048+rt*1024} sc1")
        if t == 1: a("s_add_u32 s12, s12, 4096")
    a.label("h_st_skip")
    if not UG:
        for n in range(4):
            for op in wd_dma_ops(n): op()
    a("s_cmp_ge_u32 s6, 27")
    a("s_cbranch_scc1 h_fl_skip")
    a(f"s_waitcnt vmcnt({0 if UG else 12})")
    a("s_mov_b64 exec, 0xff")
    a(f"buffer_store_dword v14, v1, {S4(SRD_WS)}, s13 offen sc1")
    a("s_mov_b64 exec, -1")
    a.label("h_fl_skip")
    if not UG:
        wo_stage(0, 84)
        a("s_waitcnt vmcnt(0)")
        wo_reads()
    flag_poll(a, 15, 83, 13, 8, sleep=OPT.get("hsleep", 8))
    stamp(a, 8)
    def h_ops(slot):
        return [lambda: a(f"buffer_load_dwordx4 {vr(BB+slot*8,4)}, v{vBX}, {S4(SRD_H)}, s82 offen sc1"),
                lambda: (a(f"buffer_load_dwordx4 {vr(BB+slot*8+4,4)}, v{vBY}, {S4(SRD_H)}, s82 offen sc1"), a("s_add_u32 s82, s82, 2048"))]
    for n in range(4):
        for op in h_ops(n): op()
    def f2_read_ops(u):
        fb = FB2 + (u & 1) * 12
        slot = u % 4
        ops = []
        for t in range(3):
            ops.append(lambda t=t: a(f"ds_read_b64_tr_b16 {vr(fb+4*t,2)}, v{TB+t} offset:{slot*4096}"))
            ops.append(lambda t=t: a(f"ds_read_b64_tr_b16 {vr(fb+4*t+2,2)}, v{TB+t} offset:{slot*4096+4*192}"))
        return ops
    def mm5(fb, bx, by, acc, c=None):
        return [lambda: mfma32(a, acc + 0, fb + 0, bx, c), lambda: mfma32(a, acc + 16, fb + 0, by, c),
                lambda: mfma32(a, acc + 32, fb + 4, bx, c), lambda: mfma32(a, acc + 48, fb + 4, by, c),
                lambda: mfma32(a, acc + 64, fb + 8, bx, c)]
    for op in f2_read_ops(0): op()
    a("s_sub_u32 s7, s10, s84")
    a("s_waitcnt lgkmcnt(6)")
    for t in range(6): a(f"v_add_u32 v{TC+t}, s7, v{TC+t}")
    DEC = OPT.get("dec", 1)
    if DEC: lds_signal(a, C_F2, 12)
    a("s_cmp_eq_u32 s9, 3")
    a("s_cselect_b32 s8, 6, 7")
    if OPT.get("f2it"): a(f"s_mov_b32 s8, {OPT['f2it']}")
    a("s_waitcnt vmcnt(0)")
    a(f"s_setprio {OPT['g2prio']}")
    loop_align(a, "p2", "f2_loop")
    a.label("f2_loop")
    for u in range(4):
        a("s_waitcnt vmcnt(10) lgkmcnt(0)")
        mm = mm5(FB2 + (u & 1) * 12, BB + u * 8, BB + u * 8 + 4, ACC2)
        interleave(a, mm, f2_read_ops(u + 1) + wd_dma_ops(u), [3, 3, 1, 1, 1])
        for op in h_ops(u): op()
    a("s_sub_u32 s8, s8, 1")
    a("s_cmp_lg_u32 s8, 0")
    a("s_cbranch_scc1 f2_loop")
    a(f"s_setprio {OPT['eprio']}")
    a("s_waitcnt vmcnt(0) lgkmcnt(0)")
    stamp(a, 9)
    if not DEC: wo_stage(1, 10)
    a("v_and_b32 v1, 31, v0")
    a("v_mul_u32_u24 v1, 1280, v1")
    a("v_lshrrev_b32 v12, 5, v0")
    a("v_lshl_add_u32 v1, v12, 3, v1")
    a("s_lshl_b32 s7, s9, 4")
    a("s_add_u32 s7, s7, s77")
    a(f"s_mul_i32 s8, s{sG}, {64*1280}")
    a("s_add_u32 s7, s7, s8")
    a(f"s_mul_i32 s8, s76, {32*1280}")
    a(f"s_sub_u32 s11, {32*1280}, s8")
    a("s_add_u32 s8, s8, s7")
    a("s_add_u32 s11, s11, s7")
    a("s_add_u32 s83, s79, s8")
    a("s_add_u32 s85, s79, s11")
    a("s_add_u32 s6, s80, s8")
    a("s_add_u32 s12, s80, s11")
    a("s_add_u32 s13, s81, s8")
    US = [83, 85, 6, 12, 13]
    XPR = [236, 238, 2, 4, 6]
    def xloads():
        for u in range(5):
            a(f"buffer_load_dwordx2 {vr(XPR[u],2)}, v1, {S4(SRD_X)}, s{US[u]} offen")
    if not DEC: xloads()
    RA = 12
    def blk_off(u, d): return (u * 3 + (d - 1)) * 1024
    def red_write(acc, base, cnt, vt):
        a(f"v_lshlrev_b32 v{RA}, 4, v0")
        for d in range(1, 4):
            a(f"s_sub_u32 s7, s9, {d}")
            a("s_and_b32 s7, s7, 3")
            a("s_lshl_b32 s7, s7, 14")
            if base: a(f"s_add_u32 s7, s7, {base}")
            a(f"v_add_u32 v{RA+d}, s7, v{RA}")
        a(f"v_add_u32 v{RA}, s{10 if base else 84}, v{RA}")
        for u in range(5):
            for d in range(1, 4):
                a(f"ds_write_b128 v{RA}, {vr(acc+16*u+4*d,4)} offset:{blk_off(u,d)}")
        lds_signal(a, cnt, vt)
    def red_read(RR, cnt):
        lds_wait(a, cnt, 4, RR, 7, sleep=CS())
        for u in range(5):
            for d in range(1, 4):
                a(f"ds_read_b128 {vr(RR+u*12+(d-1)*4,4)}, v{RA+d} offset:{blk_off(u,d)}")
    def red_sum(acc, RR, u):
        r = RR + u * 12
        for i in (0, 2):
            a(f"v_pk_add_f32 {vr(r+i,2)}, {vr(r+i,2)}, {vr(r+4+i,2)}")
            a(f"v_pk_add_f32 {vr(r+8+i,2)}, {vr(r+8+i,2)}, {vr(acc+16*u+i,2)}")
        for i in (0, 2):
            a(f"v_pk_add_f32 {vr(r+i,2)}, {vr(r+i,2)}, {vr(r+8+i,2)}")
    RR = 16
    red_write(ACC2, L_RING if DEC else 0, C_G1, RR)
    red_read(RR, C_G1)
    lds_signal(a, C_G1 if DEC else C_F2, 76)
    if DEC:
        lds_wait(a, C_G1, 8, 76, 7, sleep=0)
        wo_stage(1, 10)
        xloads()
    GG = 240
    for u in range(5):
        red_sum(ACC2, RR, u)
        r = RR + u * 12
        for i in range(4): a(f"v_mul_f32 v{r+4+i}, {NL2E}, v{r+i}")
        for i in range(4): a(f"v_exp_f32 v{r+4+i}, v{r+4+i}")
        for i in range(4): a(f"v_add_f32 v{r+4+i}, 1.0, v{r+4+i}")
        for i in range(4): a(f"v_rcp_f32 v{r+4+i}, v{r+4+i}")
        a("s_nop 0")
        for i in range(4): a(f"v_mul_f32 v{r+i}, v{r+i}, v{r+4+i}")
        a(f"v_cvt_pk_bf16_f32 v{GG+2*u}, v{r}, v{r+1}")
        a(f"v_cvt_pk_bf16_f32 v{GG+2*u+1}, v{r+2}, v{r+3}")
    stamp(a, 10)
    ACC3 = 80
    def ob(k): return 16 + k * 8 if k < 8 else 220 + (k - 8) * 8
    a("v_min_u32 v12, 7, v0")
    a(f"v_lshlrev_b32 v12, {FS()}, v12")
    a(f"s_lshl_b32 s7, s{sG}, 3")
    a(f"s_add_u32 s7, s7, s{sJ}")
    a("s_lshl_b32 s7, s7, 2")
    a("s_add_u32 s7, s7, s9")
    a(f"s_lshl_b32 s7, s7, {MS()}")
    a(f"s_add_u32 s7, s7, {MB_O}")
    a(f"s_mul_i32 s82, s{sG}, {40*2048}")
    a(f"s_mul_i32 s8, s9, {5*2048}")
    a("s_add_u32 s82, s82, s8")
    a(f"s_add_u32 s82, s82, {WS_OF}")
    def wo_read_step(s5):
        for t in range(3):
            f = WF + s5 * 12 + 4 * t
            if s5 < 4:
                a(f"ds_read_b64_tr_b16 {vr(f,2)}, v{TC+t} offset:{s5*4096}")
                a(f"ds_read_b64_tr_b16 {vr(f+2,2)}, v{TC+t} offset:{s5*4096+8*192}")
            else:
                a(f"ds_read_b64_tr_b16 {vr(f,2)}, v{TD+t} offset:{16*192}")
                a(f"ds_read_b64_tr_b16 {vr(f+2,2)}, v{TD+t} offset:{4096+16*192}")
    stamp(a, 11)
    def oloads(sl):
        for k in range(5 * sl, 5 * sl + 5):
            a(f"buffer_load_dwordx4 {vr(ob(k),4)}, v{vBX if k % 5 < 4 else 14}, {S4(SRD_WS)}, s82 offen sc1")
            a(f"buffer_load_dwordx4 {vr(ob(k)+4,4)}, v{vBY if k % 5 < 4 else 15}, {S4(SRD_WS)}, s82 offen sc1")
            a("s_add_u32 s82, s82, 2048")
        a(f"s_add_u32 s82, s82, {15*2048}")
    def omm(sl, younger):
        for k in range(5):
            a(f"s_waitcnt vmcnt({8-2*k+younger})" + (f" lgkmcnt({min(15, 24-6*k)})" if sl else ""))
            kk = 5 * sl + k
            if k == 4:
                L1 = a.newlabel("f5o"); L2 = a.newlabel("f5d")
                a("s_cmp_lg_u32 s76, 0")
                a(f"s_cbranch_scc1 {L1}")
                a(f"v_swap_b32 v{ob(kk)+2}, v{ob(kk)+4}")
                a(f"v_swap_b32 v{ob(kk)+3}, v{ob(kk)+5}")
                a(f"s_branch {L2}")
                a.label(L1)
                a(f"v_swap_b32 v{ob(kk)}, v{ob(kk)+6}")
                a(f"v_swap_b32 v{ob(kk)+1}, v{ob(kk)+7}")
                a.label(L2)
                a("s_nop 1")
            for m in mm5(WF + k * 12, ob(kk), ob(kk) + 4, ACC3, "0" if kk == 0 else None): m()
            if sl == 0: wo_read_step(k)
    a("v_and_b32 v14, 31, v0")
    a("v_lshlrev_b32 v14, 4, v14")
    a("v_lshrrev_b32 v15, 5, v0")
    a("v_lshl_add_u32 v14, v15, 10, v14")
    a("s_lshl_b32 s8, s76, 9")
    a("v_add_u32 v14, s8, v14")
    a("v_xor_b32 v15, 0x200, v14")
    def pollload():
        if OPT.get("apoll"):
            a(f"v_mov_b32 v13, s{sTAG}")
            a("s_mov_b64 exec, 0xff")
            a("v_mov_b32 v13, 0")
            a(f"buffer_atomic_or v13, v12, {S4(SRD_WS)}, s7 offen sc0 sc1")
            a("s_mov_b64 exec, -1")
        else: a(f"buffer_load_dword v13, v12, {S4(SRD_WS)}, s7 offen {PF()}")
    a(f"s_setprio {OPT.get('oprio', 3)}")
    if OPT.get("ogate", 0):
        a("s_mov_b32 s78, s7")
        lds_wait(a, C_A1, OPT.get("ogate", 0), 76, 7, sleep=4)
        a("s_mov_b32 s7, s78")
        if OPT.get("odelay", 0): a(f"s_sleep {OPT['odelay']}")
        else: a("s_nop 3")
    a(f"s_mov_b32 s8, {POLL_CAP}")
    a.label("o_poll0")
    pollload()
    a("s_waitcnt vmcnt(0)")
    a(f"v_cmp_ne_u32 vcc, s{sTAG}, v13")
    a("s_and_b32 s11, vcc_lo, 15")
    a("s_cbranch_scc0 o_go0")
    a(f"s_sleep {OPT.get('osleep', 16)}")
    a("s_sub_u32 s8, s8, 1")
    a("s_cmp_lg_u32 s8, 0")
    a("s_cbranch_scc1 o_poll0")
    a.label("o_go0")
    a("s_setprio 3")
    tstamp(a, 12)
    oloads(0)
    a("s_cbranch_vccnz o_slow")
    oloads(1)
    omm(0, 10)
    a("s_branch o_second")
    a.label("o_slow")
    pollload()
    omm(0, 1)
    a("s_waitcnt vmcnt(0)")
    a(f"v_cmp_ne_u32 vcc, s{sTAG}, v13")
    a("s_cbranch_vccz o_go1")
    if OPT.get("pp", 0): flag_poll_pipe(a, 12, 7, [13, 8, 11], 8, OPT.get("ppgap", 3))
    else: flag_poll(a, 12, 7, 13, 8, sleep=OPT.get("osleep2", 8), amask=(0xf0, 0))
    a.label("o_go1")
    oloads(1)
    a.label("o_second")
    tstamp(a, 1)
    omm(1, 0)
    RR = 160
    tstamp(a, 3)
    red_write(ACC3, L_RING, C_G2, 230)
    tstamp(a, 4)
    a("s_mov_b32 s78, 0xffff0000")
    for u in range(5):
        t = 16 + 8 * u
        x = XPR[u]
        a(f"v_lshlrev_b32 v{t}, 16, v{x}")
        a(f"v_and_b32 v{t+1}, s78, v{x}")
        a(f"v_lshlrev_b32 v{t+2}, 16, v{x+1}")
        a(f"v_and_b32 v{t+3}, s78, v{x+1}")
        a(f"v_lshlrev_b32 v{t+4}, 16, v{GG+2*u}")
        a(f"v_and_b32 v{t+5}, s78, v{GG+2*u}")
        a(f"v_lshlrev_b32 v{t+6}, 16, v{GG+2*u+1}")
        a(f"v_and_b32 v{t+7}, s78, v{GG+2*u+1}")
    red_read(RR, C_G2)
    tstamp(a, 5)
    for u in range(5):
        a(f"s_waitcnt lgkmcnt({12-3*u})")
        t = 16 + 8 * u
        r = RR + u * 12
        red_sum(ACC3, RR, u)
        for i in (0, 2):
            a(f"v_pk_fma_f32 {vr(t+i,2)}, {vr(r+i,2)}, {vr(t+4+i,2)}, {vr(t+i,2)}")
        a(f"v_cvt_pk_bf16_f32 v{t+4}, v{t}, v{t+1}")
        a(f"v_cvt_pk_bf16_f32 v{t+5}, v{t+2}, v{t+3}")
        a(f"buffer_store_dwordx2 {vr(t+4,2)}, v1, {S4(SRD_OUT)}, s{US[u]} offen")

def build():
    a = Asm()
    hdr = open("cdna_kernels/" + NAME + ".s.ref").read().split("\n")
    head = [l for l in hdr if l.startswith(";") and "@launch" not in l]
    out = "\n".join(head) + "\n"
    out += f"; @launch grid=(256,1,1) block=(512,1,1) lds={LDS_TOTAL}\n"
    out += '.amdgcn_target "amdgcn-amd-amdhsa--gfx950"\n.text\n'
    a.lines += [f".globl {KNAME}", ".p2align 8", f".type {KNAME},@function"]
    a.label(KNAME)
    ln = emit_prologue(a)
    emit_role_a(a)
    emit_role_g(a, ln)
    a.label("k_end")
    if OPT.get("x_fix"):
        if "x_fixw" in OPT:
            a(f"s_cmp_lg_u32 s2, {OPT['x_fixw']}")
            a("s_cbranch_scc1 k_exit")
        a.label("fix_l")
        a("s_memrealtime s[98:99]")
        a("s_waitcnt lgkmcnt(0)")
        a("s_sub_u32 s98, s98, s100")
        a(f"s_cmp_lt_u32 s98, {OPT['x_fix']}")
        a("s_cbranch_scc1 fix_l")
    stamp_flush(a)
    a.label("k_exit")
    a("s_endpgm")
    a.label("code_end")
    if OPT.get("align"):
        a.lines, npro, nnop = align_pass(a.lines, use_nop=(OPT["align"] == 2))
        print("align: promoted", npro, "nops", nnop, file=sys.stderr)
    probs = check_hazards(a.lines)
    for p in probs: print(p, file=sys.stderr)
    out += a.text()
    out += f""".section .rodata,"a"
.p2align 6
.amdhsa_kernel {KNAME}
  .amdhsa_next_free_vgpr 256
  .amdhsa_next_free_sgpr 102
  .amdhsa_accum_offset 256
  .amdhsa_group_segment_fixed_size 0
  .amdhsa_kernarg_size 96
  .amdhsa_user_sgpr_count 2
  .amdhsa_user_sgpr_kernarg_segment_ptr 1
  .amdhsa_system_sgpr_workgroup_id_x 1
.end_amdhsa_kernel
"""
    return out

if __name__ == "__main__":
    path = sys.argv[1] if len(sys.argv) > 1 else "cdna_kernels/" + NAME + ".s"
    for kv in sys.argv[2:]:
        k, v = kv.split("=")
        OPT[k] = int(v)
    open(path, "w").write(build())
```

```python
import sys, struct, os
from asmlib import *

NAME = "recurrent_scan__grouped_kv_mqa__swiglu_ffn__prompt"
KNAME = NAME + "_kernel"
S, D, H, DH, F = 2048, 640, 32, 20, 1728
WS_EPOCH = 0
FL_KV = 0x1000
MB_H = 0xF00000
MB_O = 0x1000000
MB_Q = 0x1100000
WS_QG = 0x60000
WS_QGB = 0xC00000
WS_KV = 0x10000
WS_OF = 0x800000
WS_STAMP = 0xB00000
WS_HF = 0x100000
WS_SIZE = 0x1200000
KVT = 3584
OOB = 0x7f000000
POLL_CAP = 3000

OPT = dict(stamp=False, touch=True, aprio=1, gprio=2, eprio=2, mapping=3, codetouch=True, kvsleep=16, g2prio=0, kvprio=3, ldprio=3, f1hi=0, clus=1)

def f32bits(x): return struct.unpack("<I", struct.pack("<f", x))[0]
QSCALE = (DH ** -0.5) * 1.4426950408889634
NL2E = hex(f32bits(-1.4426950408889634))

sWV, sG, sJ = 3, 4, 5
sTAG = 15
sRB = 85
sIDX = 14
P_X, P_WQ, P_WK, P_WV, P_WO, P_BX, P_WG, P_WU, P_WD, P_OUT, P_DBG, P_WS = [16 + 2 * i for i in range(12)]
SRD_X, SRD_WQ, SRD_WKV, SRD_WO, SRD_WG, SRD_WU, SRD_WD, SRD_OUT, SRD_WS = 40, 44, 48, 52, 56, 60, 64, 68, 72
sE = 84
L_XN = 0
L_RING = 81920
L_WKV = 147456
L_CNT = 162816
L_H = 0
L_EXT = 32768
LDS_TOTAL = 163840
C_F1, C_A1, C_G1, C_G2, C_A2, C_BAD, C_KVD, C_QR, C_F2, C_MX, C_MID = 0, 4, 8, 12, 16, 20, 24, 28, 32, 36, 40
SRD_KVR = SRD_WKV
SRD_H = SRD_WQ

def CS(): return OPT.get('cs', 0)
def PF(): return ['sc1', 'sc0 sc1', 'sc1 nt', 'sc0 sc1 nt'][OPT.get('pf', 0)]
def SF(): return ['sc1', 'sc0 sc1'][OPT.get('sf', 0)]
def FS(): return OPT.get('fs', 7)
def MS(): return max(7, FS() + 3)
def S4(b): return f"s[{b}:{b+3}]"
def srd(a, dst, ptr, nbytes):
    a(f"s_mov_b32 s{dst}, s{ptr}")
    a(f"s_mov_b32 s{dst+1}, s{ptr+1}")
    a(f"s_mov_b32 s{dst+2}, {nbytes}")
    a(f"s_mov_b32 s{dst+3}, 0x20000")

NST = 14
def stamp(a, i):
    if not OPT["stamp"]: return
    a("s_memtime s[98:99]" if OPT["stamp"] == 1 else "s_memrealtime s[98:99]")
    a("s_waitcnt lgkmcnt(0)")
    if OPT["stamp"] == 2: a("s_mul_i32 s98, s98, 10")
    a(f"s_mov_b32 s{STR[i]}, s98")
STR = [86+i for i in range(10)] + [26, 27, 100, 101]
def loop_align(a, key, lab):
    if key in OPT:
        a(f"s_branch {lab}")
        a.lines.append(".p2align 8")
        if OPT[key]: a.lines.append(f".fill {OPT[key] // 4}, 4, 0xbf800000")
    else:
        a.lines.append(".p2align 6")
def tstamp(a, i):
    if OPT.get("tail") or i >= 12: stamp(a, i)
def stamp_head(a):
    if not OPT["stamp"]: return
    for i in range(NST): a(f"s_mov_b32 s{STR[i]}, 0")
    a("s_memrealtime s[96:97]")
    stamp(a, 12)
    if OPT["stamp"] == 2: a("s_mul_i32 s78, s78, 10")
    a(f"s_mov_b32 s{STR[0]}, s78")
def stamp_flush(a):
    if not OPT["stamp"]: return
    stamp(a, NST-1)
    a("s_memrealtime s[98:99]")
    a("s_waitcnt lgkmcnt(0)")
    a("s_mov_b32 s97, s98")
    a("s_lshl_b32 s98, s2, 3")
    a(f"s_add_u32 s98, s98, s{sWV}")
    a("s_lshl_b32 s98, s98, 6")
    a(f"s_add_u32 s98, s98, {WS_STAMP}")
    a("s_mov_b64 exec, 1")
    a("v_mov_b32 v0, 0")
    for i, r in enumerate(STR + [96, 97]): a(f"v_mov_b32 v{4+i}, s{r}")
    for q in range(4):
        a(f"buffer_store_dwordx4 v[{4+4*q}:{7+4*q}], v0, {S4(SRD_WS)}, s98 offen offset:{16*q}")
    if OPT.get("dbgout"):
        srd(a, SRD_X, P_DBG, 256)
        a("v_not_b32 v20, v18")
        a(f"buffer_atomic_umax v19, v0, {S4(SRD_X)}, 0 offen")
        a(f"buffer_atomic_umax v20, v0, {S4(SRD_X)}, 0 offen offset:4")
        a(f"buffer_atomic_umax v18, v0, {S4(SRD_X)}, 0 offen offset:8")
        a(f"s_lshl_b32 s98, s2, 3")
        a(f"s_add_u32 s98, s98, s{sWV}")
        a(f"s_cmp_lg_u32 s98, {OPT['dbgout']}")
        a("s_cbranch_scc1 k_exit")
        for i in range(1, 14):
            a(f"v_sub_u32 v{4+i}, v{4+i}, v4")
            a(f"buffer_store_dword v{4+i}, v0, {S4(SRD_X)}, 0 offen offset:{8+4*i}")

def mfma32(a, d, A, B, c=None):
    a(f"v_mfma_f32_32x32x16_bf16 {vr(d,16)}, {vr(A,4)}, {vr(B,4)}, {vr(d,16) if c is None else c}")
def mfma32x8(a, d, A, B, c=None):
    a(f"v_mfma_f32_32x32x8_bf16 {vr(d,16)}, {vr(A,2)}, {vr(B,2)}, {vr(d,16) if c is None else c}")
def mfma16(a, d, A, B, c=None):
    a(f"v_mfma_f32_16x16x32_bf16 {vr(d,4)}, {vr(A,4)}, {vr(B,4)}, {vr(d,4) if c is None else c}")

def interleave(a, main, side, per):
    k = 0
    for i, m in enumerate(main):
        m()
        for _ in range(per[i]):
            if k < len(side):
                side[k](); k += 1
    while k < len(side):
        side[k](); k += 1

def lds_signal(a, cnt, vt):
    a("s_waitcnt lgkmcnt(0)")
    a(f"v_mov_b32 v{vt}, {L_CNT + cnt}")
    a(f"v_mov_b32 v{vt+1}, 1")
    a("s_mov_b64 exec, 1")
    a(f"ds_add_u32 v{vt}, v{vt+1}")
    a("s_mov_b64 exec, -1")
def lds_wait(a, cnt, target, vt, st, sleep=1):
    L = a.newlabel("lw"); Dn = a.newlabel("lwd")
    a(f"v_mov_b32 v{vt}, {L_CNT + cnt}")
    a(f"s_mov_b32 s{st+1}, 0x40000")
    a.label(L)
    a(f"ds_read_b32 v{vt+1}, v{vt}")
    a("s_waitcnt lgkmcnt(0)")
    a(f"v_readfirstlane_b32 s{st}, v{vt+1}")
    a(f"s_cmp_ge_u32 s{st}, {target}")
    a(f"s_cbranch_scc1 {Dn}")
    if sleep: a(f"s_sleep {sleep}")
    a(f"s_sub_u32 s{st+1}, s{st+1}, 1")
    a(f"s_cmp_lg_u32 s{st+1}, 0")
    a(f"s_cbranch_scc1 {L}")
    a.label(Dn)

def flag_set(a, soff, vt):
    a(f"v_mov_b32 v{vt}, 0")
    a(f"v_mov_b32 v{vt+1}, s{sTAG}")
    a("s_waitcnt vmcnt(0)")
    a("s_mov_b64 exec, 1")
    a(f"buffer_store_dword v{vt+1}, v{vt}, {S4(SRD_WS)}, s{soff} offen sc1")
    a("s_mov_b64 exec, -1")
def flag_bcast(a, vaddr, soff, nl, vt):
    a(f"v_mov_b32 v{vt}, s{sTAG}")
    a("s_waitcnt vmcnt(0)")
    a(f"s_mov_b64 exec, {hex((1 << nl) - 1)}")
    a(f"buffer_store_dword v{vt}, v{vaddr}, {S4(SRD_WS)}, s{soff} offen {SF()}")
    a("s_mov_b64 exec, -1")
def flag_poll(a, vaddr, soff, vt, st, two=False, sleep=2, amask=None):
    L = a.newlabel("fp"); Dn = a.newlabel("fpd")
    a(f"s_mov_b32 s{st}, {POLL_CAP}")
    a.label(L)
    if two:
        a(f"buffer_load_dwordx2 {vr(vt,2)}, v{vaddr}, {S4(SRD_WS)}, s{soff} offen sc1")
        a("s_waitcnt vmcnt(0)")
        a(f"v_xor_b32 v{vt}, s{sTAG}, v{vt}")
        a(f"v_xor_b32 v{vt+1}, s{sTAG}, v{vt+1}")
        a(f"v_or_b32 v{vt}, v{vt}, v{vt+1}")
        a(f"v_cmp_ne_u32 vcc, 0, v{vt}")
    elif amask and OPT.get("apoll"):
        a(f"v_mov_b32 v{vt}, s{sTAG}")
        a(f"s_mov_b32 exec_lo, {amask[0]}")
        a(f"s_mov_b32 exec_hi, {amask[1]}")
        a(f"v_mov_b32 v{vt}, 0")
        a(f"buffer_atomic_or v{vt}, v{vaddr}, {S4(SRD_WS)}, s{soff} offen sc0 sc1")
        a("s_mov_b64 exec, -1")
        a("s_waitcnt vmcnt(0)")
        a(f"v_cmp_ne_u32 vcc, s{sTAG}, v{vt}")
    else:
        a(f"buffer_load_dword v{vt}, v{vaddr}, {S4(SRD_WS)}, s{soff} offen {PF()}")
        a("s_waitcnt vmcnt(0)")
        a(f"v_cmp_ne_u32 vcc, s{sTAG}, v{vt}")
    a(f"s_cbranch_vccz {Dn}")
    a(f"s_sleep {sleep}")
    a(f"s_sub_u32 s{st}, s{st}, 1")
    a(f"s_cmp_lg_u32 s{st}, 0")
    a(f"s_cbranch_scc1 {L}")
    a.label(Dn)

def flag_poll_pipe(a, vaddr, soff, regs, st, gap):
    n = len(regs)
    L = a.newlabel("pp"); Dn = a.newlabel("ppd")
    a(f"s_mov_b32 s{st}, {POLL_CAP}")
    a("s_waitcnt vmcnt(0)")
    for r in regs[:-1]:
        a(f"buffer_load_dword v{r}, v{vaddr}, {S4(SRD_WS)}, s{soff} offen sc1")
        a(f"s_sleep {gap}")
    a.label(L)
    for i in range(n):
        a(f"buffer_load_dword v{regs[(i-1) % n]}, v{vaddr}, {S4(SRD_WS)}, s{soff} offen sc1")
        a(f"s_waitcnt vmcnt({n-1})")
        a(f"v_cmp_ne_u32 vcc, s{sTAG}, v{regs[i]}")
        a(f"s_cbranch_vccz {Dn}")
        a(f"s_sleep {gap}")
    a(f"s_sub_u32 s{st}, s{st}, 1")
    a(f"s_cmp_lg_u32 s{st}, 0")
    a(f"s_cbranch_scc1 {L}")
    a.label(Dn)

def xn_read_addrs(a, XA, tmp):
    a(f"v_lshrrev_b32 v{tmp}, 5, v0")
    for m in range(4):
        a(f"v_or_b32 v{XA+m}, {2*m}, v{tmp}")
        a(f"v_xor_b32 v{XA+m}, v{XA+m}, v0")
        a(f"v_lshlrev_b32 v{XA+m}, 4, v{XA+m}")

NSQ = 12
OPT_SCHED_A1 = {7: 2, 8: 2, 9: 3}; OPT_SCHED_A2 = {}
OPT_SCHED_G1 = {9: 4}; OPT_SCHED_G2 = {i: 1 for i in range(10)}
QREG = 144
def qslot(n): return n * 1024
vQO = 15

def emit_prologue(a):
    a("s_cmp_ge_u32 s2, 256")
    a("s_cbranch_scc1 k_exit")
    if OPT["stamp"]: a("s_memtime s[78:79]" if OPT["stamp"] == 1 else "s_memrealtime s[78:79]")
    if OPT.get("x_fix"): a("s_memrealtime s[100:101]")
    a("s_load_dwordx16 s[16:31], s[0:1], 0")
    a("s_load_dwordx8 s[32:39], s[0:1], 64")
    a("v_lshrrev_b32 v1, 6, v0")
    a("v_and_b32 v0, 63, v0")
    a(f"v_readfirstlane_b32 s{sWV}, v1")
    if OPT["mapping"] == 3:
        a("s_bfe_u32 s6, s2, 0x20001")
        a("s_lshl_b32 s6, s6, 3")
        a(f"s_bfe_u32 s{sIDX}, s2, 0x30003")
        a(f"s_add_u32 s{sG}, s6, s{sIDX}")
        a("s_and_b32 s6, s2, 1")
        a("s_lshl_b32 s6, s6, 2")
        a("s_lshr_b32 s7, s2, 6")
        a(f"s_add_u32 s{sJ}, s6, s7")
    elif OPT["mapping"] == 1:
        a("s_and_b32 s6, s2, 7")
        a("s_lshl_b32 s6, s6, 2")
        a("s_bfe_u32 s7, s2, 0x20003")
        a(f"s_add_u32 s{sG}, s6, s7")
        a(f"s_lshr_b32 s{sJ}, s2, 5")
    elif OPT["mapping"] == 4:
        a("s_bfe_u32 s6, s2, 0x10002")
        a("s_lshl_b32 s6, s6, 4")
        a("s_bfe_u32 s7, s2, 0x40003")
        a(f"s_add_u32 s{sG}, s6, s7")
        a("s_and_b32 s6, s2, 3")
        a("s_lshl_b32 s6, s6, 1")
        a("s_lshr_b32 s7, s2, 7")
        a(f"s_add_u32 s{sJ}, s6, s7")
    elif OPT["mapping"] == 5:
        a("s_and_b32 s6, s2, 3")
        a("s_lshl_b32 s6, s6, 3")
        a("s_bfe_u32 s7, s2, 0x30003")
        a(f"s_add_u32 s{sG}, s6, s7")
        a("s_and_b32 s6, s2, 4")
        a("s_lshr_b32 s7, s2, 6")
        a(f"s_add_u32 s{sJ}, s6, s7")
    else:
        raise ValueError
    a("v_lshrrev_b32 v10, 3, v0")
    a("v_and_b32 v11, 7, v0")
    a("v_mul_u32_u24 v12, 1280, v10")
    a("v_lshl_add_u32 v13, v11, 4, v12")
    if OPT.get("rot", 1):
        a(f"s_add_u32 s{sRB}, s{sWV}, s{sJ}")
        a(f"s_and_b32 s{sRB}, s{sRB}, 7")
    else:
        a(f"s_mov_b32 s{sRB}, s{sWV}")
    a(f"s_lshl_b32 s6, s{sG}, 3")
    a(f"s_add_u32 s6, s6, s{sRB}")
    a(f"s_mul_i32 s6, s6, {8*1280}")
    if OPT["codetouch"]:
        a(f"s_cmp_lg_u32 s{sWV}, 1")
        a("s_cbranch_scc1 ct_skip")
        a("s_getpc_b64 s[76:77]")
        a("s_and_b32 s76, s76, 0xffffff00")
        a("s_lshr_b32 s7, s2, 3")
        a("s_lshl_b32 s7, s7, 10")
        a("v_min_u32 v8, 7, v0")
        a("v_lshl_add_u32 v8, v8, 7, s7")
        a(f"v_min_u32 v8, code_end-{KNAME}-4, v8")
        a("global_load_dword v59, v8, s[76:77]")
        a.label("ct_skip")
    a("s_waitcnt lgkmcnt(0)")
    srd(a, SRD_X, P_X, S * D * 2)
    if OPT.get("t0"):
        R0 = OPT["t0"]
        a(f"s_cmp_lg_u32 s{sWV}, {OPT.get('t0w', 0)}")
        a("s_cbranch_scc1 t0_skip")
        srd(a, SRD_WG, P_WG, D * F * 2)
        srd(a, SRD_WU, P_WU, D * F * 2)
        srd(a, SRD_WQ, P_WQ, D * D * 2)
        touch_lin(a, SRD_WG, R0 * 3456 // 256, -(-R0 * 27 // 256), None, 60)
        touch_lin(a, SRD_WU, R0 * 3456 // 256, -(-R0 * 27 // 256), None, 61)
        touch_lin(a, SRD_WQ, R0 * 1280 // 256, -(-R0 * 10 // 256), None, 62)
        a.label("t0_skip")
    XR, DD = 16, 64
    vP, vSum, vSq = 2, 4, 6
    a(f"buffer_load_ushort v{vP}, v12, {S4(SRD_X)}, s6 offen")
    for i in range(10):
        a(f"buffer_load_dwordx4 {vr(XR+4*i,4)}, v13, {S4(SRD_X)}, s6 offen offset:{i*128}")
    a(f"s_load_dword s{sE}, s[{P_WS}:{P_WS+1}], {WS_EPOCH}")
    stamp_head(a)
    srd(a, SRD_WQ, P_WQ, D * D * 2)
    srd(a, SRD_WS, P_WS, WS_SIZE)
    srd(a, SRD_WG, P_WG, D * F * 2)
    srd(a, SRD_WU, P_WU, D * F * 2)
    srd(a, SRD_WD, P_WD, F * D * 2)
    srd(a, SRD_WO, P_WO, D * D * 2)
    srd(a, SRD_OUT, P_OUT, S * D * 2)
    a(f"s_and_b32 s6, s{sJ}, 1")
    a("s_cmp_eq_u32 s6, 0")
    a(f"s_cselect_b32 s{SRD_WKV}, s{P_WK}, s{P_WV}")
    a(f"s_cselect_b32 s{SRD_WKV+1}, s{P_WK+1}, s{P_WV+1}")
    a(f"s_mov_b32 s{SRD_WKV+2}, {D*DH*2}")
    a(f"s_mov_b32 s{SRD_WKV+3}, 0x20000")
    a(f"v_mov_b32 v{vSum}, 0\nv_mov_b32 v{vSum+1}, 0\nv_mov_b32 v{vSq}, 0\nv_mov_b32 v{vSq+1}, 0")
    a("s_mov_b32 s12, 0xffff0000")
    a("v_lshlrev_b32 v14, 4, v0")
    a(f"s_and_b32 s9, s{sWV}, 3")
    a("s_lshl_b32 s10, s9, 14")
    a(f"s_add_u32 s10, s10, {L_RING}")
    a(f"s_cmp_ge_u32 s{sWV}, 4")
    a("s_cbranch_scc1 pro_g")

    def ln(role, side=None, sched1=None, sched2=None, pre_bar=None):
        if role == "A":
            side = []
            if OPT["touch"]:
                side.append(lambda: touch_lin(a, SRD_WG, 8640, 17, 9, 56))
                side.append(lambda: touch_lin(a, SRD_WU, 8640, 17, 9, 57))
                side.append(lambda: touch_lin(a, SRD_WQ, 3200, 7, 9, 58))
            sched1 = {OPT.get("tpos", 9): 3}; sched2 = {}
        issued = [0]
        def do_side(n):
            for _ in range(n):
                if issued[0] < len(side):
                    side[issued[0]](); issued[0] += 1
        do_side(sched1.get(-1, 0))
        a(f"s_waitcnt vmcnt({10 + issued[0]})")
        stamp(a, 1)
        a(f"v_lshlrev_b32 v{vP}, 16, v{vP}")
        for i in range(10):
            a(f"s_waitcnt vmcnt({9-i + issued[0]})")
            for e in range(4):
                d = DD + 8 * i + 2 * e
                a(f"v_lshlrev_b32 v{d}, 16, v{XR+4*i+e}")
                a(f"v_and_b32 v{d+1}, s12, v{XR+4*i+e}")
            for e in range(4):
                d = DD + 8 * i + 2 * e
                a(f"v_pk_add_f32 {vr(d,2)}, {vr(d,2)}, {vr(vP,2)} op_sel_hi:[1,0] neg_lo:[0,1] neg_hi:[0,1]")
            for e in range(4):
                d = DD + 8 * i + 2 * e
                a(f"v_pk_add_f32 {vr(vSum,2)}, {vr(vSum,2)}, {vr(d,2)}")
                a(f"v_pk_fma_f32 {vr(vSq,2)}, {vr(d,2)}, {vr(d,2)}, {vr(vSq,2)}")
            do_side(sched1.get(i, 0))
        stamp(a, 2)
        a(f"v_add_f32 v{vSum}, v{vSum}, v{vSum+1}")
        a(f"v_add_f32 v{vSq}, v{vSq}, v{vSq+1}")
        for ctl in ("quad_perm:[1,0,3,2]", "quad_perm:[2,3,0,1]", "row_half_mirror"):
            a("s_nop 1")
            a(f"v_add_f32_dpp v{vSum}, v{vSum}, v{vSum} {ctl} row_mask:0xf bank_mask:0xf")
            a(f"v_add_f32_dpp v{vSq}, v{vSq}, v{vSq} {ctl} row_mask:0xf bank_mask:0xf")
        inv = f32bits(1.0 / D)
        a(f"v_mul_f32 v{vSum}, {hex(inv)}, v{vSum}")
        a(f"v_mul_f32 v{vSq}, {hex(inv)}, v{vSq}")
        a(f"v_fma_f32 v{vSq}, -v{vSum}, v{vSum}, v{vSq}")
        a(f"v_max_f32 v{vSq}, 0, v{vSq}")
        a(f"v_add_f32 v{vSq}, {hex(f32bits(1e-5))}, v{vSq}")
        a(f"v_rsq_f32 v{vSq}, v{vSq}")
        a(f"s_and_b32 s7, s{sRB}, 3")
        a("s_lshl_b32 s7, s7, 3")
        a(f"v_mul_f32 v{vSum}, v{vSum}, v{vSq}")
        a("v_add_u32 v8, s7, v10")
        a("v_and_b32 v9, 1, v11")
        a("v_lshl_add_u32 v8, v9, 5, v8")
        a("v_xor_b32 v8, v8, v11")
        a("v_lshlrev_b32 v8, 4, v8")
        a("v_lshrrev_b32 v9, 1, v11")
        a("v_lshl_add_u32 v8, v9, 11, v8")
        a(f"s_lshr_b32 s7, s{sRB}, 2")
        a("s_lshl_b32 s7, s7, 10")
        a("v_add_u32 v8, s7, v8")
        a("v_add_u32 v9, 0x10000, v8")
        for i in range(10):
            for e in range(4):
                d = DD + 8 * i + 2 * e
                a(f"v_pk_fma_f32 {vr(d,2)}, {vr(d,2)}, {vr(vSq,2)}, {vr(vSum,2)} op_sel_hi:[1,0,0] neg_lo:[0,0,1] neg_hi:[0,0,1]")
            for e in range(4):
                d = DD + 8 * i + 2 * e
                a(f"v_cvt_pk_bf16_f32 v{XR+4*i+e}, v{d}, v{d+1}")
            off = i * 8192
            a(f"ds_write_b128 v{8 if off < 65536 else 9}, {vr(XR+4*i,4)} offset:{L_XN + off % 65536}")
            do_side(sched2.get(i, 0))
        if role == "A":
            a("v_lshlrev_b32 v8, 2, v0")
            a(f"v_add_u32 v8, {L_CNT}, v8")
            a("v_mov_b32 v9, 0")
            a("ds_write_b32 v8, v9")
            assert issued[0] == len(side)
        if pre_bar: pre_bar()
        a("s_waitcnt lgkmcnt(0)")
        a(f"s_add_u32 s{sE}, s{sE}, 1")
        a(f"s_mul_i32 s{sTAG}, s{sE}, 0x9e3779b1")
        a(f"s_or_b32 s{sTAG}, s{sTAG}, 1")
        stamp(a, 3)
        a("s_barrier")
        if OPT.get("x_idle1"): a(f"s_sleep {OPT['x_idle1']}")
        if role == "G": stamp(a, 4)
        do_side(99)
    ln("A")
    return ln

def emit_kv(a):
    vW0, vW1, vXE, vXO, vXE2, vXO2 = 1, 2, 3, 4, 5, 6
    ACC = 112
    FB = 16
    def wdma(first, n):
        for i in range(n):
            a(f"s_mov_b32 m0, {L_WKV + i*1024}")
            a(f"s_mov_b32 s7, {first + i*1024}")
            a(f"buffer_load_dwordx4 v14, {S4(SRD_WKV)}, s7 offen lds")
    wdma(0, 15)
    a("v_lshrrev_b32 v10, 4, v0")
    a("v_bfe_u32 v11, v0, 2, 2")
    a("v_lshl_add_u32 v11, v10, 3, v11")
    a("v_mul_u32_u24 v11, 40, v11")
    a("v_and_b32 v12, 3, v0")
    a("v_lshl_add_u32 v12, v12, 3, v11")
    a(f"v_add_u32 v{vW0}, {L_WKV}, v12")
    a(f"v_add_u32 v{vW1}, {L_WKV + 32}, v11")
    a(f"s_lshr_b32 s9, s{sJ}, 1")
    a("s_and_b32 s10, s9, 1")
    a("s_lshr_b32 s11, s9, 1")
    a("s_lshl_b32 s12, s10, 4")
    a("v_and_b32 v13, 15, v0")
    a("v_add_u32 v13, s12, v13")
    a("v_and_b32 v15, 1, v10")
    a("v_lshl_add_u32 v15, v15, 5, v13")
    a("v_xor_b32 v15, v15, v10")
    a("v_lshrrev_b32 v7, 1, v10")
    a("v_lshlrev_b32 v7, 11, v7")
    a("s_lshl_b32 s12, s11, 10")
    a("v_add_u32 v7, s12, v7")
    a(f"v_lshl_add_u32 v{vXE}, v15, 4, v7")
    a("v_xor_b32 v15, 4, v15")
    a(f"v_lshl_add_u32 v{vXO}, v15, 4, v7")
    a(f"v_add_u32 v{vXE2}, 0x10000, v{vXE}")
    a(f"v_add_u32 v{vXO2}, 0x10000, v{vXO}")
    def reads(b):
        for t in range(2):
            s = 2 * b + t
            fb = FB + (b & 1) * 24 + t * 12
            wo = (s if s < 12 else s - 12) * 1280
            a(f"ds_read_b64_tr_b16 {vr(fb,2)}, v{vW0} offset:{wo}")
            a(f"ds_read_b64_tr_b16 {vr(fb+2,2)}, v{vW0} offset:{wo+160}")
            a(f"ds_read_b64_tr_b16 {vr(fb+4,2)}, v{vW1} offset:{wo}")
            a(f"ds_read_b64_tr_b16 {vr(fb+6,2)}, v{vW1} offset:{wo+160}")
            off = L_XN + s * 4096
            reg = (vXO if s & 1 else vXE) if off < 65536 else (vXO2 if s & 1 else vXE2)
            a(f"ds_read_b128 {vr(fb+8,4)}, v{reg} offset:{off % 65536}")
    a(f"s_and_b32 s6, s{sJ}, 1")
    a("s_cmp_eq_u32 s6, 1")
    a("s_waitcnt vmcnt(0)")
    a("s_cbranch_scc1 kv_v")
    for kv in (0, 1):
        if kv: a.label("kv_v")
        reads(0)
        for b in range(10):
            if b == 5:
                a("s_waitcnt lgkmcnt(0)")
                wdma(12 * 1280, 10)
            elif b < 9:
                reads(b + 1)
                a("s_waitcnt lgkmcnt(10)")
            else:
                a("s_waitcnt lgkmcnt(0)")
            for t in range(2):
                fb = FB + (b & 1) * 24 + t * 12
                c = "0" if (b == 0 and t == 0) else None
                for ct in range(2):
                    if kv == 0: mfma16(a, ACC + 4 * ct, fb + 4 * ct, fb + 8, c)
                    else:       mfma16(a, ACC + 4 * ct, fb + 8, fb + 4 * ct, c)
            if b == 5:
                a("s_waitcnt vmcnt(0)")
                reads(6)
        a(f"s_lshl_b32 s12, s{sG}, 1")
        a("s_add_u32 s12, s12, s11")
        a(f"s_mul_i32 s12, s12, {KVT}")
        a(f"s_add_u32 s12, s12, {WS_KV}")
        if kv == 0:
            a("v_lshrrev_b32 v2, 1, v10")
            a("v_lshl_add_u32 v2, v2, 5, v13")
            a("v_lshlrev_b32 v2, 4, v2")
            a("v_and_b32 v3, 1, v10")
            a("v_lshl_add_u32 v2, v3, 3, v2")
            a("v_lshl_add_u32 v3, v10, 5, v13")
            a("v_lshlrev_b32 v3, 3, v3")
            a("v_add_u32 v3, 3072, v3")
            a(f"v_mov_b32 v4, {OOB}")
            a("v_cmp_lt_u32 vcc, 1, v10")
            a("s_nop 1")
            a("v_cndmask_b32 v3, v3, v4, vcc")
            for i in range(8): a(f"v_mul_f32 v{ACC+i}, {hex(f32bits(QSCALE))}, v{ACC+i}")
            a(f"v_cvt_pk_bf16_f32 v6, v{ACC}, v{ACC+1}")
            a(f"v_cvt_pk_bf16_f32 v7, v{ACC+2}, v{ACC+3}")
            a(f"v_cvt_pk_bf16_f32 v8, v{ACC+4}, v{ACC+5}")
            a(f"v_cvt_pk_bf16_f32 v9, v{ACC+6}, v{ACC+7}")
            a("v_cmp_eq_u32 vcc, 1, v10")
            a("v_mov_b32 v4, 0x3f803f80")
            a("v_mov_b32 v5, 0x00003f80")
            a("v_cndmask_b32 v8, v8, v4, vcc")
            a("v_cndmask_b32 v9, v9, v5, vcc")
            a("s_branch kv_store")
        else:
            a("v_and_b32 v1, 15, v0")
            a("v_and_b32 v4, 1, v10")
            a("v_lshl_add_u32 v2, v4, 5, v1")
            a("v_lshlrev_b32 v2, 4, v2")
            a("v_lshrrev_b32 v4, 1, v10")
            a("v_lshl_add_u32 v2, v4, 3, v2")
            a("s_lshl_b32 s13, s10, 10")
            a("s_add_u32 s13, s13, 1024")
            a("v_add_u32 v2, s13, v2")
            a("v_add_u32 v3, 256, v2")
            a(f"v_cvt_pk_bf16_f32 v6, v{ACC}, v{ACC+1}")
            a(f"v_cvt_pk_bf16_f32 v7, v{ACC+2}, v{ACC+3}")
            a(f"v_cvt_pk_bf16_f32 v8, v{ACC+4}, v{ACC+5}")
            a(f"v_cvt_pk_bf16_f32 v9, v{ACC+6}, v{ACC+7}")
            a("v_cmp_eq_u32 vcc, 4, v1")
            a("v_mov_b32 v4, 0x3f803f80")
            a("v_mov_b32 v5, 0")
            a("v_cndmask_b32 v4, v5, v4, vcc")
            a("v_cmp_lt_u32 vcc, 3, v1")
            a("s_nop 1")
            a("v_cndmask_b32 v8, v8, v4, vcc")
            a("v_cndmask_b32 v9, v9, v4, vcc")
    a.label("kv_store")
    a(f"buffer_store_dwordx2 v[6:7], v2, {S4(SRD_WS)}, s12 offen sc1")
    a(f"buffer_store_dwordx2 v[8:9], v3, {S4(SRD_WS)}, s12 offen sc1")
    lds_signal(a, C_F1, 10)
    lds_signal(a, C_KVD, 10)
    a(f"s_lshl_b32 s12, s{sG}, 3")
    a(f"s_add_u32 s12, s12, s{sJ}")
    a("s_lshl_b32 s12, s12, 2")
    a(f"s_add_u32 s12, s12, {FL_KV}")
    flag_set(a, 12, 10)

def touch_lin(a, srd_, per_cu, nl, part, dst):
    a(f"v_min_u32 v8, {nl-1}, v0")
    a("v_lshlrev_b32 v8, 7, v8")
    a(f"s_mul_i32 s7, s2, {per_cu}")
    if part is not None:
        a(f"s_mul_i32 s8, s{part}, {nl*128}")
        a("s_add_u32 s7, s7, s8")
    a(f"buffer_load_dword v{dst}, v8, {S4(srd_)}, s7 offen")

def emit_late_touch(a):
    if not OPT["touch"]: return
    a(f"s_and_b32 s6, s{sWV}, 1")
    a("s_waitcnt vmcnt(0)")
    if OPT.get('ltsleep', 0): a(f"s_sleep {OPT.get('ltsleep', 0)}")
    if OPT.get('ltkv', 1): lds_wait(a, C_KVD, 1, 10, 7, sleep=8)
    touch_lin(a, SRD_WD, 8640, 34, 6, 57)
    touch_lin(a, SRD_WO, 3200, 13, 6, 58)

def emit_role_a(a):
    NQ = 8
    OA, QF, SB, KB = 128, 80, 48, 16
    v16, v8 = 2, 3
    a(f"s_cmp_ge_u32 s{sWV}, 2")
    a("s_cbranch_scc1 a_touch")
    a(f"s_cmp_eq_u32 s{sWV}, 1")
    a("s_cbranch_scc1 a_join")
    a(f"s_setprio {OPT['kvprio']}")
    emit_kv(a)
    a("s_setprio 0")
    a("s_branch a_join")
    a.label("a_touch")
    emit_late_touch(a)
    a.label("a_join")
    stamp(a, 4)
    a(f"s_mov_b32 s{SRD_KVR}, s{P_WS}")
    a(f"s_mov_b32 s{SRD_KVR+1}, s{P_WS+1}")
    a(f"s_mul_i32 s{SRD_KVR+2}, s{sWV}, {16*KVT}")
    a(f"s_add_u32 s{SRD_KVR+2}, s{SRD_KVR+2}, {WS_KV + 16*KVT}")
    a(f"v_lshlrev_b32 v{v16}, 4, v0")
    a(f"v_lshlrev_b32 v{v8}, 3, v0")
    a("s_waitcnt vmcnt(0)")
    for i in range(NQ * 16): a(f"v_mov_b32 v{OA+i}, 0")
    for i in range(16): a(f"v_mov_b32 v{SB+16+i}, 0")
    for i in range(16): a(f"v_mov_b32 v{KB+16+i}, 0")
    a("v_and_b32 v6, 31, v0")
    a("v_lshlrev_b32 v6, 4, v6")
    a("v_lshrrev_b32 v7, 5, v0")
    a("v_lshl_add_u32 v7, v7, 9, v6")
    a(f"v_mov_b32 v8, {OOB}")
    a("v_cmp_gt_u32 vcc, 32, v0")
    a(f"s_lshl_b32 s8, s{sJ}, 2")
    a(f"s_add_u32 s8, s8, s{sWV}")
    a("s_mul_i32 s6, s8, 20")
    a("s_add_u32 s9, s6, 19")
    a("s_lshr_b32 s6, s6, 7")
    a("s_lshr_b32 s9, s9, 7")
    a("v_cndmask_b32 v6, v8, v6, vcc")
    a("v_mov_b32 v12, s6")
    a("v_mov_b32 v13, s9")
    a("v_cndmask_b32 v12, v12, v13, vcc")
    a(f"v_lshlrev_b32 v12, {FS()}, v12")
    a(f"s_lshl_b32 s13, s{sG}, 5")
    a("s_add_u32 s13, s13, s8")
    a(f"s_lshl_b32 s13, s13, {MS()}")
    a(f"s_add_u32 s13, s13, {MB_Q}")
    a("s_and_b32 s9, s8, 1")
    a("s_mul_i32 s8, s8, 5")
    a("s_lshr_b32 s8, s8, 1")
    a("s_lshl_b32 s8, s8, 9")
    a(f"s_mul_i32 s6, s{sG}, 81920")
    a("s_add_u32 s8, s8, s6")
    a(f"s_add_u32 s8, s8, {WS_QGB}")
    a("s_lshl_b32 s10, s9, 3")
    a("s_add_u32 s10, s10, s8")
    a("s_mul_i32 s11, s9, 504")
    a("s_add_u32 s11, s11, s8")
    a("s_add_u32 s11, s11, 8")
    for d in range(4):
        a(f"s_add_u32 s8, s{sWV}, {d}")
        a("s_and_b32 s8, s8, 3")
        a("s_mul_i32 s8, s8, 3072")
        a(f"s_add_u32 s8, s8, {L_WKV}")
        a(f"v_add_u32 v{8+d}, s8, v{v16}")
    lds_wait(a, C_KVD, 1, 14, 8, sleep=8)
    lds_wait(a, C_MID, 1, 14, 8, sleep=8)
    a("s_setprio 3")
    tstamp(a, 1)
    a(f"s_lshl_b32 s6, s{sWV}, 8")
    a(f"s_add_u32 s6, s6, {FL_KV}")
    a("v_lshlrev_b32 v4, 2, v0")
    flag_poll(a, 4, 6, 5, 7, sleep=OPT["kvsleep"])
    tstamp(a, 2)
    a(f"s_mul_i32 s7, s{sWV}, {16*KVT}")
    a(f"s_add_u32 s7, s7, {WS_KV}")
    def kvload(b):
        kb = KB + 16 * b
        a(f"buffer_load_dwordx4 {vr(kb,4)}, v{v16}, {S4(SRD_KVR)}, s7 offen sc1")
        a(f"buffer_load_dwordx2 {vr(kb+12,2)}, v{v8}, {S4(SRD_KVR)}, s7 offen offset:3072 sc1")
        a(f"buffer_load_dwordx4 {vr(kb+4,4)}, v{v16}, {S4(SRD_KVR)}, s7 offen offset:1024 sc1")
        a(f"buffer_load_dwordx4 {vr(kb+8,4)}, v{v16}, {S4(SRD_KVR)}, s7 offen offset:2048 sc1")
        a(f"s_add_u32 s7, s7, {KVT}")
    kvload(0)
    lds_wait(a, C_F1, OPT.get("f1wait", 2), 14, 8, sleep=4)
    tstamp(a, 3)
    if OPT.get("qdelay", 0): a(f"s_sleep {OPT['qdelay']}")
    if OPT.get("pp", 0): flag_poll_pipe(a, 12, 13, [4, 5, 13], 8, OPT.get("ppgap", 3))
    else: flag_poll(a, 12, 13, 5, 8, sleep=OPT.get("qsleep", 8), amask=(1, 1))
    stamp(a, 5)
    for rt in range(2):
        if rt:
            a("s_add_u32 s10, s10, 40960")
            a("s_add_u32 s11, s11, 40960")
        a(f"buffer_load_dwordx2 {vr(QF+24+4*rt,2)}, v7, {S4(SRD_WS)}, s10 offen sc1")
        a(f"buffer_load_dwordx2 {vr(QF+24+4*rt+2,2)}, v7, {S4(SRD_WS)}, s11 offen sc1")
        a(f"buffer_load_dwordx2 {vr(QF+44+2*rt,2)}, v6, {S4(SRD_WS)}, s10 offen offset:1024 sc1")
    a("s_waitcnt vmcnt(0)")
    if OPT.get("shift"):
        sh = f32bits(-float(OPT["shift"])) >> 16
        a("v_cmp_lt_u32 vcc, 31, v0")
        a(f"v_mov_b32 v4, {hex(sh)}")
        a("s_nop 0")
        a(f"v_cndmask_b32 v{QF+44}, v{QF+44}, v4, vcc")
        a(f"v_cndmask_b32 v{QF+46}, v{QF+46}, v4, vcc")
    a(f"ds_write_b128 v8, {vr(QF+24,4)}")
    a(f"ds_write_b128 v8, {vr(QF+28,4)} offset:1024")
    a(f"ds_write_b128 v8, {vr(QF+44,4)} offset:2048")
    lds_signal(a, C_QR, 14)
    lds_wait(a, C_QR, 4, 14, 8, sleep=CS())
    for d in range(1, 4):
        a(f"ds_read_b128 {vr(QF+8*(d-1),4)}, v{8+d}")
        a(f"ds_read_b128 {vr(QF+32+4*(d-1),4)}, v{8+d} offset:2048")
        a(f"ds_read_b128 {vr(QF+8*(d-1)+4,4)}, v{8+d} offset:1024")
    a(f"s_setprio {OPT['aprio']}")
    a(f"s_mul_i32 s9, s{sWV}, {6*3072}")
    a(f"v_add_u32 v15, s9, v{v16}")
    a("s_waitcnt lgkmcnt(7)")
    def qk0(n):
        b = (n // NQ) & 1; qt = n % NQ
        if OPT.get("qswap"): mfma32x8(a, SB + 16 * (n & 1), KB + 16 * b + 12, QF + 32 + 2 * qt, "0")
        else: mfma32(a, SB + 16 * (n & 1), KB + 16 * b, QF + 4 * qt, "0")
    def qk1(n):
        b = (n // NQ) & 1; qt = n % NQ
        if OPT.get("qswap"): mfma32(a, SB + 16 * (n & 1), KB + 16 * b, QF + 4 * qt)
        else: mfma32x8(a, SB + 16 * (n & 1), KB + 16 * b + 12, QF + 32 + 2 * qt)
    def pv(n, t):
        b = (n // NQ) & 1; qt = n % NQ
        mfma32(a, OA + 16 * qt, KB + 16 * b + 4 + 4 * t, SB + 16 * (n & 1) + 4 * t)
    sPASS, sPUB, sTGT = 78, 79, 80
    a(f"s_mov_b32 s{sPASS}, 0")
    a(f"s_mov_b32 s{sPUB}, 0")
    a(f"s_mov_b32 s{sTGT}, 4")
    a("s_mov_b32 s83, 0x07060302")
    if OPT.get("x_idle2"): a(f"s_sleep {OPT['x_idle2']}")
    a.label("att_start")
    qk0(0); qk1(0)
    a("s_nop 7"); a("s_nop 2")
    a("s_waitcnt lgkmcnt(0)")
    stamp(a, 6)
    a("s_mov_b32 s8, 8")
    loop_align(a, "pa", "att_loop")
    a.label("att_loop")
    E64 = {0: (), 1: (6, 7), 2: tuple(range(16))}[OPT.get("e64", 0)]
    def slot(n, last=False):
        s = SB + 16 * (n & 1)
        def e(i): a(f"v_exp_f32{'_e64' if i in E64 else ''} v{s+i}, v{s+i}")
        def c(i):
            if OPT.get("perm"): a(f"v_perm_b32 v{s+i}, v{s+2*i+1}, v{s+2*i}, s83")
            else: a(f"v_cvt_pk_bf16_f32 v{s+i}, v{s+2*i}, v{s+2*i+1}")
        e(0); e(1)
        pv((n - 1) % (2 * NQ), 1)
        if OPT.get("spread"):
            if n % NQ < 4 and not last:
                kb = KB + 16 * (((n // NQ) + 1) & 1)
                if OPT["ldprio"]: a(f"s_setprio {OPT['ldprio']}")
                a([f"buffer_load_dwordx4 {vr(kb,4)}, v{v16}, {S4(SRD_KVR)}, s7 offen sc1",
                   f"buffer_load_dwordx2 {vr(kb+12,2)}, v{v8}, {S4(SRD_KVR)}, s7 offen offset:3072 sc1",
                   f"buffer_load_dwordx4 {vr(kb+4,4)}, v{v16}, {S4(SRD_KVR)}, s7 offen offset:1024 sc1",
                   f"buffer_load_dwordx4 {vr(kb+8,4)}, v{v16}, {S4(SRD_KVR)}, s7 offen offset:2048 sc1"][n % NQ])
                if n % NQ == 3: a(f"s_add_u32 s7, s7, {KVT}")
                if OPT["ldprio"]: a(f"s_setprio {OPT['aprio']}")
        elif n % NQ == 0 and not last:
            if OPT["ldprio"]: a(f"s_setprio {OPT['ldprio']}")
            kvload(((n // NQ) + 1) & 1)
            if OPT["ldprio"]: a(f"s_setprio {OPT['aprio']}")
        V = [("e",2),("e",3),("c",0),("c",1),("e",4),("e",5),("e",6),("e",7),("c",2),("c",3),("e",8),("e",9),("e",10),("e",11),("c",4),("c",5),("e",12),("e",13),("e",14),("e",15),("c",6),("c",7)]
        p1, p2, p3 = {0: (5, 11, 17), 1: (4, 7, 12), 2: (3, 7, 12), 3: (4, 8, 12)}[OPT.get("clus", 0)]
        fin = last and n == 2 * NQ - 1
        td = n - NQ - 1
        for i, (k, r) in enumerate(V):
            if i == p1 and not fin:
                if (n + 1) % NQ == 0: a("s_waitcnt vmcnt(0)")
                qk0(n + 1)
            if i == p2 and not fin: qk1(n + 1)
            if i == p3: pv(n, 0)
            if last and 0 <= td < 6 and i in (14, 17, 20):
                q4 = (i - 14) // 3
                a(f"ds_write_b128 v15, {vr(OA+16*td+4*q4,4)} offset:{td*3072+q4*1024}")
            (e if k == "e" else c)(r)
    for n in range(NQ): slot(n)
    a("s_cmp_eq_u32 s8, 1")
    a("s_cbranch_scc1 att_last")
    for n in range(NQ, 2 * NQ): slot(n)
    a("s_sub_u32 s8, s8, 1")
    a("s_branch att_loop")
    a.label("att_last")
    lds_wait(a, C_F2, 4, 4, 8)
    for n in range(NQ, 2 * NQ): slot(n, True)
    a("s_setprio 3")
    a("s_nop 0")
    pv(2 * NQ - 1, 1)
    stamp(a, 7)
    lds_signal(a, C_A1, 6)
    stamp(a, 8)
    a(f"s_mul_i32 s10, s{sG}, 40")
    a(f"s_mul_i32 s11, s{sJ}, 5")
    a("s_add_u32 s10, s10, s11")
    a("s_add_u32 s11, s10, 4")
    a(f"s_add_u32 s10, s10, s{sWV}")
    a("s_lshl_b32 s10, s10, 11")
    a(f"s_add_u32 s10, s10, {WS_OF}")
    a("s_lshl_b32 s11, s11, 11")
    a(f"s_add_u32 s11, s11, {WS_OF}")
    a(f"s_lshl_b32 s12, s{sWV}, 9")
    a(f"v_add_u32 v10, s12, v{v16}")
    a(f"v_mov_b32 v11, {OOB}")
    a("v_cmp_gt_u32 vcc, 32, v0")
    for d in range(1, 4):
        a(f"s_sub_u32 s9, s{sWV}, {d}")
        a("s_and_b32 s9, s9, 3")
        a(f"s_mul_i32 s9, s9, {6*3072}")
        a(f"v_add_u32 v{11+d}, s9, v{v16}")
    a("v_cndmask_b32 v10, v11, v10, vcc")
    a(f"s_cmp_lg_u32 s{sPUB}, 0")
    a("s_cbranch_scc1 att_done")
    a(f"s_mov_b32 s81, {hex(f32bits(2.0**-80))}")
    a(f"s_mov_b32 s82, {hex(f32bits(2.0**60))}")
    a("s_mov_b64 s[76:77], 0")
    lds_wait(a, C_A1, f"s{sTGT}", 4, 8, sleep=CS())
    stamp(a, 9)
    R = OA
    for rt in range(2):
        for d in range(1, 4):
            for q4 in range(3):
                a(f"ds_read_b128 {vr(R+rt*36+(d-1)*12+q4*4,4)}, v{11+d} offset:{(2*(d-1)+rt)*3072+q4*1024}")
    for rt in range(2):
        a(f"s_waitcnt lgkmcnt({9 if rt == 0 else 0})")
        b = R + rt * 36; o = OA + 96 + 16 * rt
        for i in (8, 0, 2, 4, 6, 10):
            a(f"v_pk_add_f32 {vr(o+i,2)}, {vr(o+i,2)}, {vr(b+i,2)}")
            a(f"v_pk_add_f32 {vr(b+12+i,2)}, {vr(b+12+i,2)}, {vr(b+24+i,2)}")
        for i in (8, 0, 2, 4, 6, 10):
            a(f"v_pk_add_f32 {vr(o+i,2)}, {vr(o+i,2)}, {vr(b+12+i,2)}")
        a(f"v_mov_b32 v8, v{o+8}")
        a(f"v_mov_b32 v9, v{o+8}")
        a("s_nop 1")
        a("v_permlane32_swap_b32 v8, v9")
        a("s_nop 1")
        a("v_rcp_f32 v8, v9")
        a("v_cmp_nle_f32 vcc, s81, v9")
        a("s_or_b64 s[76:77], s[76:77], vcc")
        a("v_cmp_nge_f32 vcc, s82, v9")
        a("s_or_b64 s[76:77], s[76:77], vcc")
        for i in range(0, 12, 2):
            a(f"v_pk_mul_f32 {vr(o+i,2)}, {vr(o+i,2)}, v[8:9] op_sel_hi:[1,0]")
        for i in range(4):
            a(f"v_cvt_pk_bf16_f32 v{b+i}, v{o+2*i}, v{o+2*i+1}")
        a(f"buffer_store_dwordx4 {vr(b,4)}, v{v16}, {S4(SRD_WS)}, s10 offen offset:{rt*1024} sc1")
        for i in range(2):
            a(f"v_cvt_pk_bf16_f32 v{R+72+2*rt+i}, v{o+8+2*i}, v{o+8+2*i+1}")
    a(f"buffer_store_dwordx4 {vr(R+72,4)}, v10, {S4(SRD_WS)}, s11 offen sc1")
    a(f"s_lshl_b32 s12, s{sG}, {MS()+5}")
    a(f"s_and_b32 s13, s{sJ}, 3")
    a(f"s_lshl_b32 s13, s13, {MS()}")
    a("s_add_u32 s12, s12, s13")
    a(f"s_and_b32 s13, s{sJ}, 4")
    a(f"s_add_u32 s13, s13, s{sWV}")
    a(f"s_lshl_b32 s13, s13, {FS()}")
    a("s_add_u32 s12, s12, s13")
    a(f"s_add_u32 s12, s12, {MB_O}")
    a(f"v_lshlrev_b32 v8, {MS()+2}, v0")
    stamp(a, 10)
    a(f"s_cmp_lg_u32 s{sPASS}, 0")
    a("s_cbranch_scc1 att_pub")
    a("s_cmp_eq_u64 s[76:77], 0")
    a("s_cbranch_scc1 att_pub")
    lds_signal(a, C_BAD, 4)
    a("s_branch att_nopub")
    a.label("att_pub")
    flag_bcast(a, 8, 12, 8, 9)
    a(f"s_mov_b32 s{sPUB}, 1")
    a.label("att_nopub")
    stamp(a, 11)
    a(f"s_cmp_lg_u32 s{sPASS}, 0")
    a("s_cbranch_scc1 att_done")
    lds_signal(a, C_A2, 4)
    lds_wait(a, C_A2, 4, 4, 8)
    a(f"v_mov_b32 v4, {L_CNT + C_BAD}")
    a("ds_read_b32 v5, v4")
    a("s_waitcnt lgkmcnt(0)")
    a("v_readfirstlane_b32 s8, v5")
    a("s_cmp_eq_u32 s8, 0")
    a("s_cbranch_scc1 att_done")
    MX = KB + 16
    a("s_waitcnt vmcnt(0)")
    for t in range(8): a(f"v_mov_b32 v{MX+t}, 0xff800000")
    if OPT.get("shift"):
        a("v_cmp_gt_u32 vcc, 32, v0")
        a("s_nop 1")
        for t in range(8): a(f"v_cndmask_b32 v{QF+32+2*t}, 0, v{QF+32+2*t}, vcc")
    a(f"s_mul_i32 s7, s{sWV}, {16*KVT}")
    a(f"s_add_u32 s7, s7, {WS_KV}")
    a("s_mov_b32 s8, 16")
    a.label("mx_loop")
    kvload(0)
    a("s_waitcnt vmcnt(0)")
    for t in range(8):
        qk0(t); qk1(t)
        a("s_nop 11")
        sb = SB + 16 * (t & 1)
        for i in range(8):
            a(f"v_max3_f32 v{MX+t}, v{MX+t}, v{sb+2*i}, v{sb+2*i+1}")
    a("s_sub_u32 s8, s8, 1")
    a("s_cmp_lg_u32 s8, 0")
    a("s_cbranch_scc1 mx_loop")
    a("v_lshlrev_b32 v4, 2, v0")
    for d in range(4):
        a(f"s_add_u32 s9, s{sWV}, {d+1}")
        a("s_and_b32 s9, s9, 3")
        a("s_lshl_b32 s9, s9, 9")
        a(f"v_add_u32 v{8+d}, s9, v4")
    a(f"s_lshl_b32 s9, s{sWV}, 11")
    for t in range(8):
        a(f"v_mov_b32 v5, v{MX+t}")
        a("s_nop 1")
        a(f"v_permlane32_swap_b32 v5, v{MX+t}")
        a("s_nop 1")
        a(f"v_max_f32 v{MX+t}, v5, v{MX+t}")
        a(f"v_add_u32 v6, s9, v{8+(t>>1)}")
        a(f"ds_write_b32 v6, v{MX+t} offset:{(t&1)*256}")
    lds_signal(a, C_MX, 4)
    lds_wait(a, C_MX, 4, 4, 8)
    a("s_mov_b32 s9, 0xffff0000")
    a("v_cmp_lt_u32 vcc, 31, v0")
    for t in range(8):
        for w in range(4):
            a(f"ds_read_b32 v{SB+w}, v{8+(t>>1)} offset:{w*2048+(t&1)*256}")
        a("s_waitcnt lgkmcnt(0)")
        a(f"v_max3_f32 v4, v{SB}, v{SB+1}, v{SB+2}")
        a(f"v_max_f32 v4, v4, v{SB+3}")
        a("v_sub_f32 v4, 0, v4")
        a("v_and_b32 v5, s9, v4")
        a("v_sub_f32 v4, v4, v5")
        a("v_and_b32 v6, s9, v4")
        a("v_sub_f32 v4, v4, v6")
        a("v_lshrrev_b32 v4, 16, v4")
        a("v_lshrrev_b32 v5, 16, v5")
        a("v_or_b32 v5, v5, v6")
        a(f"v_cndmask_b32 v{QF+32+2*t}, v{QF+32+2*t}, v5, vcc")
        a(f"v_cndmask_b32 v{QF+32+2*t+1}, v{QF+32+2*t+1}, v4, vcc")
    lds_signal(a, C_MX, 4)
    lds_wait(a, C_MX, 8, 4, 8)
    for i in range(NQ * 16): a(f"v_mov_b32 v{OA+i}, 0")
    for i in range(16): a(f"v_mov_b32 v{SB+16+i}, 0")
    for i in range(16): a(f"v_mov_b32 v{KB+16+i}, 0")
    a(f"s_mul_i32 s7, s{sWV}, {16*KVT}")
    a(f"s_add_u32 s7, s7, {WS_KV}")
    kvload(0)
    a(f"s_mov_b32 s{sPASS}, 1")
    a(f"s_mov_b32 s{sTGT}, 8")
    a("s_waitcnt vmcnt(0)")
    a("s_branch att_start")
    a.label("att_done")
    a(f"s_or_b32 s12, s2, s{sWV}")
    a("s_cmp_lg_u32 s12, 0")
    a("s_cbranch_scc1 k_end")
    a(f"v_mov_b32 v8, {WS_EPOCH}")
    a(f"v_mov_b32 v9, s{sE}")
    a("s_mov_b64 exec, 1")
    a(f"buffer_store_dword v9, v8, {S4(SRD_WS)}, 0 offen sc1")
    a("s_mov_b64 exec, -1")
    a("s_branch k_end")

def emit_role_g(a, ln):
    a.label("pro_g")
    XA, TA = 56, 60
    vGO, vUO = 1, 15
    FB, ACC = 64, 128
    a("s_lshl_b32 s6, s9, 3")
    a(f"s_add_u32 s6, s6, s{sJ}")
    a("s_cmp_ge_u32 s6, 27")
    a("s_cselect_b32 s78, 1280, 0")
    a("s_cselect_b32 s79, 0, 3456")
    a("s_add_u32 s78, s78, s79")
    a("s_lshl_b32 s79, s78, 3")
    a("s_lshl_b32 s80, s78, 4")
    a("s_lshl_b32 s7, s6, 7")
    a("s_mov_b32 s8, 0")
    a("s_cmp_lt_u32 s6, 27")
    a("s_cbranch_scc1 pro_gf")
    for k in range(3):
        a(f"s_mov_b32 s{SRD_WG+k}, s{SRD_WQ+k}")
        a(f"s_mov_b32 s{SRD_WU+k}, s{SRD_WQ+k}")
    a("s_sub_u32 s7, s6, 27")
    a("s_lshl_b32 s7, s7, 8")
    a("s_mov_b32 s8, 128")
    a.label("pro_gf")
    if OPT.get("m0once", 0):
        a("s_sub_u32 s79, s79, 1024")
        a(f"s_sub_u32 s{SRD_WU}, s{SRD_WU}, 2048")
        a(f"s_subb_u32 s{SRD_WU+1}, s{SRD_WU+1}, 0")
        a(f"s_add_u32 s{SRD_WU+2}, s{SRD_WU+2}, 2048")
    a("v_lshrrev_b32 v8, 3, v0")
    a("v_mul_lo_u32 v9, v8, s78")
    a("v_bfe_u32 v12, v0, 1, 2")
    a("v_bfe_u32 v8, v0, 4, 1")
    a("v_xor_b32 v12, v12, v8")
    a("v_and_b32 v8, 1, v0")
    a("v_lshl_add_u32 v9, v8, 4, v9")
    a("v_add_u32 v9, s7, v9")
    a(f"v_lshl_add_u32 v{vGO}, v12, 5, v9")
    a("v_xor_b32 v12, 2, v12")
    a("v_add_u32 v9, s8, v9")
    a(f"v_lshl_add_u32 v{vUO}, v12, 5, v9")
    a("s_mov_b32 s13, 0")
    def f1slot(stage): return (stage & 3) * 4096
    def f1_dma_ops(stage):
        ops = []
        for gu in range(2):
            for i in range(2):
                def op(gu=gu, i=i):
                    if OPT.get("m0once", 0):
                        if gu == 0 and i == 0:
                            a(f"s_add_u32 m0, s10, {f1slot(stage)}")
                            a("s_add_u32 s11, s13, s79")
                        a(f"buffer_load_dwordx4 v{vUO if gu else vGO}, {S4(SRD_WU if gu else SRD_WG)}, {'s11' if i else 's13'} offen offset:{gu*2048+i*1024} lds")
                    else:
                        a(f"s_add_u32 m0, s10, {f1slot(stage) + gu*2048 + i*1024}")
                        if i: a("s_add_u32 s11, s13, s79")
                        else: a("s_nop 0")
                        a(f"buffer_load_dwordx4 v{vUO if gu else vGO}, {S4(SRD_WU if gu else SRD_WG)}, {'s11' if i else 's13'} offen lds")
                    if gu == 1 and i == 1: a("s_add_u32 s13, s13, s80")
                ops.append(op)
        return ops
    xn_read_addrs(a, XA, 8)
    a("v_lshrrev_b32 v12, 5, v0")
    a("v_bfe_u32 v13, v0, 2, 2")
    a("v_lshl_add_u32 v12, v12, 3, v13")
    a("v_lshlrev_b32 v12, 7, v12")
    a("v_bfe_u32 v13, v0, 1, 1")
    a("v_lshl_add_u32 v12, v13, 11, v12")
    a("v_and_b32 v14, 1, v0")
    a("v_lshl_add_u32 v12, v14, 4, v12")
    a("v_bfe_u32 v14, v0, 4, 1")
    a("v_lshl_add_u32 v12, v14, 3, v12")
    a("v_add_u32 v12, s10, v12")
    a("v_bfe_u32 v14, v0, 3, 1")
    a("v_lshl_or_b32 v14, v13, 1, v14")
    for t in range(4):
        a(f"v_xor_b32 v8, {t}, v14")
        a(f"v_lshl_add_u32 v{TA+t}, v8, 5, v12")
    for i in range(16, 128): a(f"v_mov_b32 v{ACC+i}, 0")
    side = []
    for st in range(4): side += f1_dma_ops(st)
    e0 = OPT.get("early", 4)
    def pre_bar():
        for i in range(16): a(f"v_mov_b32 v{ACC+i}, 0")
    ln("G", side, {-1: e0, 9: OPT.get("mid", 2)}, {i: OPT.get("late", 1) for i in range(10)}, pre_bar)
    a(f"s_setprio {OPT['eprio']}")
    def f1_read_ops(u):
        fb = FB + (u & 1) * 24
        so = f1slot(u)
        ops = [lambda: a(f"ds_read_b128 {vr(fb+16,4)}, v{XA+(u&3)} offset:{L_XN+u*2048}"),
               lambda: a(f"ds_read_b128 {vr(fb+20,4)}, v{XA+(u&3)} offset:{L_XN+u*2048+1024}")]
        for t in range(4):
            ops.append(lambda t=t: a(f"ds_read_b64_tr_b16 {vr(fb+4*t,2)}, v{TA+t} offset:{so}"))
            ops.append(lambda t=t: a(f"ds_read_b64_tr_b16 {vr(fb+4*t+2,2)}, v{TA+t} offset:{so+512}"))
        return ops
    DEEP = OPT.get("deep", 1)
    a("s_waitcnt vmcnt(12)")
    for op in f1_read_ops(0): op()
    if DEEP:
        a("s_waitcnt lgkmcnt(0)")
        for op in f1_dma_ops(4): op()
    a("s_mov_b32 s8, 10")
    stamp(a, 5)
    a(f"s_setprio {OPT['gprio']}")
    loop_align(a, "p1", "f1_loop")
    a.label("f1_loop")
    for u in range(4):
        a(f"s_waitcnt vmcnt({(6 if OPT.get('x_half') else 12) if DEEP else 8}) lgkmcnt(0)")
        fb = FB + (u & 1) * 24
        mm = [(lambda t=t, rt=rt: mfma32(a, ACC + (t * 2 + rt) * 16, fb + 4 * t, fb + 16 + 4 * rt)) for t in range(4) for rt in range(2)]
        if DEEP:
            r = f1_read_ops(u + 1)
            dm = f1_dma_ops(u + 1)
            if OPT.get("x_half"): dm = [dm[2], (lambda: None), dm[3], (lambda: None)]
            side = r[2:] + r[:2] + [lambda: a("s_waitcnt lgkmcnt(2)")] + dm
            interleave(a, mm, side, {1: [4, 4, 2, 0, 2, 1, 1, 1], 2: [4, 4, 2, 2, 1, 1, 1, 0], 3: [5, 5, 0, 2, 1, 1, 1, 0]}[DEEP])
        else:
            interleave(a, mm, f1_read_ops(u + 1) + f1_dma_ops(u), [3, 3, 2, 2, 1, 1, 1, 1])
    for m in range(4): a(f"v_add_u32 v{XA+m}, 8192, v{XA+m}")
    a(f"s_cmp_lg_u32 s8, {OPT.get('mid_it', 3)}")
    a("s_cbranch_scc1 f1_nomid")
    a(f"v_mov_b32 v12, {L_CNT + C_MID}")
    a("v_mov_b32 v13, 1")
    a("ds_write_b32 v12, v13")
    a.label("f1_nomid")
    if OPT.get("x_thr"):
        a("s_cmp_ge_u32 s6, 27")
        a("s_cbranch_scc1 thr_skip")
        a(f"s_sleep {OPT['x_thr']}")
        a.label("thr_skip")
    a("s_sub_u32 s8, s8, 1")
    a("s_cmp_lg_u32 s8, 0")
    a("s_cbranch_scc1 f1_loop")
    a(f"s_setprio {OPT['eprio']}")
    stamp(a, 6)
    WOFF = 2
    TB = 6
    vBX, vBY = 9, 10
    HP = 24
    lds_signal(a, C_F1, 12)
    a("s_cmp_lt_u32 s6, 27")
    a("s_cbranch_scc1 f1_epi")
    a("s_setprio 3")
    a("v_lshlrev_b32 v12, 4, v0")
    a("s_sub_u32 s8, s6, 27")
    a("s_lshl_b32 s7, s8, 13")
    a(f"s_mul_i32 s8, s{sG}, 81920")
    a("s_add_u32 s7, s7, s8")
    a(f"s_add_u32 s7, s7, {WS_QGB}")
    a("s_add_u32 s8, s7, 4096")
    a("s_add_u32 s82, s7, 40960")
    a("s_add_u32 s83, s8, 40960")
    for t in range(4):
        for rt in range(2):
            ac = ACC + (t * 2 + rt) * 16
            o = 16 + ((t * 2 + rt) & 3) * 8
            for up in range(2):
                for hi in range(2):
                    r = ac + 8 * hi + 4 * up
                    a(f"v_cvt_pk_bf16_f32 v{o+4*up+2*hi}, v{r}, v{r+1}")
                    a(f"v_cvt_pk_bf16_f32 v{o+4*up+2*hi+1}, v{r+2}, v{r+3}")
                so = [[7, 8], [82, 83]][rt][up]
                a(f"buffer_store_dwordx4 {vr(o+4*up,4)}, v12, {S4(SRD_WS)}, s{so} offen offset:{t*1024} sc1")
    a(f"s_lshl_b32 s7, s{sG}, {MS()+5}")
    a("s_sub_u32 s8, s6, 27")
    a("s_mul_i32 s82, s8, 32")
    a("s_mul_i32 s82, s82, 0x3334")
    a("s_lshr_b32 s82, s82, 16")
    a(f"s_lshl_b32 s8, s8, {FS()}")
    a("s_add_u32 s7, s7, s8")
    a(f"s_add_u32 s7, s7, {MB_Q}")
    a("v_add_u32 v12, s82, v0")
    a("v_min_u32 v12, 31, v12")
    a(f"v_lshlrev_b32 v12, {MS()}, v12")
    flag_bcast(a, 12, 7, 8, 13)
    a(f"s_setprio {OPT['eprio']}")
    a("s_branch f1_epi_skip")
    a.label("f1_epi")
    T = 16
    idx = [(0, 4), (1, 5), (2, 6), (3, 7), (8, 12), (9, 13), (10, 14), (11, 15)]
    a("s_nop 3")
    for t in range(4):
        for rt in range(2):
            ac = ACC + (t * 2 + rt) * 16
            hp = HP + (t * 2 + rt) * 4
            for e, (gi, ui) in enumerate(idx): a(f"v_mul_f32 v{T+e}, {NL2E}, v{ac+gi}")
            for e in range(8): a(f"v_exp_f32 v{T+e}, v{T+e}")
            for e in range(8): a(f"v_add_f32 v{T+e}, 1.0, v{T+e}")
            for e in range(8): a(f"v_rcp_f32 v{T+e}, v{T+e}")
            for e, (gi, ui) in enumerate(idx): a(f"v_mul_f32 v{ac+gi}, v{ac+gi}, v{ac+ui}")
            for e, (gi, ui) in enumerate(idx): a(f"v_mul_f32 v{T+e}, v{T+e}, v{ac+gi}")
            for e in range(4): a(f"v_cvt_pk_bf16_f32 v{hp+e}, v{T+2*e}, v{T+2*e+1}")
    a.label("f1_epi_skip")
    stamp(a, 7)
    FB2, BB, ACC2, WF = 16, 40, 80, 160
    TC, TD = 250, 253
    a(f"s_and_b32 s76, s{sJ}, 1")
    a(f"s_lshr_b32 s77, s{sJ}, 1")
    a("s_mul_i32 s77, s77, 320")
    a("s_lshl_b32 s8, s76, 7")
    a("s_add_u32 s77, s77, s8")
    for i in range(4):
        a(f"v_add_u32 v12, {i*64}, v0")
        a("v_mul_u32_u24 v13, 0xaab, v12")
        a("v_lshrrev_b32 v13, 15, v13")
        a("v_mul_u32_u24 v14, 12, v13")
        a("v_sub_u32 v14, v12, v14")
        a("v_mul_u32_u24 v13, 1280, v13")
        a("v_lshl_add_u32 v13, v14, 4, v13")
        a(f"v_add_u32 v{WOFF+i}, s77, v13")
    a("v_cmp_lt_u32 vcc, 47, v0")
    a(f"v_mov_b32 v12, {OOB}")
    a("s_mul_i32 s78, s9, 28")
    a(f"v_cndmask_b32 v{WOFF+3}, v{WOFF+3}, v12, vcc")
    a(f"s_mul_i32 s11, s78, {16*1280}")
    a(f"s_add_u32 s7, s11, {28*16*1280}")
    a(f"s_min_u32 s{SRD_WD+2}, s7, {F*D*2}")
    a("s_lshl_b32 s84, s9, 14")
    a("s_lshl_b32 s79, s76, 6")
    a("s_add_u32 s80, s79, 64")
    a("s_cmp_eq_u32 s76, 0")
    a("s_cselect_b32 s81, 128, 0")
    a("v_bfe_u32 v12, v0, 2, 2")
    a("v_mul_u32_u24 v12, 192, v12")
    a("v_bfe_u32 v13, v0, 4, 1")
    a("v_bfe_u32 v14, v0, 1, 1")
    a("v_lshl_add_u32 v13, v13, 1, v14")
    a("v_add_u32 v13, s9, v13")
    a("v_and_b32 v13, 3, v13")
    a("v_lshl_add_u32 v12, v13, 4, v12")
    a("v_and_b32 v13, 1, v0")
    a("v_lshl_add_u32 v12, v13, 3, v12")
    a("v_add_u32 v11, s10, v12")
    a("v_lshrrev_b32 v13, 5, v0")
    a(f"v_mul_u32_u24 v14, {8*192}, v13")
    for t, sT in enumerate((79, 80, 81)):
        a(f"v_add3_u32 v{TB+t}, v11, v14, s{sT}")
    a("v_add_u32 v11, s84, v12")
    a(f"v_mul_u32_u24 v14, {4*192}, v13")
    a("v_lshlrev_b32 v15, 13, v13")
    for t, sT in enumerate((79, 80, 81)):
        a(f"v_add3_u32 v{TC+t}, v11, v14, s{sT}")
        a(f"v_add3_u32 v{TD+t}, v11, v15, s{sT}")
    a("v_lshlrev_b32 v11, 4, v0")
    a("s_lshl_b32 s7, s76, 10")
    a(f"v_add_u32 v{vBX}, s7, v11")
    a("s_xor_b32 s7, s7, 1024")
    a(f"v_add_u32 v{vBY}, s7, v11")
    for i in range(80): a(f"v_mov_b32 v{ACC2+i}, 0")
    a("s_cmp_eq_u32 s9, 3")
    a("s_cselect_b32 s7, 5, 6")
    a("v_min_u32 v15, s7, v0")
    a(f"v_lshlrev_b32 v15, {FS()}, v15")
    a(f"s_lshl_b32 s83, s{sG}, 3")
    a(f"s_add_u32 s83, s83, s{sJ}")
    a("s_lshl_b32 s83, s83, 2")
    a("s_add_u32 s83, s83, s9")
    a(f"s_lshl_b32 s83, s83, {MS()}")
    a(f"s_add_u32 s83, s83, {MB_H}")
    a(f"s_mul_i32 s12, s{sG}, {108*2048}")
    a(f"s_add_u32 s12, s12, {WS_HF}")
    a("s_lshl_b32 s8, s78, 11")
    a("s_add_u32 s82, s12, s8")
    a("s_lshl_b32 s8, s6, 13")
    a("s_add_u32 s12, s12, s8")
    a(f"s_mov_b32 s{SRD_H}, s{P_WS}")
    a(f"s_mov_b32 s{SRD_H+1}, s{P_WS+1}")
    a("s_cmp_eq_u32 s9, 3")
    a("s_cselect_b32 s8, 24, 28")
    a("s_lshl_b32 s8, s8, 11")
    a(f"s_add_u32 s{SRD_H+2}, s82, s8")
    a("s_mul_i32 s8, s6, 37")
    a("s_lshr_b32 s8, s8, 8")
    a("s_mul_i32 s7, s8, 7")
    a("s_sub_u32 s7, s6, s7")
    a(f"s_lshl_b32 s8, s8, {MS()}")
    a(f"s_lshl_b32 s7, s7, {FS()}")
    a(f"s_lshl_b32 s13, s{sG}, {MS()+5}")
    a("s_add_u32 s13, s13, s8")
    a("s_add_u32 s13, s13, s7")
    a(f"s_add_u32 s13, s13, {MB_H}")
    a(f"v_lshlrev_b32 v1, {MS()+2}, v0")
    a(f"v_mov_b32 v14, s{sTAG}")
    def wd_dma_ops(slot):
        ops = []
        for i in range(3):
            def op(i=i):
                a(f"s_add_u32 m0, s10, {slot*4096 + i*1024}")
                a("s_nop 0")
                a(f"buffer_load_dwordx4 v{WOFF+i}, {S4(SRD_WD)}, s11 offen lds")
                if i == 2: a(f"s_add_u32 s11, s11, {16*1280}")
            ops.append(op)
        return ops
    def wo_stage(sl, sbase):
        for s in range(4):
            a(f"s_mul_i32 s7, s9, {80*1280}")
            a(f"s_add_u32 s7, s7, {(sl*320 + s*20)*1280}")
            for i in range(4):
                a(f"s_add_u32 m0, s{sbase}, {s*4096 + i*1024}")
                a("s_nop 0")
                a(f"buffer_load_dwordx4 v{WOFF+i}, {S4(SRD_WO)}, s7 offen lds")
    def wo_reads():
        for s5 in range(5):
            for t in range(3):
                f = WF + s5 * 12 + 4 * t
                if s5 < 4:
                    a(f"ds_read_b64_tr_b16 {vr(f,2)}, v{TC+t} offset:{s5*4096}")
                    a(f"ds_read_b64_tr_b16 {vr(f+2,2)}, v{TC+t} offset:{s5*4096+8*192}")
                else:
                    a(f"ds_read_b64_tr_b16 {vr(f,2)}, v{TD+t} offset:{16*192}")
                    a(f"ds_read_b64_tr_b16 {vr(f+2,2)}, v{TD+t} offset:{4096+16*192}")
    a("s_setprio 0")
    lds_wait(a, C_F1, 5, 12, 7, sleep=4)
    a("s_waitcnt vmcnt(0)")
    UG = OPT.get("ungate", 0)
    if UG == 2: lds_wait(a, C_QR, 4, 12, 7, sleep=4)
    if UG:
        for n in range(4):
            for op in wd_dma_ops(n): op()
        wo_stage(0, 84)
        a("s_waitcnt vmcnt(0)")
        wo_reads()
    if UG != 2: lds_wait(a, C_QR, 4, 12, 7, sleep=4)
    if OPT.get("hdelay"): a(f"s_sleep {OPT['hdelay']}")
    a("s_cmp_ge_u32 s6, 27")
    a("s_cbranch_scc1 h_st_skip")
    for t in range(4):
        for rt in range(2):
            a(f"buffer_store_dwordx4 {vr(HP+(t*2+rt)*4,4)}, v11, {S4(SRD_WS)}, s12 offen offset:{(t&1)*2048+rt*1024} sc1")
        if t == 1: a("s_add_u32 s12, s12, 4096")
    a.label("h_st_skip")
    if not UG:
        for n in range(4):
            for op in wd_dma_ops(n): op()
    a("s_cmp_ge_u32 s6, 27")
    a("s_cbranch_scc1 h_fl_skip")
    a(f"s_waitcnt vmcnt({0 if UG else 12})")
    a("s_mov_b64 exec, 0xff")
    a(f"buffer_store_dword v14, v1, {S4(SRD_WS)}, s13 offen sc1")
    a("s_mov_b64 exec, -1")
    a.label("h_fl_skip")
    if not UG:
        wo_stage(0, 84)
        a("s_waitcnt vmcnt(0)")
        wo_reads()
    flag_poll(a, 15, 83, 13, 8, sleep=OPT.get("hsleep", 8))
    stamp(a, 8)
    def h_ops(slot):
        return [lambda: a(f"buffer_load_dwordx4 {vr(BB+slot*8,4)}, v{vBX}, {S4(SRD_H)}, s82 offen sc1"),
                lambda: (a(f"buffer_load_dwordx4 {vr(BB+slot*8+4,4)}, v{vBY}, {S4(SRD_H)}, s82 offen sc1"), a("s_add_u32 s82, s82, 2048"))]
    for n in range(4):
        for op in h_ops(n): op()
    def f2_read_ops(u):
        fb = FB2 + (u & 1) * 12
        slot = u % 4
        ops = []
        for t in range(3):
            ops.append(lambda t=t: a(f"ds_read_b64_tr_b16 {vr(fb+4*t,2)}, v{TB+t} offset:{slot*4096}"))
            ops.append(lambda t=t: a(f"ds_read_b64_tr_b16 {vr(fb+4*t+2,2)}, v{TB+t} offset:{slot*4096+4*192}"))
        return ops
    def mm5(fb, bx, by, acc, c=None):
        return [lambda: mfma32(a, acc + 0, fb + 0, bx, c), lambda: mfma32(a, acc + 16, fb + 0, by, c),
                lambda: mfma32(a, acc + 32, fb + 4, bx, c), lambda: mfma32(a, acc + 48, fb + 4, by, c),
                lambda: mfma32(a, acc + 64, fb + 8, bx, c)]
    for op in f2_read_ops(0): op()
    a("s_sub_u32 s7, s10, s84")
    a("s_waitcnt lgkmcnt(6)")
    for t in range(6): a(f"v_add_u32 v{TC+t}, s7, v{TC+t}")
    DEC = OPT.get("dec", 1)
    if DEC: lds_signal(a, C_F2, 12)
    a("s_cmp_eq_u32 s9, 3")
    a("s_cselect_b32 s8, 6, 7")
    if OPT.get("f2it"): a(f"s_mov_b32 s8, {OPT['f2it']}")
    a("s_waitcnt vmcnt(0)")
    a(f"s_setprio {OPT['g2prio']}")
    loop_align(a, "p2", "f2_loop")
    a.label("f2_loop")
    for u in range(4):
        a(f"s_waitcnt vmcnt({OPT.get('f2v', 10)}) lgkmcnt(0)")
        mm = mm5(FB2 + (u & 1) * 12, BB + u * 8, BB + u * 8 + 4, ACC2)
        interleave(a, mm, f2_read_ops(u + 1) + wd_dma_ops(u), [3, 3, 1, 1, 1])
        for op in h_ops(u): op()
    a("s_sub_u32 s8, s8, 1")
    a("s_cmp_lg_u32 s8, 0")
    a("s_cbranch_scc1 f2_loop")
    a(f"s_setprio {OPT['eprio']}")
    a("s_waitcnt vmcnt(0) lgkmcnt(0)")
    stamp(a, 9)
    if not DEC: wo_stage(1, 10)
    a("v_and_b32 v1, 31, v0")
    a("v_mul_u32_u24 v1, 1280, v1")
    a("v_lshrrev_b32 v12, 5, v0")
    a("v_lshl_add_u32 v1, v12, 3, v1")
    a("s_lshl_b32 s7, s9, 4")
    a("s_add_u32 s7, s7, s77")
    a(f"s_mul_i32 s8, s{sG}, {64*1280}")
    a("s_add_u32 s7, s7, s8")
    a(f"s_mul_i32 s8, s76, {32*1280}")
    a(f"s_sub_u32 s11, {32*1280}, s8")
    a("s_add_u32 s8, s8, s7")
    a("s_add_u32 s11, s11, s7")
    a("s_add_u32 s83, s79, s8")
    a("s_add_u32 s85, s79, s11")
    a("s_add_u32 s6, s80, s8")
    a("s_add_u32 s12, s80, s11")
    a("s_add_u32 s13, s81, s8")
    US = [83, 85, 6, 12, 13]
    XPR = [236, 238, 2, 4, 6]
    def xloads():
        for u in range(5):
            a(f"buffer_load_dwordx2 {vr(XPR[u],2)}, v1, {S4(SRD_X)}, s{US[u]} offen")
    if not DEC: xloads()
    RA = 12
    def blk_off(u, d): return (u * 3 + (d - 1)) * 1024
    def red_write(acc, base, cnt, vt):
        a(f"v_lshlrev_b32 v{RA}, 4, v0")
        for d in range(1, 4):
            a(f"s_sub_u32 s7, s9, {d}")
            a("s_and_b32 s7, s7, 3")
            a("s_lshl_b32 s7, s7, 14")
            if base: a(f"s_add_u32 s7, s7, {base}")
            a(f"v_add_u32 v{RA+d}, s7, v{RA}")
        a(f"v_add_u32 v{RA}, s{10 if base else 84}, v{RA}")
        for u in range(5):
            for d in range(1, 4):
                a(f"ds_write_b128 v{RA}, {vr(acc+16*u+4*d,4)} offset:{blk_off(u,d)}")
        lds_signal(a, cnt, vt)
    def red_read(RR, cnt):
        lds_wait(a, cnt, 4, RR, 7, sleep=CS())
        for u in range(5):
            for d in range(1, 4):
                a(f"ds_read_b128 {vr(RR+u*12+(d-1)*4,4)}, v{RA+d} offset:{blk_off(u,d)}")
    def red_sum(acc, RR, u):
        r = RR + u * 12
        for i in (0, 2):
            a(f"v_pk_add_f32 {vr(r+i,2)}, {vr(r+i,2)}, {vr(r+4+i,2)}")
            a(f"v_pk_add_f32 {vr(r+8+i,2)}, {vr(r+8+i,2)}, {vr(acc+16*u+i,2)}")
        for i in (0, 2):
            a(f"v_pk_add_f32 {vr(r+i,2)}, {vr(r+i,2)}, {vr(r+8+i,2)}")
    RR = 16
    red_write(ACC2, L_RING if DEC else 0, C_G1, RR)
    red_read(RR, C_G1)
    lds_signal(a, C_G1 if DEC else C_F2, 76)
    if DEC:
        lds_wait(a, C_G1, 8, 76, 7, sleep=0)
        wo_stage(1, 10)
        xloads()
    GG = 240
    if OPT.get("defer", 0):
        a("s_setprio 3")
        lds_wait(a, C_A1, OPT.get("defer", 0), 76, 7, sleep=6)
    for u in range(5):
        red_sum(ACC2, RR, u)
        r = RR + u * 12
        for i in range(4): a(f"v_mul_f32 v{r+4+i}, {NL2E}, v{r+i}")
        for i in range(4): a(f"v_exp_f32 v{r+4+i}, v{r+4+i}")
        for i in range(4): a(f"v_add_f32 v{r+4+i}, 1.0, v{r+4+i}")
        for i in range(4): a(f"v_rcp_f32 v{r+4+i}, v{r+4+i}")
        a("s_nop 0")
        for i in range(4): a(f"v_mul_f32 v{r+i}, v{r+i}, v{r+4+i}")
        a(f"v_cvt_pk_bf16_f32 v{GG+2*u}, v{r}, v{r+1}")
        a(f"v_cvt_pk_bf16_f32 v{GG+2*u+1}, v{r+2}, v{r+3}")
    stamp(a, 10)
    ACC3 = 80
    def ob(k): return 16 + k * 8 if k < 8 else 220 + (k - 8) * 8
    a("v_min_u32 v12, 7, v0")
    a(f"v_lshlrev_b32 v12, {FS()}, v12")
    a(f"s_lshl_b32 s7, s{sG}, 3")
    a(f"s_add_u32 s7, s7, s{sJ}")
    a("s_lshl_b32 s7, s7, 2")
    a("s_add_u32 s7, s7, s9")
    a(f"s_lshl_b32 s7, s7, {MS()}")
    a(f"s_add_u32 s7, s7, {MB_O}")
    a(f"s_mul_i32 s82, s{sG}, {40*2048}")
    a(f"s_mul_i32 s8, s9, {5*2048}")
    a("s_add_u32 s82, s82, s8")
    a(f"s_add_u32 s82, s82, {WS_OF}")
    def wo_read_step(s5):
        for t in range(3):
            f = WF + s5 * 12 + 4 * t
            if s5 < 4:
                a(f"ds_read_b64_tr_b16 {vr(f,2)}, v{TC+t} offset:{s5*4096}")
                a(f"ds_read_b64_tr_b16 {vr(f+2,2)}, v{TC+t} offset:{s5*4096+8*192}")
            else:
                a(f"ds_read_b64_tr_b16 {vr(f,2)}, v{TD+t} offset:{16*192}")
                a(f"ds_read_b64_tr_b16 {vr(f+2,2)}, v{TD+t} offset:{4096+16*192}")
    stamp(a, 11)
    def oloads(sl):
        for k in range(5 * sl, 5 * sl + 5):
            a(f"buffer_load_dwordx4 {vr(ob(k),4)}, v{vBX if k % 5 < 4 else 14}, {S4(SRD_WS)}, s82 offen sc1")
            a(f"buffer_load_dwordx4 {vr(ob(k)+4,4)}, v{vBY if k % 5 < 4 else 15}, {S4(SRD_WS)}, s82 offen sc1")
            a("s_add_u32 s82, s82, 2048")
        a(f"s_add_u32 s82, s82, {15*2048}")
    def omm(sl, younger):
        for k in range(5):
            a(f"s_waitcnt vmcnt({8-2*k+younger})" + (f" lgkmcnt({min(15, 24-6*k)})" if sl else ""))
            kk = 5 * sl + k
            if k == 4:
                L1 = a.newlabel("f5o"); L2 = a.newlabel("f5d")
                a("s_cmp_lg_u32 s76, 0")
                a(f"s_cbranch_scc1 {L1}")
                a(f"v_swap_b32 v{ob(kk)+2}, v{ob(kk)+4}")
                a(f"v_swap_b32 v{ob(kk)+3}, v{ob(kk)+5}")
                a(f"s_branch {L2}")
                a.label(L1)
                a(f"v_swap_b32 v{ob(kk)}, v{ob(kk)+6}")
                a(f"v_swap_b32 v{ob(kk)+1}, v{ob(kk)+7}")
                a.label(L2)
                a("s_nop 1")
            for m in mm5(WF + k * 12, ob(kk), ob(kk) + 4, ACC3, "0" if kk == 0 else None): m()
            if sl == 0: wo_read_step(k)
    a("v_and_b32 v14, 31, v0")
    a("v_lshlrev_b32 v14, 4, v14")
    a("v_lshrrev_b32 v15, 5, v0")
    a("v_lshl_add_u32 v14, v15, 10, v14")
    a("s_lshl_b32 s8, s76, 9")
    a("v_add_u32 v14, s8, v14")
    a("v_xor_b32 v15, 0x200, v14")
    def pollload():
        if OPT.get("apoll"):
            a(f"v_mov_b32 v13, s{sTAG}")
            a("s_mov_b64 exec, 0xff")
            a("v_mov_b32 v13, 0")
            a(f"buffer_atomic_or v13, v12, {S4(SRD_WS)}, s7 offen sc0 sc1")
            a("s_mov_b64 exec, -1")
        else: a(f"buffer_load_dword v13, v12, {S4(SRD_WS)}, s7 offen {PF()}")
    a(f"s_setprio {OPT.get('oprio', 3)}")
    if OPT.get("ogate", 0):
        a("s_mov_b32 s78, s7")
        lds_wait(a, C_A1, OPT.get("ogate", 0), 76, 7, sleep=4)
        a("s_mov_b32 s7, s78")
        if OPT.get("odelay", 0): a(f"s_sleep {OPT['odelay']}")
        else: a("s_nop 3")
    a(f"s_mov_b32 s8, {POLL_CAP}")
    a.label("o_poll0")
    pollload()
    a("s_waitcnt vmcnt(0)")
    a(f"v_cmp_ne_u32 vcc, s{sTAG}, v13")
    a("s_and_b32 s11, vcc_lo, 15")
    a("s_cbranch_scc0 o_go0")
    a(f"s_sleep {OPT.get('osleep', 16)}")
    a("s_sub_u32 s8, s8, 1")
    a("s_cmp_lg_u32 s8, 0")
    a("s_cbranch_scc1 o_poll0")
    a.label("o_go0")
    a("s_setprio 3")
    tstamp(a, 12)
    oloads(0)
    a("s_cbranch_vccnz o_slow")
    oloads(1)
    omm(0, 10)
    a("s_branch o_second")
    a.label("o_slow")
    pollload()
    omm(0, 1)
    a("s_waitcnt vmcnt(0)")
    a(f"v_cmp_ne_u32 vcc, s{sTAG}, v13")
    a("s_cbranch_vccz o_go1")
    if OPT.get("pp", 0): flag_poll_pipe(a, 12, 7, [13, 8, 11], 8, OPT.get("ppgap", 3))
    else: flag_poll(a, 12, 7, 13, 8, sleep=OPT.get("osleep2", 8), amask=(0xf0, 0))
    a.label("o_go1")
    oloads(1)
    a.label("o_second")
    tstamp(a, 1)
    omm(1, 0)
    RR = 160
    tstamp(a, 3)
    red_write(ACC3, L_RING, C_G2, 230)
    tstamp(a, 4)
    a("s_mov_b32 s78, 0xffff0000")
    for u in range(5):
        t = 16 + 8 * u
        x = XPR[u]
        a(f"v_lshlrev_b32 v{t}, 16, v{x}")
        a(f"v_and_b32 v{t+1}, s78, v{x}")
        a(f"v_lshlrev_b32 v{t+2}, 16, v{x+1}")
        a(f"v_and_b32 v{t+3}, s78, v{x+1}")
        a(f"v_lshlrev_b32 v{t+4}, 16, v{GG+2*u}")
        a(f"v_and_b32 v{t+5}, s78, v{GG+2*u}")
        a(f"v_lshlrev_b32 v{t+6}, 16, v{GG+2*u+1}")
        a(f"v_and_b32 v{t+7}, s78, v{GG+2*u+1}")
    red_read(RR, C_G2)
    tstamp(a, 5)
    for u in range(5):
        a(f"s_waitcnt lgkmcnt({12-3*u})")
        t = 16 + 8 * u
        r = RR + u * 12
        red_sum(ACC3, RR, u)
        for i in (0, 2):
            a(f"v_pk_fma_f32 {vr(t+i,2)}, {vr(r+i,2)}, {vr(t+4+i,2)}, {vr(t+i,2)}")
        a(f"v_cvt_pk_bf16_f32 v{t+4}, v{t}, v{t+1}")
        a(f"v_cvt_pk_bf16_f32 v{t+5}, v{t+2}, v{t+3}")
        a(f"buffer_store_dwordx2 {vr(t+4,2)}, v1, {S4(SRD_OUT)}, s{US[u]} offen")

DOC = """;
"""
def build():
    a = Asm()
    hdr = open("cdna_kernels/" + NAME + ".s.ref").read().split("\n")
    head = [l for l in hdr if l.startswith(";") and "@launch" not in l]
    out = "\n".join(head) + "\n"
    out += f"; @launch grid=(256,1,1) block=(512,1,1) lds={LDS_TOTAL}\n"
    out += DOC
    out += '.amdgcn_target "amdgcn-amd-amdhsa--gfx950"\n.text\n'
    a.lines += [f".globl {KNAME}", ".p2align 8", f".type {KNAME},@function"]
    a.label(KNAME)
    ln = emit_prologue(a)
    emit_role_a(a)
    emit_role_g(a, ln)
    a.label("k_end")
    if OPT.get("x_fix"):
        if "x_fixw" in OPT:
            a(f"s_cmp_lg_u32 s2, {OPT['x_fixw']}")
            a("s_cbranch_scc1 k_exit")
        a.label("fix_l")
        a("s_memrealtime s[98:99]")
        a("s_waitcnt lgkmcnt(0)")
        a("s_sub_u32 s98, s98, s100")
        a(f"s_cmp_lt_u32 s98, {OPT['x_fix']}")
        a("s_cbranch_scc1 fix_l")
    stamp_flush(a)
    a.label("k_exit")
    a("s_endpgm")
    a.label("code_end")
    if OPT.get("align"):
        a.lines, npro, nnop = align_pass(a.lines, use_nop=(OPT["align"] == 2))
        print("align: promoted", npro, "nops", nnop, file=sys.stderr)
    probs = check_hazards(a.lines)
    for p in probs: print(p, file=sys.stderr)
    out += a.text()
    out += f""".section .rodata,"a"
.p2align 6
.amdhsa_kernel {KNAME}
  .amdhsa_next_free_vgpr 256
  .amdhsa_next_free_sgpr 102
  .amdhsa_accum_offset 256
  .amdhsa_group_segment_fixed_size 0
  .amdhsa_kernarg_size 96
  .amdhsa_user_sgpr_count 2
  .amdhsa_user_sgpr_kernarg_segment_ptr 1
  .amdhsa_system_sgpr_workgroup_id_x 1
.end_amdhsa_kernel
"""
    return out

if __name__ == "__main__":
    path = sys.argv[1] if len(sys.argv) > 1 else "cdna_kernels/" + NAME + ".s"
    for kv in sys.argv[2:]:
        k, v = kv.split("=")
        OPT[k] = int(v)
    open(path, "w").write(build())
```
